```python
import torch

def _softmax(x, axis=-1):
    return torch.softmax(x, dim=axis)

def _gelu(x):
    return torch.nn.functional.gelu(x, approximate='tanh')

def _silu(x):
    return torch.nn.functional.silu(x)

def _sigmoid(x):
    return torch.sigmoid(x)

def _layernorm(x, axis=-1, eps=1e-05):
    m = x.mean(dim=axis, keepdim=True)
    v = x.var(dim=axis, keepdim=True, unbiased=False)
    return (x - m) / torch.sqrt(v + eps)

def _scatter_add(tgt, idx, src, axis=0):
    return tgt.clone().index_add_(axis, idx, src)

def _segment_sum(src, seg, n):
    out = torch.zeros((n,) + src.shape[1:], dtype=src.dtype)
    return out.index_add_(0, seg, src)

def _pad(x, pw):
    flat = tuple((v for pair in reversed(pw) for v in pair))
    return torch.nn.functional.pad(x, flat)
kernel_name = 'adaLN_cond__sliding_local_dilated__mixer_channel_mlp__prompt'

def setup_inputs():

    _w = lambda a: (lambda t: t.to(torch.bfloat16) if t.is_floating_point() else t)(torch.as_tensor(a))

    def _A_setup():
        B, S, D = (1, 2048, 448)
        return {'x': _w((lambda *s: torch.randn(*s, dtype=torch.bfloat16) * 0.05)(B, S, D)), 'wqkv': _w((lambda *s: torch.randn(*s, dtype=torch.bfloat16) * 0.05)(D, 3 * D)), 'wo': _w((lambda *s: torch.randn(*s, dtype=torch.bfloat16) * 0.05)(D, D))}
    _A_in = _A_setup()

    def _B_setup():
        B, S, D, F = (1, 2048, 448, 1792)
        return {'x': _w((lambda *s: torch.randn(*s, dtype=torch.bfloat16) * 0.05)(B, S, D)), 'w1': _w((lambda *s: torch.randn(*s, dtype=torch.bfloat16) * 3.2)(D, F) * D ** (-0.5)), 'b1': _w((lambda *s: torch.randn(*s, dtype=torch.bfloat16) * 1.6)(F)), 'w2': _w((lambda *s: torch.randn(*s, dtype=torch.bfloat16) * 0.2)(F, D) * F ** (-0.5)), 'b2': _w((lambda *s: torch.randn(*s, dtype=torch.bfloat16) * 0.4)(D))}
    _B_in = _B_setup()
    return {'A_x': _A_in['x'], 'A_wqkv': _A_in['wqkv'], 'A_wo': _A_in['wo'], 'B_x': _B_in['x'], 'B_w1': _B_in['w1'], 'B_b1': _B_in['b1'], 'B_w2': _B_in['w2'], 'B_b2': _B_in['b2'], 'c': _w((lambda *s: torch.randn(*s, dtype=torch.bfloat16) * 0.1)(1, 448) * 8.0), 'w_mod': _w((lambda *s: torch.randn(*s, dtype=torch.bfloat16) * 0.1)(448, 6 * 448) * 448 ** (-0.5) * 8.0)}

def reference(A_x, A_wqkv, A_wo, B_x, B_w1, B_b1, B_w2, B_b2, c, w_mod):

    def _A_ref(x, wqkv, wo):
        B, S, D = x.shape
        H = 16
        Dh = D // H
        W, dil = (8, 2)
        qkv = (lambda x, *d: x.permute(*d))((x @ wqkv).reshape(B, S, 3, H, Dh), 2, 0, 3, 1, 4)
        q, k, v = (qkv[0], qkv[1], qkv[2])
        scale = Dh ** (-0.5)
        pos = torch.arange(S)
        off = torch.arange(W) * dil
        idx = pos[:, None] - off[None, :]
        mask = idx >= 0
        idx_c = torch.where(mask, idx, 0).reshape(-1)
        kg = k[:, :, idx_c, :].reshape(B, H, S, W, Dh)
        vg = v[:, :, idx_c, :].reshape(B, H, S, W, Dh)
        logits = torch.einsum('bhsd,bhswd->bhsw', q, kg) * scale
        logits = torch.where(mask[None, None, :, :], logits, -1000000000.0)
        attn = _softmax(logits, axis=-1)
        o = torch.einsum('bhsw,bhswd->bhsd', attn, vg)
        return (lambda x, *d: x.permute(*d))(o, 0, 2, 1, 3).reshape(B, S, D) @ wo

    def _B_ref(x, w1, b1, w2, b2):
        y = _layernorm(x, axis=-1)
        h = _gelu(torch.einsum('bsd,df->bsf', y, w1) + b1)
        return torch.einsum('bsf,fd->bsd', h, w2) + b2
    x = A_x
    mod = (_silu(c) @ w_mod).reshape(c.shape[0], 6, 1, -1)
    sa, ca, ga, sb, cb, gb = (mod[:, 0].clone(), mod[:, 1].clone(), mod[:, 2].clone(), mod[:, 3].clone(), mod[:, 4].clone(), mod[:, 5].clone())
    h = _layernorm(x, axis=-1) * (1 + ca) + sa
    x = x + ga * _A_ref(h, A_wqkv, A_wo)
    h = _layernorm(x, axis=-1) * (1 + cb) + sb
    x = x + gb * _B_ref(h, B_w1, B_b1, B_w2, B_b2)
    return x
```

```python
import re

class Tok:
    __slots__ = ("cls", "ent")
    def __init__(self, cls):
        self.cls = cls
        self.ent = None

class Ent:
    __slots__ = ("kind", "text", "tok", "waits", "scope", "smem")
    def __init__(self, kind, text=None, tok=None, waits=None):
        self.kind = kind
        self.text = text
        self.tok = tok
        self.waits = waits
        self.scope = ()
        self.smem = False

def I(text):
    op = text.split()[0]
    e = Ent('i', text)
    if op.startswith(("buffer_", "global_")):
        e.tok = Tok('vm'); e.tok.ent = e
    elif op.startswith("ds_"):
        e.tok = Tok('lk'); e.tok.ent = e
    elif op.startswith(("s_load", "s_memtime", "s_memrealtime", "s_buffer_load")):
        e.tok = Tok('lk'); e.tok.ent = e; e.smem = True
    return e

def W(*ents):
    fl = []
    for x in ents:
        if x is None: continue
        if isinstance(x, (list, tuple)):
            fl.extend(y for y in x if y is not None and y.tok is not None)
        else:
            fl.append(x)
    return Ent('w', waits=fl)

_reg_re = re.compile(r'\b([vas])(?:\[(\d+):(\d+)\]|(\d+)\b)')
def regs_of(opnd):
    out = []
    for m in _reg_re.finditer(opnd):
        c = m.group(1)
        if m.group(2) is not None:
            out += [(c, i) for i in range(int(m.group(2)), int(m.group(3)) + 1)]
        else:
            out.append((c, int(m.group(4))))
    if re.search(r'\bvcc\b', opnd): out += [('s', 106), ('s', 107)]
    if re.search(r'\bvcc_lo\b', opnd): out.append(('s', 106))
    if re.search(r'\bvcc_hi\b', opnd): out.append(('s', 107))
    if re.search(r'\bm0\b', opnd): out.append(('s', 124))
    if re.search(r'\bexec\b', opnd): out += [('s', 126), ('s', 127)]
    return out

TRANS = ("v_exp_f32", "v_log_f32", "v_rcp_f32", "v_rsq_f32", "v_sqrt_f32", "v_sin_f32", "v_cos_f32")

class Info:
    pass

def analyze(text):
    t = text.split(';')[0].strip()
    parts = t.split(None, 1)
    op = parts[0]
    ops = [o.strip() for o in parts[1].split(',')] if len(parts) > 1 else []
    merged = []
    depth = 0
    for o in ops:
        if depth > 0:
            merged[-1] += ',' + o
        else:
            merged.append(o)
        depth += o.count('[') - o.count(']')
    ops = merged
    inf = Info()
    inf.op = op
    inf.mfma = op.startswith("v_mfma")
    inf.valu = op.startswith("v_") and not inf.mfma
    inf.salu = op.startswith("s_")
    inf.vmem = op.startswith(("buffer_", "global_"))
    inf.ds = op.startswith("ds_")
    inf.trans = op.startswith(TRANS)
    inf.dpp = "_dpp" in op or " row_" in t or "quad_perm" in t
    inf.perml = op.startswith("v_permlane")
    inf.rdlane = op.startswith(("v_readlane", "v_readfirstlane"))
    inf.dma = inf.vmem and re.search(r'\blds\b', t) is not None
    inf.passes = 0
    R = [regs_of(o) for o in ops]
    d, s = [], []
    inf.A = inf.B = inf.C = []
    inf.stdata = []
    if inf.mfma:
        d = R[0]; inf.A, inf.B, inf.C = R[1], R[2], R[3]
        s = R[1] + R[2] + R[3]
        inf.passes = 8 if "32x32" in op else 4
    elif inf.vmem:
        if op.startswith(("buffer_wbl2", "buffer_inv")):
            pass
        elif inf.dma:
            for r in R: s += r
            s.append(('s', 124))
        elif "_store" in op:
            for r in R: s += r
            if op.endswith(("x3", "x4")):
                inf.stdata = R[0] if op.startswith("buffer_") else R[1]
        elif "_atomic" in op:
            for r in R: s += r
            if "sc0" in t: d = R[0]
        else:
            d = R[0]
            for r in R[1:]: s += r
    elif inf.ds:
        if op.startswith(("ds_read", "ds_bpermute", "ds_permute", "ds_swizzle")):
            d = R[0]
            for r in R[1:]: s += r
        else:
            for r in R: s += r
    elif inf.valu:
        if op == "v_nop":
            pass
        elif inf.perml:
            d = R[0] + R[1]; s = R[0] + R[1]
        else:
            d = list(R[0])
            rest = R[1:]
            if op.startswith(("v_add_co", "v_sub_co", "v_addc_co", "v_subb_co", "v_div_scale", "v_mad_u64")):
                d += R[1]; rest = R[2:]
            for r in rest: s += r
            if op.startswith(("v_fmac", "v_dot2c", "v_pk_fmac", "v_writelane")) or inf.dpp or "sdwa" in op:
                s += R[0]
    elif inf.salu:
        if op.startswith(("s_cmp", "s_cbranch", "s_branch", "s_waitcnt", "s_nop", "s_barrier", "s_endpgm", "s_setprio", "s_sleep", "s_bitcmp")):
            for r in R: s += r
        else:
            if R: d = list(R[0])
            for r in R[1:]: s += r
            if "saveexec" in op: d += [('s', 126), ('s', 127)]
    inf.d = set(d); inf.s = set(s)
    return inf

def need(p, c):
    n = 0
    pv = {r for r in p.d if r[0] in 'va'}
    ps = {r for r in p.d if r[0] == 's'}
    if p.valu:
        if c.mfma and (pv & c.s): n = max(n, 2)
        if p.trans and c.valu and (pv & c.s): n = max(n, 1)
        if (c.perml or c.dpp) and (pv & c.s): n = max(n, 2)
        if c.rdlane and (pv & c.s): n = max(n, 1)
        if ps:
            if c.valu and (ps & c.s): n = max(n, 4 if c.op.startswith(("v_readlane", "v_writelane")) else 2)
            if c.vmem and (ps & c.s): n = max(n, 5)
            if c.salu and (ps & c.s): n = max(n, 1)
        if ("sdwa" in p.op or "op_sel:" in p.op) and c.valu and (pv & (c.s | c.d)): n = max(n, 1)
    if p.mfma:
        big = 12 if p.passes == 8 else 8
        if c.mfma:
            if pv & (set(c.A) | set(c.B)): n = max(n, big)
            if pv & set(c.C):
                if not (set(c.C) == pv and c.passes == p.passes): n = max(n, big - 2)
            elif pv & c.d:
                n = max(n, big)
        elif (c.valu or c.vmem or c.ds) and (pv & (c.s | c.d)):
            n = max(n, big)
        if c.valu and (set(p.C) & c.d): n = max(n, 7 if p.passes == 8 else 3)
    if p.salu and ('s', 124) in p.d and c.dma: n = max(n, 1)
    if p.stdata and (set(p.stdata) & c.d): n = max(n, 2)
    return n

class Prog:
    def __init__(self):
        self.e = []
        self.scope = ()
        self.nscope = 0
        self.nlab = 0
    def add(self, *xs):
        last = None
        for x in xs:
            if x is None: continue
            if isinstance(x, (list, tuple)):
                last = self.add(*x)
                continue
            if isinstance(x, str):
                lines = [l.strip() for l in x.split('\n') if l.strip()]
                for l in lines:
                    if l.startswith(';'):
                        ent = Ent('c', l)
                    elif l.endswith(':'):
                        ent = Ent('l', l)
                    else:
                        ent = I(l)
                    ent.scope = self.scope
                    self.e.append(ent); last = ent
                continue
            x.scope = self.scope
            self.e.append(x); last = x
        return last
    __call__ = add
    def wait(self, *ents):
        self.add(W(*ents))
    def waitall(self, vm=True, lk=True):
        e = Ent('w', waits=[]); e.text = ('vm' if vm else '') + ('lk' if lk else '')
        self.add(e)
    def push(self):
        self.nscope += 1
        self.scope = self.scope + (self.nscope,)
    def pop(self):
        self.scope = self.scope[:-1]
    def label(self, base="L"):
        self.nlab += 1
        return f"{base}_{self.nlab}"

    @staticmethod
    def _encl(a, b):
        return b[:len(a)] == a

    def resolve(self):
        E = self.e
        pos = {id(x): i for i, x in enumerate(E)}
        out = []
        done = {'vm': [], 'lk': []}
        def known(cls, sc):
            k = -1
            for (s_, ix) in done[cls]:
                if self._encl(s_, sc): k = max(k, ix)
            return k
        for i, x in enumerate(E):
            if x.kind != 'w':
                out.append(x)
                continue
            cnt = {}
            if x.text:
                if 'vm' in x.text: cnt['vm'] = (0, i)
                if 'lk' in x.text: cnt['lk'] = (0, i)
            for cls in ('vm', 'lk'):
                tg = [pos[id(w)] for w in x.waits if w.tok.cls == cls]
                if not tg or cls in cnt: continue
                t = max(tg)
                assert t < i, "wait on later op: %s" % E[t].text
                k = known(cls, x.scope)
                if t <= k: continue
                n = 0
                sm = False
                for jx in range(k + 1, i):
                    y = E[jx]
                    if y.kind == 'i' and y.tok is not None and y.tok.cls == cls:
                        if y.smem: sm = True
                        if jx > t and self._encl(y.scope, x.scope): n += 1
                if sm:
                    cnt[cls] = (0, i)
                else:
                    mx = 63 if cls == 'vm' else 15
                    cnt[cls] = (min(n, mx), t if n > 0 else i)
            if not cnt: continue
            s = "s_waitcnt"
            if 'vm' in cnt: s += f" vmcnt({cnt['vm'][0]})"; done['vm'].append((x.scope, cnt['vm'][1]))
            if 'lk' in cnt: s += f" lgkmcnt({cnt['lk'][0]})"; done['lk'].append((x.scope, cnt['lk'][1]))
            y = Ent('i', s); y.scope = x.scope
            out.append(y)
        return out

    def hazards(self, L):
        out = []
        infos = []
        nnop = 0
        def states(ent, inf):
            return int(ent.text.split()[1]) + 1 if inf.op == "s_nop" else 1
        for x in L:
            if x.kind != 'i':
                out.append(x); infos.append(None); continue
            c = analyze(x.text)
            distx = 0
            req = 0
            seen = []
            for jx in range(len(out) - 1, -1, -1):
                p = infos[jx]
                if p is None: continue
                n = need(p, c)
                if n > distx:
                    d = sum(st for (sc, st) in seen if self._encl(sc, x.scope) or self._encl(sc, out[jx].scope))
                    if n > d: req = max(req, n - d)
                st = states(out[jx], p)
                seen.append((out[jx].scope, st))
                if self._encl(out[jx].scope, x.scope): distx += st
                if distx >= 12: break
            if req > 0:
                y = Ent('i', f"s_nop {req - 1}"); y.scope = x.scope
                out.append(y); infos.append(analyze(y.text)); nnop += req
            out.append(x); infos.append(c)
        self.nnop = nnop
        return out

    def text(self):
        L = self.hazards(self.resolve())
        s = []
        for x in L:
            if x.kind == 'l': s.append(x.text)
            else: s.append("    " + x.text)
        return "\n".join(s) + "\n"

def weave(main, fill, per=None, start=0):
    out = []
    n = len(main) - start
    if per is None: per = len(fill) / max(1, n)
    acc = 0.0
    k = 0
    for gi, g in enumerate(main):
        out.append(g)
        if gi < start: continue
        acc += per
        while k < len(fill) and acc >= 1.0 - 1e-9:
            out.append(fill[k]); k += 1; acc -= 1.0
    out.extend(fill[k:])
    return out
```

```python
from kern import *

def idle_path(k):
    p = k.p
    k.publish(k.o_st, "s67")
    k.nonce_duty()
    lab = k.cond("s_cmp_lt_u32 s2, 252", 0)
    R = 40
    p(f"s_sub_u32 {sU[0]}, s2, 224")
    p(f"s_lshl_b32 s62, {sU[0]}, 1")
    p(f"s_and_b32 s63, {sW}, 1")
    p("s_add_u32 s62, s62, s63")
    p(f"s_lshl_b32 {sU[1]}, s62, 10")
    p(f"s_add_u32 {sU[1]}, {sU[1]}, {WS_EXT}")
    p("s_lshl_b32 s62, s62, 6")
    p(f"v_and_b32 v32, 31, {vL}")
    p("v_lshl_add_u32 v33, v32, 1, s62")
    b1 = p("global_load_ushort v34, v33, s[36:37]")
    k.gather896(1344, R, False)
    p(f"v_lshlrev_b32 v33, 3, {vTID}")
    p(f"v_add_u32 v33, {L_ET}, v33")
    p(f"ds_write_b64 v33, {vr(R + 16, 2)}")
    p(f"v_lshlrev_b32 v33, 2, {vTID}")
    p(f"v_add_u32 v33, {L_ET}, v33")
    p("v_mov_b32 v35, 0x3f803f80")
    p("v_mov_b32 v36, 0")
    p("ds_write_b32 v33, v35 offset:2048")
    p("ds_write_b32 v33, v36 offset:3072")
    p("v_mov_b32 v33, 3072")
    for row, off in ((0, 896), (1, 0), (4, 2048)):
        p(f"v_cmp_eq_u32 vcc, {row}, v32")
        p(f"v_mov_b32 v35, {off}")
        p("v_cndmask_b32 v33, v33, v35, vcc")
    p(f"v_lshrrev_b32 v35, 5, {vL}")
    p("v_lshl_add_u32 v33, v35, 3, v33")
    p(f"v_add_u32 v33, {L_ET}, v33")
    p(f"s_and_b32 s62, {sW}, 1")
    p("s_lshl_b32 s62, s62, 6")
    p(f"v_xor_b32 v35, s62, v{vT32[0]}")
    p(f"v_add_u32 v35, {L_WO}, v35")
    p(f"s_lshl_b32 s62, {sU[0]}, 4")
    p(f"s_lshl_b32 s63, {sW}, 2")
    p("s_add_u32 s62, s62, s63")
    p(f"s_add_u32 {sU[2]}, s62, {WS_FE}")
    p.waitall(vm=False, lk=True)
    p("s_barrier")
    AC, FA, FB = 64, 80, 96
    def run(gram):
        rd = {}
        def read(s):
            kb = 32 * (s >> 1) + 8 * (s & 1)
            for e in range(2):
                rd[s] = p(f"ds_read_b64 {vr(FA + 4 * (s % 3) + 2 * e, 2)}, v33 offset:{kb * 2 + e * 32}")
                if not gram:
                    rd[s] = p(f"ds_read_b64_tr_b16 {vr(FB + 4 * (s % 3) + 2 * e, 2)}, v35 offset:{(kb + 16 * e) * 128}")
        read(0); read(1)
        for s in range(28):
            if s + 2 < 28: read(s + 2)
            p.wait(rd[s])
            p(f"v_mfma_f32_32x32x16_bf16 {vr(AC, 16)}, {vr(FA + 4 * (s % 3), 4)}, {vr((FA if gram else FB) + 4 * (s % 3), 4)}, {'0' if s == 0 else vr(AC, 16)}")
    l2 = k.cond(f"s_cmp_lt_u32 {sW}, 2", 0)
    run(False)
    p(f"v_cvt_pk_bf16_f32 v41, v{AC}, v{AC + 1}")
    p("v_lshlrev_b32 v44, 16, v41")
    p("v_and_b32 v45, 0xffff0000, v41")
    p(f"v_sub_f32 v46, v{AC}, v44")
    p(f"v_sub_f32 v47, v{AC + 1}, v45")
    p("v_cvt_pk_bf16_f32 v40, v44, v46")
    p("v_cvt_pk_bf16_f32 v42, v47, v45")
    p(f"v_cmp_gt_u32 vcc, 32, {vL}")
    p.wait(b1)
    p("v_lshl_or_b32 v43, v34, 16, v34")
    p("v_cndmask_b32 v43, 0, v43, vcc")
    st = p(f"buffer_store_dwordx4 v[40:43], {vL16}, {WS}, {sU[1]} offen sc1")
    p.wait(st)
    p(f"buffer_store_dword {vN}, off, {WS}, {sU[2]} sc1")
    k.endcond(l2)
    l2 = k.cond(f"s_cmp_eq_u32 {sW}, 2", 0)
    run(True)
    p(f"s_lshl_b32 s62, {sU[0]}, 6")
    p(f"s_add_u32 s62, s62, {WS_GRAM}")
    p(f"v_lshlrev_b32 v33, 3, {vL}")
    p("s_mov_b64 exec, 0xff")
    st = p(f"buffer_store_dwordx2 {vr(AC, 2)}, v33, {WS}, s62 offen sc1")
    p("s_mov_b64 exec, -1")
    p.wait(st)
    p(f"buffer_store_dword {vN}, off, {WS}, {sU[2]} sc1")
    k.endcond(l2)
    k.endcond(lab)
    k.finish()


def phase2(k):
    p = k.p
    OF, AC, XV, GA, SB, SS, GB, B2, T, PK, S = 32, 96, 112, 128, 144, 160, 176, 192, 208, 224, 232
    TB = [248, 249, 250, 251]
    sW1B, sW1A, sO, sA, sFA = sU[0], sU[1], sU[2], sU[3], sU[4]
    p(f"s_lshl_b32 {sW1A}, {sJ}, 8")
    p(f"s_mul_i32 s62, {sW}, {112 * 3584}")
    p(f"s_add_u32 {sW1A}, {sW1A}, s62")
    p(f"s_add_u32 {sW1B}, {sW1A}, 128")
    p(k.strip_dma(W1, vSB, sW1B, 32 * 3584, 0, 7, "s68", L_W1B))
    for nt in range(4):
        p(f"v_add_u32 v{TB[nt]}, {L_WO}, v{vT16[nt]}")
    rd = []
    for h in range(16):
        for nt in range(4):
            for e in range(2):
                rd.append(I(f"ds_read_b64_tr_b16 {ar(16 * h + 4 * nt + 2 * e, 2)}, v{TB[nt ^ (h & 1)]} offset:{28 * h * 128 + e * 1024}"))
    p(rd[:40])
    k.publish(k.o_st, "s67")
    k.stamp("opub")
    p(k.strip_dma(W1, vSB, sW1B, 32 * 3584, 7, 14, "s68", L_W1B))
    p(f"v_lshrrev_b32 v{T}, 4, {vL}")
    p(f"v_and_b32 v{T + 1}, 15, {vL}")
    p(f"v_lshlrev_b32 v{T + 2}, 7, v{T + 1}")
    p(f"v_lshl_add_u32 v{T + 2}, v{T}, 3, v{T + 2}")
    p(f"s_lshr_b32 s62, {sWB}, 1")
    p(f"s_add_u32 s62, s62, {L_XT}")
    p(f"v_add_u32 v{T + 2}, s62, v{T + 2}")
    p(f"v_lshlrev_b32 v{T + 3}, 4, v{T}")
    p(f"v_add_u32 v{T + 3}, {L_VEC}, v{T + 3}")
    xr = [p(f"ds_read_b64 {vr(PK + 2 * n, 2)}, v{T + 2} offset:{n * 32}") for n in range(4)]
    vr_ = []
    for vi, reg in enumerate((GA, SB, SS, GB, B2)):
        for n in range(4):
            vr_.append(p(f"ds_read_b128 {vr(reg + 4 * n, 4)}, v{T + 3} offset:{vi * 256 + n * 64}"))
    pre = [W(xr)]
    for n in range(8):
        pre.append(I(f"v_lshlrev_b32 v{XV + 2 * n}, 16, v{PK + n}"))
        pre.append(I(f"v_and_b32 v{XV + 2 * n + 1}, 0xffff0000, v{PK + n}"))
    pre.append(W(vr_))
    for n in range(0, 16, 2):
        pre.append(I(f"v_pk_mul_f32 {vr(B2 + n, 2)}, {vr(B2 + n, 2)}, {vr(GB + n, 2)}"))
    for t in (f"s_and_b32 s62, {sW}, 1", "s_lshl_b32 s63, s62, 8", f"s_add_u32 {sO}, {sQ2}, s63",
              "s_mul_i32 s63, s62, 14336", f"s_add_u32 {sA}, {sQ2}, s63", f"s_lshl_b32 s63, {sNT}, 11", f"s_add_u32 {sA}, {sA}, s63",
              f"s_add_u32 {sA}, {sA}, {Q_A}",
              "s_mul_i32 s63, s62, 3584", f"s_add_u32 s66, {sQ2}, s63", f"s_lshl_b32 s63, {sNT}, 9", "s_add_u32 s66, s66, s63",
              f"s_add_u32 s66, s66, {Q_ST}",
              f"s_lshl_b32 s63, {sMH}, 1", f"s_lshr_b32 s64, {sW}, 1", "s_add_u32 s63, s63, s64", "s_lshl_b32 s63, s63, 7",
              f"s_lshl_b32 s64, {sRB}, 9", "s_add_u32 s63, s63, s64",
              f"s_add_u32 s64, s63, {WS_FO}", f"v_lshl_add_u32 {vPA}, v{T + 1}, 2, s64",
              "s_lshl_b32 s62, s62, 3", f"s_add_u32 s62, s62, {sNT}", "s_lshl_b32 s62, s62, 2", "s_add_u32 s63, s63, s62",
              f"s_add_u32 {sFA}, s63, {WS_FA}",
              f"v_lshrrev_b32 v{T}, 5, {vL}", f"v_lshlrev_b32 v{T}, 8, v{T}", f"v_lshl_add_u32 v21, v{T + 1}, 4, v{T}"):
        pre.append(I(t))
    p(weave([[x] for x in rd[40:]], pre, per=1.0, start=8))
    p.waitall(vm=False, lk=True)
    p("s_barrier")
    k.stamp("wopre")
    k.poll_flags()
    k.stamp("opoll")
    old = []
    for h in range(16):
        old.append(p(f"buffer_load_dwordx4 {vr(OF + 4 * h, 4)}, {vF16}, {WS}, {sO} offen offset:{(h & 1) * 2048} sc1"))
        if h & 1 and h < 15: p(f"s_add_u32 {sO}, {sO}, 4096")
    w1a = k.strip_dma(W1, vSB, sW1A, 32 * 3584, 0, 14, "s68", L_W1A)
    k.w1a_ld = [x for x in w1a if x.tok]
    main = []
    for h in range(16):
        for nt in range(4):
            g = [W(old[h])] if nt == 0 else []
            g.append(I(f"v_mfma_f32_16x16x32_bf16 {vr(AC + 4 * nt, 4)}, {ar(16 * h + 4 * nt, 4)}, {vr(OF + 4 * h, 4)}, {'0' if h == 0 else vr(AC + 4 * nt, 4)}"))
            main.append(g)
    p(weave(main, w1a, per=0.5, start=4))
    k.stamp("gemm2")
    st = []
    for u in range(2):
        for n in range(8 * u, 8 * u + 8, 2):
            p(f"v_pk_fma_f32 {vr(AC + n, 2)}, {vr(AC + n, 2)}, {vr(GA + n, 2)}, {vr(XV + n, 2)}")
        for n in range(8 * u, 8 * u + 8, 2):
            p(f"v_pk_mul_f32 {vr(T + n, 2)}, {vr(AC + n, 2)}, {vr(SS + n, 2)}")
        for n in range(4 * u, 4 * u + 4):
            p(f"v_cvt_pk_bf16_f32 v{PK + n}, v{T + 2 * n}, v{T + 2 * n + 1}")
        st.append(p(f"buffer_store_dwordx4 {vr(PK + 4 * u, 4)}, {vL16}, {WS}, {sA} offen offset:{u * 1024}"))
    terms = [(AC, None), (AC, AC), (T, None), (T, T), (T, SS), (T, SB)]
    for n in range(0, 16, 2):
        for si, (a, b) in enumerate(terms):
            d = vr(S + 2 * si, 2)
            if b is None:
                if n == 0: continue
                p(f"v_pk_add_f32 {d}, {vr(a, 2) if n == 2 else d}, {vr(a + n, 2)}")
            elif n == 0:
                p(f"v_pk_mul_f32 {d}, {vr(a, 2)}, {vr(b, 2)}")
            else:
                p(f"v_pk_fma_f32 {d}, {vr(a + n, 2)}, {vr(b + n, 2)}, {d}")
    for si in range(6):
        p(f"v_add_f32 v{S + 2 * si}, v{S + 2 * si}, v{S + 2 * si + 1}")
    for n in range(3):
        p(f"v_permlane32_swap_b32 v{S + 2 * n}, v{S + 6 + 2 * n}")
    for n in range(3):
        p(f"v_add_f32 v{S + 12 + n}, v{S + 2 * n}, v{S + 6 + 2 * n}")
    for n in range(3):
        p(f"v_mov_b32 v{S + n}, v{S + 12 + n}")
    for n in range(3):
        p(f"v_permlane16_swap_b32 v{S + 12 + n}, v{S + n}")
    for n in range(3):
        p(f"v_add_f32 v{S + 12 + n}, v{S + 12 + n}, v{S + n}")
    p(f"v_mov_b32 v{S + 15}, 0")
    st.append(p(f"buffer_store_dwordx4 {vr(S + 12, 4)}, v21, {WS}, s66 offen"))
    k.stamp("epi2")
    k.a_st = st
    k.sFA = sFA
    for n in range(0, 16, 2):
        p(f"v_pk_add_f32 {vr(AC + n, 2)}, {vr(AC + n, 2)}, {vr(B2 + n, 2)}")
    for n in range(16):
        p(f"v_accvgpr_write_b32 a{224 + n}, v{AC + n}")
        p(f"v_accvgpr_write_b32 a{240 + n}, v{GB + n}")


def kb32(s):
    return 32 * (s >> 1) + 8 * (s & 1)

def w2_dma(sg, slot, sW2):
    out = [I(f"s_add_u32 m0, {sWB}, {W2SLOT[slot]}")]
    for e in range(4):
        out.append(I(f"buffer_load_dwordx4 v{vSA[e]}, {W2}, {sW2} offen offset:{e * 1024} lds"))
    out.append(I(f"s_add_u32 {sW2}, {sW2}, {32 * 896}"))
    return out

def phase3(k):
    p = k.p
    AF, AC, WB, EX, AE = 32, 144, 208, 232, 248
    C1, C3, BE = 252, 253, 254
    RAW, G4, G2 = 176, 204, 24
    TA = [18, 19]
    vA3, vST = "v20", "v21"
    sA, sST, sW2, sD0, sD1, sFD = sU[0], sU[1], sU[5], sU[2], sU[3], sU[6]
    k.sW2, k.sFD = sW2, sFD
    p.wait(k.w1a_ld)
    p("s_barrier")
    rd = []
    for t in range(2):
        for s in range(28):
            for e in range(2):
                rd.append(I(f"ds_read_b64_tr_b16 {ar(112 * t + 4 * s + 2 * e, 2)}, v{vT32[t]} offset:{L_W1B + (kb32(s) + 16 * e) * 128}"))
    p(rd[:24])
    k.publish(k.a_st, k.sFA)
    k.stamp("apub")
    p(f"v_and_b32 v29, 3, {vL}")
    p("v_min_u32 v29, 2, v29")
    p(f"v_and_b32 v30, 4, {vL}")
    p("v_or_b32 v29, v29, v30")
    p(f"s_lshl_b32 s62, {sJ}, 5")
    p(f"s_add_u32 s62, s62, {WS_FE}")
    p(f"v_lshl_add_u32 {vPA}, v29, 2, s62")
    p(rd[24:40])
    k.poll([f"buffer_load_dword {vPD}, {vPA}, {WS}, 0 offen sc1"], [f"v_cmp_eq_u32 vcc, {sN}, {vPD}"])
    p(f"s_lshl_b32 s62, {sJ}, 12")
    p(f"s_add_u32 s62, s62, {WS_EXT}")
    for t in range(4):
        p(f"buffer_load_dwordx4 {vr(EX + 4 * t, 4)}, {vL16}, {WS}, s62 offen offset:{t * 1024} sc1")
    p(f"s_lshl_b32 s62, {sJ}, 7")
    p(f"s_add_u32 s62, s62, {WS_GRAM}")
    p(f"buffer_load_dwordx4 {vr(G4, 4)}, off, {WS}, s62 sc1")
    p(f"buffer_load_dwordx2 v[30:31], off, {WS}, s62 offset:32 sc1")
    pre = []
    for t in (f"v_add_u32 v{TA[0]}, {L_W1A}, v{vT32[0]}", f"v_add_u32 v{TA[1]}, {L_W1A}, v{vT32[1]}",
              f"v_bfe_u32 v29, {vL}, 4, 1", f"v_mul_u32_u24 {vA3}, 14336, v29", f"v_add_u32 {vA3}, {vA3}, {vST}",
              "v_mul_u32_u24 v29, 3584, v29", f"v_add_u32 {vST}, v29, {vST}",
              f"s_add_u32 {sA}, {sQ}, {Q_A}", f"s_add_u32 {sST}, {sQ}, {Q_ST}",
              f"s_mul_i32 {sW2}, {sW}, {448 * 896}", f"s_lshl_b32 s62, {sNT}, 7", f"s_add_u32 {sW2}, {sW2}, s62",
              f"s_lshl_b32 {sD0}, {sJ}, 13", f"s_add_u32 {sD0}, {sD0}, {sQ}", f"s_add_u32 {sD1}, {sD0}, 4096",
              f"s_lshl_b32 s62, {sRB}, 8", f"s_lshl_b32 s63, {sW}, 6", "s_add_u32 s62, s62, s63", f"s_lshl_b32 s63, {sJ}, 2",
              "s_add_u32 s62, s62, s63", f"s_add_u32 {sFD}, s62, {WS_FD}",
              f"v_and_b32 v29, 7, {vL}", "v_min_u32 v29, 6, v29", f"v_and_b32 {vPA}, 8, {vL}", f"v_or_b32 v29, v29, {vPA}",
              f"s_lshl_b32 s62, {sRB}, 9", f"s_lshl_b32 s63, {sW}, 7", "s_add_u32 s62, s62, s63", f"s_add_u32 s62, s62, {WS_FA}",
              f"v_lshl_add_u32 {vPA}, v29, 2, s62"):
        pre.append(I(t))
    p(weave([[x] for x in rd[40:]], pre, per=0.5))
    wrd = {}
    def wread(s):
        o = []
        for t in range(2):
            for e in range(2):
                x = I(f"ds_read_b64_tr_b16 {vr(WB + 8 * (s % 3) + 4 * t + 2 * e, 2)}, v{TA[t]} offset:{(kb32(s) + 16 * e) * 128}")
                wrd[(s, t)] = x; o.append(x)
        return o
    p(wread(0)); p(wread(1))
    p.waitall(vm=False, lk=True)
    p("s_barrier")
    k.stamp("w1pre")
    k.poll_flags()
    k.stamp("apoll")
    G2 = 30
    ald = []
    aq = []
    for s in range(28):
        x = I(f"buffer_load_dwordx4 {vr(AF + 4 * s, 4)}, {vA3}, {WS}, {sA} offen offset:{(s % 8) * 512} sc1")
        ald.append(x); aq.append(x)
        if s % 8 == 7: aq.append(I(f"s_add_u32 {sA}, {sA}, 4096"))
    sld = [I(f"buffer_load_dwordx4 {vr(RAW + 4 * n, 4)}, {vST}, {WS}, {sST} offen offset:{n * 512} sc1") for n in range(7)]
    p(aq[:4]); p(sld); p(aq[4:9])
    vq = aq[9:]
    w2q = []
    for sg in range(6): w2q += w2_dma(sg, sg, sW2)
    k.w2_ld = {sg: w2q[6 * sg + 4] for sg in range(6)}
    vq += w2q
    D = 448.0
    A_ = -2.0 * math.sqrt(2.0 / math.pi) * math.log2(math.e)
    B_ = A_ * 0.044715
    R = RAW
    sm = [W(sld)]
    def v(t): sm.append(I(t))
    for n in range(3):
        v(f"v_add_f32 v{R + n}, v{R + n}, v{R + 4 + n}")
        v(f"v_add_f32 v{R + 8 + n}, v{R + 8 + n}, v{R + 12 + n}")
        v(f"v_add_f32 v{R + 16 + n}, v{R + 16 + n}, v{R + 20 + n}")
    for n in range(3):
        v(f"v_add_f32 v{R + n}, v{R + n}, v{R + 8 + n}")
        v(f"v_add_f32 v{R + 16 + n}, v{R + 16 + n}, v{R + 24 + n}")
    for n in range(3):
        v(f"v_add_f32 v{R + n}, v{R + n}, v{R + 16 + n}")
    for n in range(3):
        v(f"v_mov_b32 v{R + 4 + n}, v{R + n}")
    v(f"v_cmp_gt_u32 s[64:65], 32, {vL}")
    for n in range(3):
        v(f"v_permlane32_swap_b32 v{R + n}, v{R + 4 + n}")
    S1, S2, S3, S4, S5, S6 = R, R + 1, R + 2, R + 4, R + 5, R + 6
    mu, v1, sg1, gm, e2, t0, t1, rho = R + 8, R + 9, R + 10, R + 11, R + 12, R + 13, R + 14, R + 15
    Gss, Gsb, Gbb, Gs, Gb = G4, G4 + 1, G4 + 3, G2, G2 + 1
    v(f"v_mul_f32 v{mu}, {fb(-1 / D)}, v{S1}")
    v(f"v_mul_f32 v{v1}, {fb(1 / D)}, v{S2}")
    v(f"v_fma_f32 v{v1}, -v{mu}, v{mu}, v{v1}")
    v(f"v_max_f32 v{v1}, 0, v{v1}")
    v(f"v_add_f32 v{v1}, {fb(1e-5)}, v{v1}")
    v(f"v_sqrt_f32 v{sg1}, v{v1}")
    v(f"v_fma_f32 v{gm}, v{mu}, v{Gs}, v{S3}")
    v(f"v_fma_f32 v{t0}, v{mu}, v{Gsb}, v{S6}")
    v(f"v_fma_f32 v{gm}, v{sg1}, v{Gb}, v{gm}")
    v(f"v_mul_f32 v{gm}, {fb(-1 / D)}, v{gm}")
    v(f"v_mul_f32 v{t0}, v{sg1}, v{t0}")
    v(f"v_fma_f32 v{t0}, v{mu}, v{S5}, v{t0}")
    v(f"v_mul_f32 v{t1}, v{mu}, v{mu}")
    v(f"v_fma_f32 v{e2}, v{t1}, v{Gss}, v{S4}")
    v(f"v_fma_f32 v{e2}, v{v1}, v{Gbb}, v{e2}")
    v(f"v_fma_f32 v{e2}, 2.0, v{t0}, v{e2}")
    v(f"v_mul_f32 v{e2}, {fb(1 / D)}, v{e2}")
    v(f"v_fma_f32 v{e2}, -v{gm}, v{gm}, v{e2}")
    v(f"v_max_f32 v{e2}, 0, v{e2}")
    v(f"v_fmac_f32 v{e2}, {fb(1e-5)}, v{v1}")
    v(f"v_sqrt_f32 v{BE}, v{e2}")
    v(f"v_rsq_f32 v{rho}, v{e2}")
    v(f"v_cndmask_b32 v{mu}, v{gm}, v{mu}, s[64:65]")
    v(f"v_mul_f32 v{C1}, {fb(A_)}, v{rho}")
    v(f"v_mul_f32 v{t0}, v{rho}, v{rho}")
    v(f"v_mul_f32 v{t0}, v{t0}, v{rho}")
    v(f"v_mul_f32 v{C3}, {fb(B_)}, v{t0}")
    v(f"v_cvt_pk_bf16_f32 v{AE}, v{mu}, v{mu}")
    v(f"v_cvt_pk_bf16_f32 v{t0}, v{sg1}, v{BE}")
    v(f"v_and_b32 v{t1}, 0xffff0000, v{AE}")
    v(f"v_sub_f32 v{mu}, v{mu}, v{t1}")
    v(f"v_lshlrev_b32 v{t1}, 16, v{t0}")
    v(f"v_and_b32 v{t0}, 0xffff0000, v{t0}")
    v(f"v_sub_f32 v{sg1}, v{sg1}, v{t1}")
    v(f"v_sub_f32 v{e2}, v{BE}, v{t0}")
    v(f"v_cvt_pk_bf16_f32 v{AE + 1}, v{mu}, v{t1}")
    v(f"v_cvt_pk_bf16_f32 v{AE + 2}, v{t1}, v{sg1}")
    v(f"v_cvt_pk_bf16_f32 v{AE + 3}, v{t0}, v{e2}")

    def mm(t, s):
        acc = vr(AC + 16 * t, 16)
        if s == 28:
            return I(f"v_mfma_f32_32x32x16_bf16 {acc}, {vr(EX + 4 * t, 4)}, {vr(AE, 4)}, {acc}")
        a = vr(WB + 8 * (s % 3) + 4 * t, 4) if t < 2 else ar(112 * (t - 2) + 4 * s, 4)
        return I(f"v_mfma_f32_32x32x16_bf16 {acc}, {a}, {vr(AF + 4 * s, 4)}, {'0' if s == 0 else acc}")
    T2S = 16
    for s in range(28):
        nxt = wread(s + 2) if s + 2 < 28 else []
        for t in range(2):
            p.wait(wrd[(s, t)], ald[s] if t == 0 else None)
            p(mm(t, s))
            p(nxt[2 * t:2 * t + 2])
            if vq: p(vq.pop(0))
            if s >= 4:
                for _ in range(3):
                    if sm: p(sm.pop(0))
        if s >= T2S:
            assert not sm
            p(mm(2, s - T2S))
            if vq: p(vq.pop(0))
    p(vq)
    p(mm(0, 28)); p(mm(1, 28))
    p("s_barrier")
    k.stamp("p1")
    TM, PO = WB, WB + 8
    stores = []
    def gelu(t, grp, pk):
        x = AC + 16 * t + 4 * grp
        tm = TM + 4 * (grp & 1)
        f = grp >> 1
        po = PO + 4 * ((2 * t + f) % 4) + 2 * (grp & 1)
        o = []
        if pk:
            for n in (0, 2): o.append((I(f"v_pk_mul_f32 {vr(tm + n, 2)}, {vr(x + n, 2)}, {vr(x + n, 2)}"), 1))
            for n in (0, 2): o.append((I(f"v_pk_fma_f32 {vr(tm + n, 2)}, {vr(tm + n, 2)}, {vr(C1, 2)}, {vr(C1, 2)} op_sel:[0,1,0] op_sel_hi:[1,1,0]"), 1))
            for n in (0, 2): o.append((I(f"v_pk_mul_f32 {vr(tm + n, 2)}, {vr(tm + n, 2)}, {vr(x + n, 2)}"), 1))
        else:
            for n in range(4): o.append((I(f"v_mul_f32 v{tm + n}, v{x + n}, v{x + n}"), 1))
            for n in range(4): o.append((I(f"v_fma_f32 v{tm + n}, v{tm + n}, v{C3}, v{C1}"), 1))
            for n in range(4): o.append((I(f"v_mul_f32 v{tm + n}, v{tm + n}, v{x + n}"), 1))
        for n in range(4): o.append((I(f"v_exp_f32 v{tm + n}, v{tm + n}"), 2))
        if pk:
            for n in (0, 2): o.append((I(f"v_pk_fma_f32 {vr(tm + n, 2)}, {vr(tm + n, 2)}, {vr(BE, 2)}, {vr(BE, 2)} op_sel_hi:[1,0,0]"), 1))
        else:
            for n in range(4): o.append((I(f"v_fma_f32 v{tm + n}, v{tm + n}, v{BE}, v{BE}"), 1))
        for n in range(4): o.append((I(f"v_rcp_f32 v{tm + n}, v{tm + n}"), 2))
        if pk:
            for n in (0, 2): o.append((I(f"v_pk_mul_f32 {vr(tm + n, 2)}, {vr(tm + n, 2)}, {vr(x + n, 2)}"), 1))
        else:
            for n in range(4): o.append((I(f"v_mul_f32 v{tm + n}, v{tm + n}, v{x + n}"), 1))
        for n in range(2): o.append((I(f"v_cvt_pk_bf16_f32 v{po + n}, v{tm + 2 * n}, v{tm + 2 * n + 1}"), 1))
        if grp & 1:
            x = I(f"buffer_store_dwordx4 {vr(po - 2, 4)}, {vL16}, {WS}, {sD0 if t < 2 else sD1} offen offset:{((2 * t + f) % 4) * 1024}")
            stores.append(x); o.append((x, 1))
        return o
    mq = [mm(2, s) for s in range(28 - T2S, 29)] + [mm(3, s) for s in range(29)]
    w2q = []
    for sg in range(6, 10): w2q += w2_dma(sg, sg, sW2)
    for sg in range(6, 10): k.w2_ld[sg] = w2q[6 * (sg - 6) + 4]
    groups = [(t, g) for t in range(4) for g in range(4)]
    gi = 0
    cur = []
    for n, m in enumerate(mq):
        p(m)
        budget = 6
        if n < 2:
            for _ in range(6): p(w2q.pop(0))
            continue
        if w2q and n % 2 == 0:
            p(w2q.pop(0)); budget -= 1
        while budget > 0:
            if not cur:
                if n >= len(mq) - 2 or gi >= 8: break
                cur = gelu(*groups[gi], False); gi += 1
            e, c = cur.pop(0)
            p(e); budget -= c
    p(w2q)
    p([e for e, c in cur])
    while gi < 16:
        p([e for e, c in gelu(*groups[gi], True)]); gi += 1
    k.d_st = stores
    k.stamp("gelu")


def phase4(k):
    p = k.p
    HB, AC, RD, TB = 32, 160, 192, 240
    BS, GB = 128, 144
    NR = 24
    sW2 = k.sW2
    for b in range(3):
        p(f"s_add_u32 s62, {sWB}, {65536 * b}")
        for nt in range(4):
            p(f"v_add_u32 v{TB + 4 * b + nt}, s62, v{vT16[nt]}")
    def wread(sg):
        base = W2SLOT[sg % 10]
        o = [W(k.w2_ld[sg])]
        for nt in range(4):
            for e in range(2):
                o.append(I(f"ds_read_b64_tr_b16 {ar(16 * sg + 4 * nt + 2 * e, 2)}, v{TB + 4 * (base >> 16) + nt} offset:{(base & 0xffff) + e * 1024}"))
        return o
    def refill(sg, last):
        d = w2_dma(sg, sg - 10, sW2)
        k.w2_ld[sg] = d[4]
        return [W(last)] + d
    r0 = wread(0); r1 = wread(1); r2 = wread(2); r3 = wread(3)
    p(r0); p(r1); p(refill(10, r0[-1])); p(r2); p(refill(11, r1[-1])); p(r3)
    k.publish(k.d_st, k.sFD)
    k.stamp("dpub")
    p(refill(12, r2[-1])); p(refill(13, r3[-1]))
    sM = [sU[0], sU[1], sU[2], sU[3]]
    pre = []
    for t in (f"s_mul_i32 s62, {sW}, 7", "s_lshr_b32 s62, s62, 1", f"v_and_b32 v29, 3, {vL}", "v_add_u32 v29, s62, v29",
              f"v_and_b32 v30, 4, {vL}", "v_lshl_add_u32 v29, v30, 2, v29",
              f"s_lshl_b32 s62, {sRB}, 8", f"s_lshl_b32 s63, {sMH}, 7", "s_add_u32 s62, s62, s63", f"s_add_u32 s62, s62, {WS_FD}",
              f"v_lshl_add_u32 {vPA}, v29, 2, s62",
              f"s_mul_i32 s64, {sMH}, {2 * QS}", f"s_add_u32 s64, s64, {sCL}", f"s_mul_i32 s63, {sW}, {28 * 1024}", "s_add_u32 s64, s64, s63"):
        pre.append(I(t))
    for rho in range(4):
        for t in (f"s_add_u32 s62, {sW}, {rho + 1}", "s_bfe_u32 s63, s62, 0x10001", f"s_mul_i32 s63, s63, {QS}", "s_and_b32 s62, s62, 1",
                  "s_lshl_b32 s62, s62, 8", "s_add_u32 s62, s62, s63", f"s_add_u32 {sM[rho]}, s62, s64"):
            pre.append(I(t))
    vRW, vTW, vTR = "v18", "v19", "v20"
    vRR = ["v21", "v22", "v31"]
    pre.append(I(f"v_add_u32 {vRW}, {sWB}, {vL16}"))
    for rho in range(3):
        for t in (f"s_sub_u32 s62, {sW}, {rho + 1}", "s_and_b32 s62, s62, 3", "s_lshl_b32 s62, s62, 12", f"s_add_u32 s62, s62, {W2SLOT[4 + rho]}",
                  f"v_add_u32 {vRR[rho]}, s62, {vL16}"):
            pre.append(I(t))
    for t in (f"s_add_u32 s62, {sWB}, {W2SLOT[7]}",
              f"v_and_b32 v29, 15, {vL}", "v_mul_u32_u24 v29, 144, v29", f"v_lshrrev_b32 v30, 4, {vL}", "v_lshl_add_u32 v29, v30, 3, v29", f"v_add_u32 {vTW}, s62, v29",
              f"v_lshrrev_b32 v29, 3, {vL}", "v_mul_u32_u24 v29, 144, v29", f"v_and_b32 v30, 7, {vL}", "v_lshl_add_u32 v29, v30, 4, v29", f"v_add_u32 {vTR}, s62, v29",
              f"s_add_u32 {sU[4]}, {sXROW}, 14336"):
        pre.append(I(t))
    rds = []
    for sg in range(4, 10): rds += wread(sg)
    p(weave([[x] for x in rds], pre, per=1.5))
    k.stamp("w2pre")
    k.poll_flags()
    if 'p4sleep' in k.opt:
        p("s_sleep 100")
    if 'p4twice' in k.opt:
        for rho in range(4):
            p(f"s_mov_b32 s62, {sM[rho]}")
            for sg in range(14):
                p(f"buffer_load_dwordx4 {vr(HB + 4 * sg, 4)}, {vF16}, {WS}, s62 offen offset:{(sg & 1) * 2048} sc1")
                if sg & 1: p("s_add_u32 s62, s62, 4096")
        p.waitall()
        p("s_barrier")
    k.stamp("dpoll")
    hl = []
    hq = []
    for rho in range(4):
        for sg in range(14):
            n = 14 * rho + sg
            x = I(f"buffer_load_dwordx4 {vr(HB + 4 * (n % NR), 4)}, {vF16}, {WS}, {sM[rho]} offen offset:{(sg & 1) * 2048} {'' if 'p4plain' in k.opt else 'sc1'}")
            hl.append(x)
            g = [x]
            if sg & 1 and sg < 13: g.append(I(f"s_add_u32 {sM[rho]}, {sM[rho]}, 4096"))
            hq.append(g)
    PRE = 16
    p(hq[:PRE])
    late = []
    for sg in range(10, 14): late += wread(sg)
    p(late)
    p.wait(rds[-1])
    fill = []
    wrs = []
    for n in range(56):
        rho, sg = divmod(n, 14)
        acc = AC + 16 * (rho & 1)
        if sg == 2 and rho >= 1:
            pa = AC + 16 * ((rho - 1) & 1)
            base = W2SLOT[4 + rho - 1]
            fill.append(I(f"v_add_u32 v29, {base}, {vRW}"))
            w_ = [I(f"ds_write_b128 v29, {vr(pa + 4 * c, 4)} offset:{c * 1024}") for c in range(4)]
            fill += w_
            if rho == 2:
                for c in range(16):
                    fill.append(I(f"v_accvgpr_read_b32 v{BS + c}, a{224 + c}"))
                    fill.append(I(f"v_accvgpr_read_b32 v{GB + c}, a{240 + c}"))
            if rho == 3:
                fill += [None] * 4
                fill.append([W(w_), I("s_barrier")])
                r_ = [I(f"ds_read_b128 {vr(RD + 16 * q + 4 * c, 4)}, {vRR[q]} offset:{c * 1024}") for q in range(3) for c in range(4)]
                fill += r_
                fill.append(W(r_[7]))
                for c in range(16): fill.append(I(f"v_add_f32 v{RD + c}, v{RD + c}, v{RD + 16 + c}"))
                fill.append(W(r_[11]))
                for c in range(16): fill.append(I(f"v_add_f32 v{RD + c}, v{RD + c}, v{RD + 32 + c}"))
                for c in range(16): fill.append(I(f"v_fmac_f32 v{BS + c}, v{RD + c}, v{GB + c}"))
        for nt in range(4):
            if nt == 0:
                if 'p4pass' in k.opt and sg == 0: k.stamp(f"pass{rho}")
                p.wait(hl[n] if 'p4nowait' not in k.opt else None, late[-1] if n == 10 else None)
            if 'p4nomfma' not in k.opt:
                p(f"v_mfma_f32_16x16x32_bf16 {vr(acc + 4 * nt, 4)}, {ar(16 * sg + 4 * nt, 4)}, {vr(HB + 4 * (n % NR), 4)}, {'0' if sg == 0 else vr(acc + 4 * nt, 4)}")
            if nt == 0 and n + PRE < 56:
                if 'p4noload' not in k.opt: p(hq[n + PRE])
            elif nt == 3:
                if fill: p(fill.pop(0))
            else:
                for _ in range(2):
                    if fill: p(fill.pop(0))
    p(fill)
    k.stamp("gemm4")
    acc = AC + 16
    wr = []
    for c in range(4):
        for n in (0, 2):
            p(f"v_pk_fma_f32 {vr(BS + 4 * c + n, 2)}, {vr(acc + 4 * c + n, 2)}, {vr(GB + 4 * c + n, 2)}, {vr(BS + 4 * c + n, 2)}")
        for n in range(2):
            p(f"v_cvt_pk_bf16_f32 v{RD + 2 * c + n}, v{BS + 4 * c + 2 * n}, v{BS + 4 * c + 2 * n + 1}")
        wr.append(p(f"ds_write_b64 {vTW}, {vr(RD + 2 * c, 2)} offset:{c * 32}"))
    p.wait(wr)
    r_ = [p(f"ds_read_b128 {vr(RD + 8 + 4 * u, 4)}, {vTR} offset:{u * 8 * 144}") for u in range(2)]
    for u in range(2):
        p.wait(r_[u])
        p(f"buffer_store_dwordx4 {vr(RD + 8 + 4 * u, 4)}, {vROW}, {OUT}, {sXROW if u == 0 else sU[4]} offen")


def rest(k):
    p = k.p
    act = p.label("ACT")
    p(f"s_cmp_lt_u32 {sJ}, 14")
    p(f"s_cbranch_scc1 {act}")
    p.push()
    idle_path(k)
    p.pop()
    p(act + ":")
    if k.stop <= 1:
        k.publish(k.o_st, "s67"); k.finish(); return
    phase2(k)
    if k.stop <= 2:
        k.publish(k.a_st, k.sFA); k.finish(); return
    phase3(k)
    if k.stop <= 3:
        k.finish(); return
    phase4(k)
    k.finish()
```

```python
import sys, struct, math
from asmlib import Prog, I, W, weave

NAME = "adaLN_cond__sliding_local_dilated__mixer_channel_mlp__prompt"

def fb(x):
    return "0x%08x" % struct.unpack("<I", struct.pack("<f", x))[0]

WS_XCC = 0x1000
WS_FH = 0x2000
WS_FO = 0x4000
WS_FA = 0x6000
WS_FD = 0x8000
WS_FE = 0xA000
WS_MODP = 0x10000
WS_EXT = 0x20000
WS_GRAM = 0x2F000
WS_DBG = 0x40000
WS_CL = 0x100000
QS = 0x25000
CLS = 0x98000
Q_HID = 0
Q_O = 0
Q_A = 0x1C000
Q_H = 0x1C000
Q_ST = 0x23000
CL_HALO = 4 * QS
WS_SIZE = 0x1000000

L_WQ = 0
L_WO = 86016
L_MS = L_WO
L_XS = L_WO + 16384
L_SC = L_WO + 32768
L_MT = L_WO + 33280
L_SP = 143872
L_VEC = L_SP
L_XT = L_SP + 2048
L_ET = L_SP + 10240
L_HP = 0
L_KX = 16384
L_VX = 28672
L_W1B = 0
L_W1A = 57344
W2SLOT = [0, 16384, 32768, 114688, 131072, 147456, 49152, 65536, 81920, 98304]

X, WQ, WO, W1, W2, WM, OUT, WS = ("s[4:7]", "s[8:11]", "s[12:15]", "s[16:19]", "s[20:23]", "s[24:27]", "s[28:31]", "s[32:35]")
sRB, sJ, sW, sH, sN, sFAST, sCL, sROT, sXCC, sMH, sNT = ("s42", "s43", "s44", "s45", "s46", "s47", "s48", "s49", "s50", "s51", "s52")
sCNT = "s53"
sWB = "s54"
sSH = "s55"
STR = "s[56:59]"
sPIT = "s60"
sJOB = "s61"
sT = ["s%d" % i for i in range(62, 70)]
sHOFF = ["s%d" % i for i in range(70, 77)]
sWOFF = ["s%d" % i for i in range(77, 84)]
sQ = "s84"
sQ2 = "s85"
sXROW = "s86"
sMSK = "s87"
sWL = "s88"
sU = ["s%d" % i for i in range(89, 100)]
STAMP0 = 100

vL, vTID, vL16, vN = "v0", "v1", "v2", "v3"
vSA = [4, 5, 6, 7]
vSB = [8, 9, 10, 11]
vT16 = [12, 13, 14, 15]
vT32 = [16, 17]
vWq = [18, 19, 20]
vTq = [21, 22]
vPA, vPD, vPX, vPY = "v23", "v24", "v25", "v26"
vF16 = "v27"
vROW = "v28"
vt = [29, 30, 31]

POLL_LIMIT = 40000

def vr(b, n=1):
    return f"v{b}" if n == 1 else f"v[{b}:{b + n - 1}]"
def ar(b, n=1):
    return f"a{b}" if n == 1 else f"a[{b}:{b + n - 1}]"


class K:
    def __init__(self, stop=99, stamps=False, force_slow=False, opt=()):
        self.opt = set(opt)
        self.p = Prog()
        self.ool = []
        self.stop = stop
        self.stamps = stamps
        self.nstamp = 0
        self.force_slow = force_slow

    def stamp(self, name):
        if not self.stamps: return
        k = self.nstamp
        self.nstamp += 1
        p = self.p
        e = p(f"s_memtime s[{STAMP0}:{STAMP0 + 1}]")
        p.wait(e)
        p(f"v_writelane_b32 v255, s{STAMP0}, {k}")
        self.stamp_names = getattr(self, "stamp_names", []) + [name]

    def cond(self, cmp_text, skip_if_scc):
        p = self.p
        lab = p.label("SK")
        p(cmp_text)
        p(f"s_cbranch_scc{skip_if_scc} {lab}")
        p.push()
        return lab
    def endcond(self, lab):
        self.p.pop()
        self.p(lab + ":")

    def xcc_check(self):
        p = self.p
        p(f"v_xor_b32 {vPY}, {sN}, {vPX}")
        p(f"v_cmp_gt_u32 s[62:63], 8, {vPY}")
        p(f"v_cmp_eq_u32 s[64:65], {sXCC}, {vPX}")

    def poll(self, loads, check, with_xcc=False):
        p = self.p
        lab, done = p.label("PL"), p.label("PD")
        p(f"s_mov_b32 {sCNT}, {POLL_LIMIT}")
        p(lab + ":")
        for l in loads: p(l)
        if with_xcc:
            p(f"buffer_load_dword {vPX}, v{vt[2]}, {WS}, 0 offen sc1")
        p.waitall(vm=True, lk=False)
        for c in check: p(c)
        if with_xcc:
            self.xcc_check()
            p("s_and_b64 vcc, vcc, s[62:63]")
        p("s_cmp_eq_u64 vcc, -1")
        p(f"s_cbranch_scc1 {done}")
        p(f"s_sub_u32 {sCNT}, {sCNT}, 1")
        p(f"s_cbranch_scc0 {lab}")
        p("s_endpgm")
        p(done + ":")
        if with_xcc:
            p("s_cmp_eq_u64 s[64:65], -1")
            p(f"s_cselect_b32 {sFAST}, {0 if self.force_slow else 1}, 0")

    def poll_flags(self, with_xcc=False):
        self.poll([f"buffer_load_dword {vPD}, {vPA}, {WS}, 0 offen sc1"],
                  [f"v_cmp_eq_u32 vcc, {sN}, {vPD}"], with_xcc)
        self.acquire()

    def acquire(self):
        p = self.p
        a, b = p.label("AQ"), p.label("AR")
        p(f"s_cmp_eq_u32 {sFAST}, 0")
        p(f"s_cbranch_scc1 {a}")
        p(b + ":")
        self.ool.append(f"{a}:\n    buffer_inv sc1\n    s_waitcnt vmcnt(0)\n    s_branch {b}\n")

    def publish(self, stores, sflag):
        p = self.p
        a, b = p.label("PS"), p.label("PR")
        p.wait(stores)
        p(f"s_cmp_eq_u32 {sFAST}, 0")
        p(f"s_cbranch_scc1 {a}")
        e = p(f"buffer_store_dword {vN}, off, {WS}, {sflag}")
        p(b + ":")
        self.ool.append(f"{a}:\n    s_waitcnt vmcnt(0)\n    buffer_wbl2 sc1\n    s_waitcnt vmcnt(0)\n"
                        f"    buffer_store_dword {vN}, off, {WS}, {sflag} sc1\n    s_branch {b}\n")
        return e

    def strip_voff(self, dst, pitch, tmp):
        p = self.p
        a, b = tmp
        p(f"v_lshrrev_b32 v{a}, 3, {vL}")
        p(f"v_and_b32 v{b}, 2, v{a}")
        p(f"v_lshrrev_b32 v{dst[1]}, 2, v{a}")
        p(f"v_or_b32 v{b}, v{b}, v{dst[1]}")
        p(f"v_lshlrev_b32 v{b}, 1, v{b}")
        p(f"v_and_b32 v{dst[1]}, 7, {vL}")
        p(f"v_xor_b32 v{b}, v{b}, v{dst[1]}")
        p(f"v_lshlrev_b32 v{b}, 4, v{b}")
        if isinstance(pitch, int):
            p(f"v_mul_u32_u24 v{a}, {pitch}, v{a}")
            p(f"v_add_u32 v{dst[0]}, v{a}, v{b}")
            for e in (1, 2, 3):
                p(f"v_add_u32 v{dst[e]}, {e * (8 * pitch - 1024)}, v{dst[0]}")
        else:
            p(f"v_mad_u32_u24 v{dst[0]}, v{a}, {pitch}, v{b}")
            p(f"s_lshl_b32 {sT[0]}, {pitch}, 3")
            p(f"s_sub_u32 {sT[0]}, {sT[0]}, 1024")
            for e in (1, 2, 3):
                p(f"v_add_u32 v{dst[e]}, {sT[0]}, v{dst[e - 1]}")

    def wq_group(self, G):
        out = [I(f"s_add_u32 m0, {sWL}, {L_WQ + G * 12288}")]
        for e in range(3):
            out.append(I(f"buffer_load_dwordx4 v{vWq[e]}, {WQ}, {sWOFF[G]} offen offset:{e * 1024} lds"))
        return out

    def tagcheck(self, regs, tmp):
        out = []
        a, b, acc = tmp
        for n, r in enumerate(regs):
            out.append(f"v_perm_b32 v{a}, v{r + 1}, v{r}, {sMSK}")
            out.append(f"v_perm_b32 v{b}, v{r + 3}, v{r + 2}, {sMSK}")
            out.append(f"v_lshl_or_b32 v{a}, v{b}, 16, v{a}")
            if n == 0:
                out.append(f"v_xor_b32 v{acc}, {sN}, v{a}")
            else:
                out.append(f"v_xor_b32 v{a}, {sN}, v{a}")
                out.append(f"v_or_b32 v{acc}, v{acc}, v{a}")
        out.append(f"v_cmp_eq_u32 vcc, 0, v{acc}")
        return out

    def round4(self, r, t):
        p = self.p
        p(f"v_cvt_pk_bf16_f32 v{t}, v{r}, v{r + 1}")
        p(f"v_cvt_pk_bf16_f32 v{t + 1}, v{r + 2}, v{r + 3}")
        p(f"v_lshlrev_b32 v{r}, 16, v{t}")
        p(f"v_and_b32 v{r + 1}, 0xffff0000, v{t}")
        p(f"v_lshlrev_b32 v{r + 2}, 16, v{t + 1}")
        p(f"v_and_b32 v{r + 3}, 0xffff0000, v{t + 1}")

    def gather896(self, col0, R, with_xcc):
        p = self.p
        p(f"v_min_u32 {vPA}, 223, {vTID}")
        p(f"v_lshlrev_b32 {vPA}, 4, {vPA}")
        for kq in range(4):
            p(f"s_mov_b32 s{66 + kq}, {WS_MODP + kq * 10752 + col0 * 4}")
        loads = [f"buffer_load_dwordx4 {vr(R + 4 * kq, 4)}, {vPA}, {WS}, s{66 + kq} offen sc1" for kq in range(4)]
        self.poll(loads, self.tagcheck([R + 4 * kq for kq in range(4)], (R + 16, R + 17, R + 18)), with_xcc)
        for n in range(16):
            p(f"v_and_b32 v{R + n}, 0xffffff00, v{R + n}")
        for n in range(0, 8, 2):
            p(f"v_pk_add_f32 {vr(R + n, 2)}, {vr(R + n, 2)}, {vr(R + 8 + n, 2)}")
        for n in range(0, 4, 2):
            p(f"v_pk_add_f32 {vr(R + n, 2)}, {vr(R + n, 2)}, {vr(R + 4 + n, 2)}")
        self.round4(R, R + 16)
        p(f"v_cmp_le_u32 vcc, 112, {vTID}")
        p(f"v_cndmask_b32 v{R + 18}, 0, 1.0, vcc")
        for n in range(4):
            p(f"v_add_f32 v{R + n}, v{R + n}, v{R + 18}")
        self.round4(R, R + 16)

    def prologue(self):
        p = self.p
        p("s_cmp_ge_u32 s2, 256")
        p("s_cbranch_scc1 L_END")
        ld = []
        for reg, off in ((24, 72), (40, 64), (32, 96), (4, 0), (8, 8), (12, 16), (16, 32), (20, 48), (28, 80), (36, 40), (38, 56)):
            ld.append(p(f"s_load_dwordx2 s[{reg}:{reg + 1}], s[0:1], {off}"))
        if self.stamps:
            p("v_mov_b32 v255, 0")
            ld.append(p("s_memrealtime s[96:97]"))
            ld.append(p("s_memtime s[98:99]"))
        for reg, size in ((4, 1835008), (8, 1204224), (12, 401408), (16, 1605632), (20, 1605632), (24, 2408448), (28, 1835008), (32, WS_SIZE)):
            p(f"s_mov_b32 s{reg + 2}, {size}")
            p(f"s_mov_b32 s{reg + 3}, 0x20000")
        p(f"v_mov_b32 {vTID}, v0")
        p(f"v_lshrrev_b32 v{vt[0]}, 6, v0")
        p(f"v_and_b32 {vL}, 63, v0")
        p(f"v_readfirstlane_b32 {sW}, v{vt[0]}")
        p(f"s_and_b32 {sRB}, s2, 15")
        p(f"s_lshr_b32 {sJ}, s2, 4")
        heads = [0, 1, 3, 5, 7, 8, 10, 12, 14, 15, 2, 4, 6, 9, 11, 13]
        tab = sum(h << (4 * i) for i, h in enumerate(heads))
        p(f"s_mov_b32 s62, 0x{tab & 0xffffffff:08x}")
        p(f"s_mov_b32 s63, 0x{tab >> 32:08x}")
        p(f"s_lshl_b32 s64, {sJ}, 2")
        p("s_lshr_b64 s[62:63], s[62:63], s64")
        p(f"s_and_b32 {sH}, s62, 15")
        p(f"s_mov_b32 {sMSK}, 0x0c0c0400")
        p(f"s_lshl_b32 {sWB}, {sW}, 12")
        p(f"v_lshlrev_b32 {vL16}, 4, {vL}")
        p(f"s_mov_b32 {sJOB}, s2")
        self.strip_voff(vSB, 5376, (vt[0], vt[1]))
        p(f"s_and_b32 s62, {sJOB}, 3")
        p(f"s_lshr_b32 s63, {sJOB}, 2")
        p("s_mul_i32 s64, s62, 112")
        p(f"s_lshl_b32 s65, {sW}, 5")
        p("s_add_u32 s65, s65, s64")
        p("s_mul_i32 s65, s65, 5376")
        p("s_lshl_b32 s66, s63, 7")
        p("s_add_u32 s65, s65, s66")
        p(f"v_min_u32 v{vt[0]}, 55, {vL}")
        p("s_lshl_b32 s64, s64, 1")
        p(f"v_lshl_add_u32 v{vt[0]}, v{vt[0]}, 2, s64")
        p(f"v_lshrrev_b32 v{vt[1]}, 2, {vL}")
        p(f"v_mul_u32_u24 v{vt[1]}, 896, v{vt[1]}")
        p(f"v_and_b32 v{vWq[1]}, 3, {vL}")
        p(f"v_lshl_add_u32 v{vWq[0]}, v{vWq[1]}, 4, v{vt[1]}")
        p(f"v_add_u32 v{vWq[1]}, {14336 - 1024}, v{vWq[0]}")
        p(f"v_add_u32 v{vWq[2]}, {2 * (14336 - 1024)}, v{vWq[0]}")
        p(f"s_cmp_eq_u32 {sH}, 15")
        p(f"s_cselect_b32 {sSH}, 8, 0")
        p(f"s_lshr_b32 s66, {sRB}, 3")
        p(f"s_lshl_b32 s67, {sH}, 1")
        p("s_add_u32 s66, s66, s67")
        p("s_mul_i32 s67, s66, 37")
        p("s_lshr_b32 s67, s67, 8")
        p("s_mul_i32 s67, s67, 7")
        p(f"s_sub_u32 {sROT}, s66, s67")
        p(f"s_mul_i32 {sCL}, {sRB}, {CLS}")
        p(f"s_add_u32 {sCL}, {sCL}, {WS_CL}")
        p(f"s_mul_i32 {sQ}, {sW}, {QS}")
        p(f"s_add_u32 {sQ}, {sQ}, {sCL}")
        p(f"s_mul_i32 s66, {sH}, 56")
        p(f"s_sub_u32 s66, s66, {sSH}")
        p(f"s_mul_i32 s67, {sW}, {3 * 14336}")
        p("s_add_u32 s66, s66, s67")
        p(f"s_mov_b32 s67, {sROT}")
        for G in range(7):
            p(f"s_mul_i32 {sWOFF[G]}, s67, {12 * 14336}")
            p(f"s_add_u32 {sWOFF[G]}, {sWOFF[G]}, s66")
            p(f"s_lshl_b32 {sHOFF[G]}, s67, 9")
            if G < 6:
                p("s_add_u32 s67, s67, 1")
                p("s_cmp_eq_u32 s67, 7")
                p("s_cselect_b32 s67, 0, s67")
        p(f"s_mul_i32 {sWL}, {sW}, 3072")
        p(f"s_lshr_b32 s66, {sJ}, 2")
        p("s_lshl_b32 s66, s66, 6")
        p(f"s_bfe_u32 s67, {sJ}, 0x10001")
        p("s_add_u32 s66, s66, s67")
        p(f"s_and_b32 s67, {sJ}, 1")
        p("s_lshl_b32 s67, s67, 5")
        p("s_add_u32 s66, s66, s67")
        p(f"s_lshl_b32 s67, {sW}, 3")
        p("s_add_u32 s66, s66, s67")
        p(f"s_and_b32 s67, {sW}, 1")
        p("s_lshl_b32 s67, s67, 3")
        p(f"s_lshr_b32 s68, {sW}, 1")
        p("s_add_u32 s67, s67, s68")
        p(f"s_cmp_eq_u32 {sRB}, 0")
        p("s_cselect_b32 s68, 0, 16")
        p("s_sub_u32 s67, s67, s68")
        p(f"s_cmp_eq_u32 {sJ}, 8")
        p("s_cselect_b32 s66, s67, s66")
        p(f"s_lshl_b32 s67, {sRB}, 7")
        p("s_add_u32 s66, s66, s67")
        p("s_mul_i32 s66, s66, 896")
        p(f"s_getreg_b32 {sXCC}, hwreg(HW_REG_XCC_ID, 0, 3)")
        p.wait(ld)
        if self.stamps:
            p("v_writelane_b32 v255, s96, 60")
            p("v_writelane_b32 v255, s98, 61")
        nonce = p(f"s_load_dword {sN}, s[32:33], 0")
        lab = self.cond(f"s_cmp_lt_u32 {sJOB}, 168", 0)
        self.c_ld = p(f"global_load_dword v32, v{vt[0]}, s[40:41]")
        p(f"s_add_u32 m0, {sWB}, {L_MS}")
        self.ms_ld = [p(f"buffer_load_dwordx4 v{vSB[e]}, {WM}, s65 offen offset:{e * 1024} lds") for e in range(4)]
        self.endcond(lab)
        lab = self.cond(f"s_cmp_lt_u32 {sJ}, 9", 0)
        p(f"s_add_u32 m0, {sWB}, {L_XS}")
        self.xs_ld = []
        for r in range(4):
            self.xs_ld.append(p(f"buffer_load_dwordx4 {vL16}, {X}, s66 offen offset:{r * 1024} lds"))
            if r < 3: p("s_add_u32 s66, s66, 768")
        self.endcond(lab)
        p("s_getpc_b64 s[62:63]")
        p("L_PC:")
        p(f"v_and_b32 v{vt[1]}, 15, {vTID}")
        p(f"s_lshr_b32 s64, s2, 3")
        p(f"v_lshl_add_u32 v{vt[1]}, s64, 4, v{vt[1]}")
        p(f"v_lshlrev_b32 v{vt[1]}, 7, v{vt[1]}")
        p(f"v_min_u32 v{vt[1]}, L_END-L_PC, v{vt[1]}")
        p(f"global_load_dword v254, v{vt[1]}, s[62:63]")
        p(self.wq_group(0))
        p(self.wq_group(1))
        a, b, c = vt
        p(f"v_lshrrev_b32 v{a}, 4, {vL}")
        p(f"v_bfe_u32 v{b}, {vL}, 2, 2")
        p(f"v_and_b32 v{c}, 3, {vL}")
        p(f"v_lshlrev_b32 v{c}, 3, v{c}")
        p(f"v_lshl_add_u32 v{c}, v{b}, 7, v{c}")
        p(f"v_and_b32 v{b}, 2, v{b}")
        p(f"v_and_b32 v34, 1, v{a}")
        p(f"v_lshrrev_b32 v35, 1, v{a}")
        p(f"v_lshl_add_u32 v36, v35, 11, v{c}")
        p(f"v_lshl_add_u32 v36, v34, 9, v36")
        p(f"v_or_b32 v37, v{b}, v34")
        for nt in range(4):
            p(f"v_xor_b32 v38, {nt}, v37")
            p(f"v_lshl_add_u32 v{vT16[nt]}, v38, 5, v36")
        p(f"v_lshl_add_u32 v36, v35, 9, v{c}")
        p(f"v_or_b32 v37, v{b}, v35")
        p(f"v_xor_b32 v37, v37, v34")
        for B in range(2):
            p(f"v_xor_b32 v38, {2 * B}, v37")
            p(f"v_lshl_add_u32 v{vT32[B]}, v38, 5, v36")
        p(f"v_bfe_u32 v{b}, {vL}, 2, 2")
        p(f"v_lshl_add_u32 v36, v35, 3, v{b}")
        p(f"v_mul_u32_u24 v36, 192, v36")
        p(f"v_lshl_add_u32 v36, v34, 5, v36")
        p(f"v_and_b32 v37, 3, {vL}")
        p(f"v_lshl_add_u32 v36, v37, 3, v36")
        p(f"v_add_u32 v{vTq[0]}, {sSH}, v36")
        p(f"v_add_u32 v{vTq[1]}, 43008, v{vTq[0]}")
        p(f"v_and_b32 v36, 15, {vL}")
        p(f"v_lshlrev_b32 v36, 4, v36")
        p(f"v_lshl_add_u32 {vF16}, v{a}, 9, v36")
        p(f"v_lshrrev_b32 v36, 3, {vL}")
        p(f"v_mul_u32_u24 v36, 1792, v36")
        p(f"v_and_b32 v37, 7, {vL}")
        p(f"v_lshl_add_u32 {vROW}, v37, 4, v36")
        p(f"s_and_b32 {sMH}, {sJ}, 1")
        p(f"s_lshr_b32 {sNT}, {sJ}, 1")
        p(f"s_cmp_lt_u32 {sJ}, 14")
        p("s_cselect_b32 s56, s12, s16")
        p("s_cselect_b32 s57, s13, s17")
        p("s_cselect_b32 s58, s14, s18")
        p("s_mov_b32 s59, 0x20000")
        p(f"s_movk_i32 {sPIT}, 896")
        p(f"s_cselect_b32 {sPIT}, {sPIT}, 3584")
        self.strip_voff(vSA, sPIT, (34, 35))
        p(f"s_lshl_b32 s62, {sMH}, 1")
        p(f"s_lshr_b32 s63, {sW}, 1")
        p("s_add_u32 s62, s62, s63")
        p(f"s_mul_i32 {sQ2}, s62, {QS}")
        p(f"s_add_u32 {sQ2}, {sQ2}, {sCL}")
        p(f"s_lshl_b32 s62, {sRB}, 7")
        p(f"s_lshl_b32 s64, {sMH}, 6")
        p("s_add_u32 s62, s62, s64")
        p("s_add_u32 s62, s62, s63")
        p(f"s_and_b32 s64, {sW}, 1")
        p("s_lshl_b32 s64, s64, 5")
        p("s_add_u32 s62, s62, s64")
        p("s_mul_i32 s62, s62, 896")
        p(f"s_lshl_b32 s64, {sNT}, 7")
        p(f"s_add_u32 {sXROW}, s62, s64")
        p(f"v_and_b32 v{c}, 15, {vL}")
        p(f"s_lshl_b32 s62, {sRB}, 7")
        p(f"s_add_u32 s62, s62, {WS_XCC}")
        p(f"v_lshl_add_u32 v{c}, v{c}, 2, s62")
        p("v_mov_b32 v34, 0")
        p("v_mov_b32 v35, 0")
        p(f"v_lshlrev_b32 v36, 3, {vL}")
        p(f"v_add_u32 v36, {L_WO + 57344}, v36")
        p("ds_write_b64 v36, v[34:35]")
        p.wait(nonce)
        p(f"s_add_u32 {sN}, {sN}, 0x01010101")
        p(f"v_mov_b32 {vN}, {sN}")
        p(f"s_andn2_b32 s63, {sN}, 7")
        p(f"s_or_b32 {sXCC}, {sXCC}, s63")
        p(f"s_lshl_b32 s63, {sJ}, 2")
        p("s_add_u32 s62, s62, s63")
        lab = self.cond(f"s_cmp_eq_u32 {sW}, 0", 0)
        p(f"v_mov_b32 v34, {sXCC}")
        p(f"buffer_store_dword v34, off, {WS}, s62 sc1")
        self.endcond(lab)
        self.stamp("prolog")

    def mod_job(self):
        p = self.p
        lab = self.cond(f"s_cmp_lt_u32 {sJOB}, 168", 0)
        p.wait(self.c_ld)
        p("v_lshlrev_b32 v34, 16, v32")
        p("v_and_b32 v35, 0xffff0000, v32")
        for r in (34, 35):
            p(f"v_mul_f32 v{r + 2}, {fb(-math.log2(math.e))}, v{r}")
        for r in (34, 35):
            p(f"v_exp_f32 v{r + 2}, v{r + 2}")
        for r in (34, 35):
            p(f"v_add_f32 v{r + 2}, 1.0, v{r + 2}")
        for r in (34, 35):
            p(f"v_rcp_f32 v{r + 2}, v{r + 2}")
        p(f"v_cmp_gt_u32 vcc, 56, {vL}")
        for r in (34, 35):
            p(f"v_mul_f32 v{r}, v{r}, v{r + 2}")
        p("v_cvt_pk_bf16_f32 v34, v34, v35")
        p("v_cndmask_b32 v34, 0, v34, vcc")
        p(f"v_lshlrev_b32 v35, 2, {vL}")
        p(f"v_add_u32 v35, {L_SC}, v35")
        wr = p("ds_write_b32 v35, v34")
        p(f"s_lshl_b32 s62, {sW}, 5")
        p(f"v_xor_b32 v36, s62, v{vT16[0]}")
        p(f"v_add_u32 v36, {L_MS}, v36")
        p(f"v_lshrrev_b32 v37, 5, {vL}")
        p(f"v_bfe_u32 v38, {vL}, 4, 1")
        p("v_lshlrev_b32 v37, 5, v37")
        p("v_lshl_add_u32 v37, v38, 3, v37")
        p(f"v_add_u32 v37, {L_SC}, v37")
        p(f"s_and_b32 s62, {sJOB}, 3")
        p("s_mul_i32 s62, s62, 10752")
        p(f"s_lshr_b32 s63, {sJOB}, 2")
        p("s_lshl_b32 s63, s63, 8")
        p("s_add_u32 s62, s62, s63")
        p(f"s_lshl_b32 s63, {sW}, 6")
        p("s_add_u32 s62, s62, s63")
        p(f"s_add_u32 s62, s62, {WS_MODP}")
        p(f"v_and_b32 v38, 0x30, {vL}")
        for r in range(4):
            p(f"v_bfe_u32 v{76 + r}, {vN}, {8 * r}, 8")
        p("s_mov_b32 s63, 0xffffff00")
        p.wait(self.ms_ld, wr)
        p("s_barrier")
        rd = []
        for s in range(4):
            for e in range(2):
                rd.append(p(f"ds_read_b64_tr_b16 {vr(40 + 4 * s + 2 * e, 2)}, v36 offset:{s * 4096 + e * 1024}"))
                rd.append(p(f"ds_read_b64 {vr(56 + 4 * s + 2 * e, 2)}, v37 offset:{s * 64 + e * 16}"))
        for s in range(4):
            p.wait(rd[4 * s + 3])
            p(f"v_mfma_f32_16x16x32_bf16 v[72:75], {vr(40 + 4 * s, 4)}, {vr(56 + 4 * s, 4)}, {'0' if s == 0 else 'v[72:75]'}")
        for r in range(4):
            p(f"v_and_or_b32 v{72 + r}, v{72 + r}, s63, v{76 + r}")
        p("s_mov_b32 s64, 0x00010001")
        p("s_mov_b32 s65, 0x00010001")
        p("s_mov_b64 exec, s[64:65]")
        p(f"buffer_store_dwordx4 v[72:75], v38, {WS}, s62 offen sc1")
        p("s_mov_b64 exec, -1")
        self.endcond(lab)
        self.stamp("modjob")

    def red_rows4(self, r, t):
        p = self.p
        p(f"v_add_f32_dpp v{r}, v{r}, v{r} row_ror:4 row_mask:0xf bank_mask:0xf")
        p(f"v_add_f32_dpp v{r}, v{r}, v{r} row_ror:8 row_mask:0xf bank_mask:0xf")
        p(f"v_mov_b32 v{t}, v{r}")
        p(f"v_permlane16_swap_b32 v{r}, v{t}")
        p(f"v_add_f32 v{r}, v{r}, v{t}")
        p(f"v_mov_b32 v{t}, v{r}")
        p(f"v_permlane32_swap_b32 v{r}, v{t}")
        p(f"v_add_f32 v{r}, v{r}, v{t}")

    def h_job(self):
        p = self.p
        els, fin = p.label("HE"), p.label("HF")
        p(f"s_cmp_lt_u32 {sJ}, 9")
        p(f"s_cbranch_scc0 {els}")
        p.push()
        Z, RAW, S = 64, 40, 36
        p(f"v_and_b32 v32, 3, {vL}")
        p(f"v_lshrrev_b32 v33, 2, {vL}")
        p("v_lshlrev_b32 v34, 10, v32")
        p("v_lshl_add_u32 v34, v33, 4, v34")
        p(f"s_add_u32 s62, {sWB}, {L_XS}")
        p("v_add_u32 v34, s62, v34")
        p.wait(self.xs_ld)
        rd = [p(f"ds_read_b128 {vr(RAW + 4 * s, 4)}, v34 offset:{s * 224}") for s in range(4)]
        p(f"v_cmp_gt_u32 s[64:65], 56, {vL}")
        for s in range(4):
            p.wait(rd[s])
            for n in range(4):
                p(f"v_lshlrev_b32 v{Z + 8 * s + 2 * n}, 16, v{RAW + 4 * s + n}")
                p(f"v_and_b32 v{Z + 8 * s + 2 * n + 1}, 0xffff0000, v{RAW + 4 * s + n}")
        p(f"v_pk_add_f32 {vr(S, 2)}, {vr(Z, 2)}, {vr(Z + 2, 2)}")
        for n in range(4, 32, 2):
            p(f"v_pk_add_f32 {vr(S, 2)}, {vr(S, 2)}, {vr(Z + n, 2)}")
        p(f"v_add_f32 v{S}, v{S}, v{S + 1}")
        p(f"v_cndmask_b32 v{S}, 0, v{S}, s[64:65]")
        self.red_rows4(S, S + 1)
        p(f"v_mul_f32 v{S}, {fb(1.0 / 448)}, v{S}")
        for n in range(0, 32, 2):
            p(f"v_pk_add_f32 {vr(Z + n, 2)}, {vr(Z + n, 2)}, {vr(S, 2)} op_sel_hi:[1,0] neg_lo:[0,1] neg_hi:[0,1]")
        p(f"v_pk_mul_f32 {vr(S, 2)}, {vr(Z, 2)}, {vr(Z, 2)}")
        for n in range(2, 32, 2):
            p(f"v_pk_fma_f32 {vr(S, 2)}, {vr(Z + n, 2)}, {vr(Z + n, 2)}, {vr(S, 2)}")
        p(f"v_add_f32 v{S}, v{S}, v{S + 1}")
        p(f"v_cndmask_b32 v{S}, 0, v{S}, s[64:65]")
        self.red_rows4(S, S + 1)
        p(f"v_mov_b32 v{S + 1}, {fb(1e-5)}")
        p(f"v_fmac_f32 v{S + 1}, {fb(1.0 / 448)}, v{S}")
        p(f"v_rsq_f32 v{S}, v{S + 1}")
        for n in range(0, 32, 2):
            p(f"v_pk_mul_f32 {vr(Z + n, 2)}, {vr(Z + n, 2)}, {vr(S, 2)} op_sel_hi:[1,0]")
        p(f"v_lshlrev_b32 v34, 5, v33")
        p(f"v_add_u32 v34, {L_MT}, v34")
        p(f"v_lshlrev_b32 v35, 4, {vTID}")
        p(f"v_add_u32 v35, {L_MT}, v35")
        self.stamp("xstats")
        self.gather896(0, RAW, True)
        self.stamp("modpoll")
        wr = p(f"ds_write_b128 v35, {vr(RAW, 4)}")
        p(f"s_lshr_b32 s62, {sJ}, 1")
        p(f"s_mul_i32 s62, s62, {QS}")
        p(f"s_and_b32 s63, {sJ}, 1")
        p(f"s_lshl_b32 s63, s63, 2")
        p(f"s_add_u32 s63, s63, {sW}")
        p("s_mul_i32 s63, s63, 3584")
        p("s_add_u32 s62, s62, s63")
        p(f"s_cmp_eq_u32 {sJ}, 8")
        p(f"s_cselect_b32 s63, 0, {Q_H}")
        p("s_add_u32 s62, s62, s63")
        p(f"s_add_u32 s62, s62, {sCL}")
        p(f"s_lshl_b32 s63, {sRB}, 8")
        p(f"s_lshl_b32 s64, {sJ}, 4")
        p("s_add_u32 s63, s63, s64")
        p(f"s_lshl_b32 s64, {sW}, 2")
        p("s_add_u32 s63, s63, s64")
        p(f"s_add_u32 s63, s63, {WS_FH}")
        p.wait(wr)
        p("s_barrier")
        M = 96
        rd = []
        for s in range(4):
            for e in range(2):
                rd.append(p(f"ds_read_b128 {vr(M + 16 * s + 4 * e, 4)}, v34 offset:{s * 448 + e * 16}"))
                rd.append(p(f"ds_read_b128 {vr(M + 16 * s + 8 + 4 * e, 4)}, v34 offset:{1792 + s * 448 + e * 16}"))
        p("s_mov_b32 s64, -1")
        p("s_mov_b32 s65, 0x00ffffff")
        p("s_mov_b64 exec, s[64:65]")
        st = []
        for s in range(4):
            p.wait(rd[4 * s + 3])
            for n in range(0, 8, 2):
                p(f"v_pk_fma_f32 {vr(Z + 8 * s + n, 2)}, {vr(Z + 8 * s + n, 2)}, {vr(M + 16 * s + 8 + n, 2)}, {vr(M + 16 * s + n, 2)}")
            for n in range(4):
                p(f"v_cvt_pk_bf16_f32 v{RAW + 4 * s + n}, v{Z + 8 * s + 2 * n}, v{Z + 8 * s + 2 * n + 1}")
            st.append(p(f"buffer_store_dwordx4 {vr(RAW + 4 * s, 4)}, {vL16}, {WS}, s62 offen offset:{s * 896}"))
        p("s_mov_b64 exec, -1")
        p(self.wq_group(4))
        self.publish(st, "s63")
        p(f"s_branch {fin}")
        p.pop()
        p(els + ":")
        p.push()
        p(self.wq_group(4))
        p.pop()
        p(fin + ":")
        self.stamp("hpub")

    def vec_gather(self):
        p = self.p
        lab = self.cond(f"s_cmp_lt_u32 {sJ}, 14", 0)
        R = 40
        p(f"v_lshrrev_b32 v32, 4, {vL}")
        p("v_mul_u32_u24 v32, 10752, v32")
        p(f"v_and_b32 v33, 15, {vL}")
        p(f"v_lshl_add_u32 {vPA}, v33, 4, v32")
        p(f"s_mul_i32 s66, {sW}, 1792")
        p(f"s_lshl_b32 s67, {sNT}, 8")
        p("s_add_u32 s66, s66, s67")
        p(f"s_add_u32 s66, s66, {WS_MODP + 896 * 4}")
        p(f"s_lshl_b32 s67, {sNT}, 7")
        p("v_lshl_add_u32 v32, v33, 3, s67")
        b2 = p("global_load_dwordx2 v[48:49], v32, s[38:39]")
        self.poll([f"buffer_load_dwordx4 {vr(R, 4)}, {vPA}, {WS}, s66 offen sc1"], self.tagcheck([R], (44, 45, 46)))
        for n in range(4):
            p(f"v_and_b32 v{R + n}, 0xffffff00, v{R + n}")
        for sw in ("32", "16"):
            for n in range(4):
                p(f"v_mov_b32 v{R + 4 + n}, v{R + n}")
            for n in range(4):
                p(f"v_permlane{sw}_swap_b32 v{R + n}, v{R + 4 + n}")
            for n in range(4):
                p(f"v_add_f32 v{R + n}, v{R + n}, v{R + 4 + n}")
        self.round4(R, 44)
        p(f"s_cmp_eq_u32 {sW}, 2")
        p("s_cselect_b32 s66, 1.0, 0")
        for n in range(4):
            p(f"v_add_f32 v{R + n}, s66, v{R + n}")
        self.round4(R, 44)
        p(f"s_lshl_b32 s66, {sW}, 8")
        p(f"s_add_u32 s66, s66, {L_VEC}")
        p("v_lshl_add_u32 v32, v33, 4, s66")
        p(f"ds_write_b128 v32, {vr(R, 4)}")
        p("v_lshlrev_b32 v44, 16, v48")
        p("v_and_b32 v45, 0xffff0000, v48")
        p("v_lshlrev_b32 v46, 16, v49")
        p("v_and_b32 v47, 0xffff0000, v49")
        p("v_lshlrev_b32 v32, 4, v33")
        p(f"v_add_u32 v32, {L_VEC + 1024}, v32")
        p("ds_write_b128 v32, v[44:47]")
        p.waitall(vm=False, lk=True)
        self.endcond(lab)

    def strip_dma(self, srd, voff, soff, pitch, n0, n1, ldsbase_s, ldsimm):
        out = []
        for n in range(n0, n1):
            if n % 4 == 0 or n == n0:
                out.append(I(f"s_add_u32 m0, {ldsbase_s}, {ldsimm + (n // 4) * 4096}"))
            out.append(I(f"buffer_load_dwordx4 v{voff[n % 4]}, {srd}, {soff} offen offset:{(n % 4) * 1024} lds"))
            if n % 4 == 3:
                out.append(I(f"s_add_u32 {soff}, {soff}, {pitch}"))
        return out

    def phase1(self):
        p = self.p
        HF, HH, AQ, AK, AV, AH, WB = 32, 144, 160, 176, 192, 208, 224
        vH, vHH, vTH, vHX = "v248", "v249", "v250", "v251"
        p(f"v_and_b32 v32, 15, {vL}")
        p("v_min_u32 v32, 11, v32")
        p(f"s_lshl_b32 s62, {sW}, 3")
        p("v_add_u32 v33, s62, v32")
        p("v_add_u32 v34, 24, v32")
        p("v_cmp_gt_u32 vcc, 8, v32")
        p("v_cndmask_b32 v33, v34, v33, vcc")
        p(f"s_lshl_b32 s62, {sRB}, 8")
        p(f"s_add_u32 s62, s62, {WS_FH}")
        p(f"v_lshl_add_u32 {vPA}, v33, 2, s62")
        p(f"v_bfe_u32 v32, {vL}, 2, 3")
        p("v_mul_u32_u24 v32, 3584, v32")
        p(f"v_lshrrev_b32 v33, 5, {vL}")
        p("v_lshl_add_u32 v32, v33, 6, v32")
        p(f"v_and_b32 v34, 3, {vL}")
        p("v_lshl_add_u32 v32, v34, 4, v32")
        p(f"s_add_u32 s62, {sQ}, {Q_H}")
        p(f"v_add_u32 {vH}, s62, v32")
        p(f"v_bfe_u32 v32, {vL}, 2, 2")
        p("v_mul_u32_u24 v35, 3584, v32")
        p(f"v_lshrrev_b32 v33, 4, {vL}")
        p("v_lshl_add_u32 v35, v33, 6, v35")
        p("v_lshl_add_u32 v35, v34, 4, v35")
        p(f"s_add_u32 s62, {sCL}, {CL_HALO}")
        p(f"v_add_u32 {vHH}, s62, v35")
        p("v_lshl_add_u32 v35, v33, 3, v32")
        p("v_mul_u32_u24 v35, 192, v35")
        p("v_lshl_add_u32 v35, v34, 3, v35")
        p(f"s_mul_i32 s62, {sW}, 24576")
        p(f"s_add_u32 s62, s62, {sSH}")
        p(f"v_add_u32 {vTH}, s62, v35")
        p(f"s_cmp_eq_u32 {sW}, 1")
        p(f"s_cselect_b32 s66, {sHOFF[2]}, {sHOFF[0]}")
        p(f"s_cselect_b32 s67, {sHOFF[3]}, {sHOFF[1]}")
        p(f"s_cmp_eq_u32 {sW}, 2")
        p(f"s_cselect_b32 s66, {sHOFF[4]}, s66")
        p(f"s_cselect_b32 s67, {sHOFF[5]}, s67")
        p(f"s_cmp_eq_u32 {sW}, 3")
        p(f"s_cselect_b32 s66, {sHOFF[6]}, s66")
        p(f"s_cselect_b32 s67, {WS_SIZE}, s67")
        p("s_cselect_b32 s68, 0, 12288")
        p(f"v_add_u32 v252, s68, {vTH}")
        p(f"v_and_b32 v32, 15, {vL}")
        p("v_lshrrev_b32 v35, 3, v32")
        p("v_lshlrev_b32 v35, 11, v35")
        p("v_and_b32 v36, 7, v32")
        p("v_lshl_add_u32 v35, v36, 4, v35")
        p("v_and_b32 v36, 1, v33")
        p("v_lshl_add_u32 v35, v36, 9, v35")
        p("v_lshrrev_b32 v37, 1, v33")
        p("v_lshl_add_u32 v35, v37, 3, v35")
        p(f"s_and_b32 s62, {sW}, 1")
        p("s_lshl_b32 s63, s62, 10")
        p(f"s_add_u32 s63, s63, {L_KX + 24 * 16}")
        p("v_add_u32 v35, s63, v35")
        p("v_lshlrev_b32 v37, 9, v37")
        p("v_lshl_add_u32 v37, v36, 8, v37")
        p("v_lshl_add_u32 v37, v32, 3, v37")
        p("s_lshl_b32 s63, s62, 7")
        p(f"s_add_u32 s63, s63, {L_VX}")
        p("v_add_u32 v37, s63, v37")
        p(f"s_cmp_lt_u32 {sW}, 2")
        p("s_cselect_b64 vcc, -1, 0")
        p(f"v_cndmask_b32 {vHX}, v37, v35, vcc")
        p(f"s_sub_u32 s62, s2, 224")
        p("s_min_u32 s62, s62, 27")
        p(f"s_cmp_lt_u32 {sJ}, 14")
        p(f"s_cselect_b32 s62, {sNT}, s62")
        p("s_lshl_b32 s62, s62, 7")
        p(f"s_mul_i32 s63, {sPIT}, 112")
        p(f"s_mul_i32 s63, s63, {sW}")
        p(f"s_add_u32 {sJOB}, s62, s63")
        p(f"s_lshl_b32 {sPIT}, {sPIT}, 5")
        p(f"s_mul_i32 s68, {sW}, 14336")
        self.strip_voff(vSB, 3584, (32, 33))
        p(f"s_lshr_b32 {sU[0]}, {sWB}, 1")
        p(f"s_add_u32 {sU[1]}, {sXROW}, {14336 - 1024}")
        p(f"s_mov_b32 {sU[2]}, {fb(-1e30)}")
        p(f"s_lshr_b32 s62, {sW}, 1")
        p(f"s_or_b32 s62, s62, {sRB}")
        p("s_cmp_eq_u32 s62, 0")
        p(f"s_cselect_b32 {sU[3]}, 0, 8")
        p(f"v_and_b32 v253, 31, {vL}")
        p(f"v_lshrrev_b32 v32, 5, {vL}")
        p("v_lshlrev_b32 v32, 2, v32")
        p("v_sub_u32 v253, v253, v32")
        self.stamp("prepoll")
        self.poll_flags(with_xcc=True)
        self.stamp("hpoll")

        hld = [None] * 28
        def hload(G):
            o = []
            for e in range(4):
                x = I(f"buffer_load_dwordx4 {vr(HF + 4 * (4 * G + e), 4)}, {vH}, {WS}, {sHOFF[G]} offen offset:{e * 128} sc1")
                hld[4 * G + e] = x; o.append(x)
            return o
        hh = [I(f"buffer_load_dwordx4 {vr(HH + 4 * s, 4)}, {vHH}, {WS}, s{66 + (s >> 1)} offen offset:{(s & 1) * 256} sc1") for s in range(4)]
        w5, w6 = self.wq_group(5), self.wq_group(6)
        wo = self.strip_dma(STR, vSA, sJOB, sPIT, 0, 14, "s68", L_WO)
        xt = [I(f"s_add_u32 m0, {sU[0]}, {L_XT}"),
              I(f"buffer_load_dwordx4 {vROW}, {X}, {sXROW} offen lds"),
              I(f"buffer_load_dwordx4 {vROW}, {X}, {sU[1]} offen offset:1024 lds")]
        self.wo_ld = [x for x in wo + xt if x.tok]

        wrd = {}
        def wread(s):
            o = []
            base = vTq[0] if s < 14 else vTq[1]
            for S in range(3):
                for e in range(2):
                    x = I(f"ds_read_b64_tr_b16 {vr(WB + 12 * (s & 1) + 4 * S + 2 * e, 2)}, v{base} offset:{(s % 14) * 3072 + e * 768 + S * 64}")
                    wrd[(s, S)] = x; o.append(x)
            return o
        p(hload(0)); p(hload(1))
        p("s_barrier")
        p(wread(0))
        p(w5); p(hload(2))
        vq = hload(3) + w6 + hh + hload(4) + hload(5) + hload(6) + wo + xt
        SC, SP = HF, HF + 16
        bias = []
        for n in range(16):
            off = 8 * (n >> 2) + (n & 3)
            bias += [I(f"v_subrev_u32 v254, {off}, v253"), I("v_cmp_le_u32 vcc, 8, v254"), I(f"v_mov_b32 v{SC + n}, {sU[2]}"), I(f"v_mov_b32 v{SP + n}, {sU[2]}"),
                     I(f"v_cndmask_b32 v{SC + n}, 0, v{SC + n}, vcc")]
        for r in range(4):
            bias += [I(f"v_add_u32 v254, {8 - r}, v253"), I(f"v_cmp_le_u32 vcc, {sU[3]}, v254"),
                     I(f"v_cndmask_b32 v{SP + 12 + r}, 0, v{SP + 12 + r}, vcc")]

        def step(s, fill):
            nxt = wread(s + 1) if s + 1 < 28 else []
            b = WB + 12 * (s & 1)
            h = vr(HF + 4 * s, 4)
            mm = [f"v_mfma_f32_32x32x16_bf16 {vr(AQ, 16)}, {vr(b, 4)}, {h}, {'0' if s == 0 else vr(AQ, 16)}",
                  f"v_mfma_f32_32x32x16_bf16 {vr(AK, 16)}, {vr(b + 4, 4)}, {h}, {'0' if s == 0 else vr(AK, 16)}",
                  f"v_mfma_f32_32x32x16_bf16 {vr(AV, 16)}, {h}, {vr(b + 8, 4)}, {'0' if s == 0 else vr(AV, 16)}"]
            for S in range(3):
                p(nxt[2 * S:2 * S + 2])
                p.wait(wrd[(s, S)], hld[s] if S == 0 else None)
                p(mm[S])
                for q, n in fill:
                    for _ in range(n if isinstance(n, int) else n[S]):
                        if q: p(q.pop(0))

        for s in range(20):
            fill = [(vq, (1, 1, 0))]
            if s >= 8: fill.append((bias, 3))
            if s == 19:
                p.wait([x for x in w5 + w6 if x.tok])
                p("s_barrier")
            step(s, fill)
        assert not bias
        HB = HF + 32
        hrd = {}
        def hread(s):
            o = []
            base = vTH if s < 2 else "v252"
            for c in range(4):
                for e in range(2):
                    x = I(f"ds_read_b64_tr_b16 {vr(HB + 16 * (s & 1) + 4 * c + 2 * e, 2)}, {base} offset:{(s & 1) * 6144 + e * 768 + 64 + c * 32}")
                    hrd[(s, c)] = x; o.append(x)
            return o
        p(hread(0))
        for s in range(4):
            nxt = hread(s + 1) if s < 3 else []
            for c in range(4):
                p(nxt[2 * c:2 * c + 2])
                p.wait(hrd[(s, c)], hh[s])
                w_, h_ = vr(HB + 16 * (s & 1) + 4 * c, 4), vr(HH + 4 * s, 4)
                a_, b_ = (w_, h_) if c < 2 else (h_, w_)
                p(f"v_mfma_f32_16x16x32_bf16 {vr(AH + 4 * c, 4)}, {a_}, {b_}, {'0' if s == 0 else vr(AH + 4 * c, 4)}")
        step(20, [(vq, (1, 1, 0))])
        p("s_barrier")
        p(f"s_lshr_b32 s62, {sWB}, 2")
        p(f"v_add_u32 v253, s62, {vL16}")
        p(f"v_add_u32 v254, {sWB}, {vL16}")
        hw = [I(f"ds_write_b128 v253, {vr(AH + 4 * c, 4)} offset:{L_HP + c * 4096}") for c in range(4)]
        step(21, [(vq, (1, 1, 0)), (list(hw), (2, 1, 1))])
        step(22, [(vq, (1, 1, 0))])
        p.wait(hw)
        p("s_barrier")
        hr = [I(f"ds_read_b128 {vr(AH + 4 * c, 4)}, v254 offset:{L_HP + c * 1024}") for c in range(4)]
        step(23, [(vq, (1, 1, 0)), (list(hr), (2, 1, 1))])
        hs = [W(hr)]
        for n in range(8): hs.append(I(f"v_add_f32 v{AH + n}, v{AH + n}, v{AH + 8 + n}"))
        for n in range(4): hs.append(I(f"v_add_f32 v{AH + n}, v{AH + n}, v{AH + 4 + n}"))
        hs += [I(f"v_cvt_pk_bf16_f32 v{AH + 4}, v{AH}, v{AH + 1}"), I(f"v_cvt_pk_bf16_f32 v{AH + 5}, v{AH + 2}, v{AH + 3}"),
               I(f"ds_write_b64 {vHX}, {vr(AH + 4, 2)}")]
        QF, KF, VF, KP, VP, PF, PP = 64, 72, 80, 88, 96, 100, 108
        vMK, vKA, vVA = "v112", "v113", "v114"
        hs += [I(f"v_mov_b32 v{VP + 2}, 0"), I(f"v_mov_b32 v{VP + 3}, 0"), I(f"v_mov_b32 v{PP + 2}, 0"), I(f"v_mov_b32 v{PP + 3}, 0"),
               I(f"v_cmp_gt_u32 vcc, 32, {vL}"), I(f"s_lshr_b32 s62, {sWB}, 1"), I(f"s_lshr_b32 s63, {sWB}, 3"),
               I(f"v_cndmask_b32 {vMK}, 0, -1, vcc"),
               I(f"v_add_u32 {vKA}, s62, {vL16}"), I(f"v_lshl_add_u32 {vVA}, {vL}, 3, s63"),
               I(f"v_and_b32 v253, 31, {vL}"), I("v_cmp_eq_u32 s[64:65], 28, v253"), I("v_mov_b32 v254, 0x3f803f80"),
               I(f"s_lshl_b32 s66, {sH}, 11"), I(f"s_add_u32 s66, s66, {sQ}"), I(f"s_add_u32 s66, s66, {Q_O}"),
               I(f"s_lshl_b32 s67, {sRB}, 9"), I(f"s_lshl_b32 s63, {sW}, 7"), I("s_add_u32 s67, s67, s63"),
               I(f"s_lshl_b32 s63, {sJ}, 2"), I("s_add_u32 s67, s67, s63"), I(f"s_add_u32 s67, s67, {WS_FO}")]
        for s in range(24, 28):
            step(s, [(vq, (1, 1, 0)), (hs, 4)])
        p(vq); p(hs)
        self.stamp("gemm1")
        for n in range(8): p(f"v_cvt_pk_bf16_f32 v{QF + n}, v{AQ + 2 * n}, v{AQ + 2 * n + 1}")
        for n in range(8): p(f"v_cvt_pk_bf16_f32 v{KF + n}, v{AK + 2 * n}, v{AK + 2 * n + 1}")
        for n in (6, 7): p(f"v_and_b32 v{QF + n}, {vMK}, v{QF + n}")
        wr = [p(f"ds_write_b128 {vKA}, {vr(KF + 4 * f, 4)} offset:{L_KX + 4096 + f * 1024}") for f in range(2)]
        for n in (6, 7): p(f"v_cvt_pk_bf16_f32 v{VF + n}, v{AV + 2 * n}, v{AV + 2 * n + 1}")
        wr.append(p(f"ds_write_b64 {vVA}, {vr(VF + 6, 2)} offset:{L_VX + 1024}"))
        p(f"v_mfma_f32_32x32x16_bf16 {vr(SC, 16)}, {vr(KF, 4)}, {vr(QF, 4)}, {vr(SC, 16)}")
        p(f"v_mfma_f32_32x32x16_bf16 {vr(SC, 16)}, {vr(KF + 4, 4)}, {vr(QF + 4, 4)}, {vr(SC, 16)}")
        p.wait(wr)
        p("s_barrier")
        rk = [p(f"ds_read_b128 {vr(KP + 4 * f, 4)}, {vKA} offset:{L_KX + f * 1024}") for f in range(2)]
        rv = p(f"ds_read_b64 {vr(VP, 2)}, {vVA} offset:{L_VX}")
        for n in range(6): p(f"v_cvt_pk_bf16_f32 v{VF + n}, v{AV + 2 * n}, v{AV + 2 * n + 1}")
        for n in range(8): p(f"v_cndmask_b32 v{VF + n}, v{VF + n}, v254, s[64:65]")
        p.wait(rk[0])
        p(f"v_mfma_f32_32x32x16_bf16 {vr(SP, 16)}, {vr(KP, 4)}, {vr(QF, 4)}, {vr(SP, 16)}")
        p.wait(rk[1])
        p(f"v_mfma_f32_32x32x16_bf16 {vr(SP, 16)}, {vr(KP + 4, 4)}, {vr(QF + 4, 4)}, {vr(SP, 16)}")
        m, t = 116, 117
        p(f"v_max3_f32 v{m}, v{SC}, v{SC + 1}, v{SC + 2}")
        for n in range(3, 15, 2): p(f"v_max3_f32 v{m}, v{m}, v{SC + n}, v{SC + n + 1}")
        p.wait(rv)
        for n in range(2): p(f"v_cndmask_b32 v{VP + n}, v{VP + n}, v254, s[64:65]")
        p(f"v_max3_f32 v{m}, v{m}, v{SC + 15}, v{SP + 12}")
        p(f"v_max3_f32 v{m}, v{m}, v{SP + 13}, v{SP + 14}")
        p(f"v_max_f32 v{m}, v{m}, v{SP + 15}")
        p(f"v_mov_b32 v{t}, v{m}")
        cs = 28 ** -0.5 * math.log2(math.e)
        p(f"s_mov_b32 s62, {fb(cs)}")
        p(f"s_mov_b32 s63, {fb(cs)}")
        p(f"v_permlane32_swap_b32 v{m}, v{t}")
        p(f"v_max_f32 v{m}, v{m}, v{t}")
        p(f"v_mul_f32 v{m}, {fb(-cs)}, v{m}")
        rs = [SC + n for n in range(0, 16, 2)] + [SP + 12, SP + 14]
        for r in rs: p(f"v_pk_fma_f32 {vr(r, 2)}, {vr(r, 2)}, s[62:63], {vr(m, 2)} op_sel_hi:[1,1,0]")
        for n, r in enumerate(rs):
            p(f"v_exp_f32 v{r}, v{r}")
            p(f"v_exp_f32 v{r + 1}, v{r + 1}")
            if n > 0: p(f"v_cvt_pk_bf16_f32 v{PF + n - 1}, v{rs[n - 1]}, v{rs[n - 1] + 1}")
            if n == 5: p(f"v_mfma_f32_32x32x16_bf16 {vr(AQ, 16)}, {vr(VF, 4)}, {vr(PF, 4)}, 0")
        p(f"v_mfma_f32_32x32x16_bf16 {vr(AQ, 16)}, {vr(VF + 4, 4)}, {vr(PF + 4, 4)}, {vr(AQ, 16)}")
        p(f"v_cvt_pk_bf16_f32 v{PF + 9}, v{rs[9]}, v{rs[9] + 1}")
        p(f"v_mfma_f32_32x32x16_bf16 {vr(AQ, 16)}, {vr(VP, 4)}, {vr(PP, 4)}, {vr(AQ, 16)}")
        p(f"v_mov_b32 v{m}, v{AQ + 12}")
        p(f"v_permlane32_swap_b32 v{AQ + 12}, v{m}")
        p(f"v_rcp_f32 v{m}, v{m}")
        st = []
        for f in range(2):
            for n in range(0, 8, 2):
                p(f"v_pk_mul_f32 {vr(AQ + 8 * f + n, 2)}, {vr(AQ + 8 * f + n, 2)}, {vr(m, 2)} op_sel_hi:[1,0]")
            for n in range(4):
                p(f"v_cvt_pk_bf16_f32 v{QF + 4 * f + n}, v{AQ + 8 * f + 2 * n}, v{AQ + 8 * f + 2 * n + 1}")
            if f == 1:
                for n in (6, 7): p(f"v_and_b32 v{QF + n}, {vMK}, v{QF + n}")
            st.append(p(f"buffer_store_dwordx4 {vr(QF + 4 * f, 4)}, {vL16}, {WS}, s66 offen offset:{f * 1024}"))
        self.o_st = st
        self.stamp("attn")
        p.wait(self.wo_ld)
        p("s_barrier")

    def finish(self):
        p = self.p
        if self.stamps:
            e = p(f"s_memrealtime s[{STAMP0}:{STAMP0 + 1}]")
            p.wait(e)
            p(f"v_writelane_b32 v255, s{STAMP0}, 62")
            e = p(f"s_memtime s[{STAMP0}:{STAMP0 + 1}]")
            p.wait(e)
            p(f"v_writelane_b32 v255, s{STAMP0}, 63")
            p("s_lshl_b32 s62, s2, 10")
            p(f"s_add_u32 s62, s62, {WS_DBG}")
            p(f"v_lshlrev_b32 v254, 2, {vTID}")
            p(f"buffer_store_dword v255, v254, {WS}, s62 offen")
        p("s_endpgm")

    def nonce_duty(self):
        p = self.p
        p(f"s_lshl_b32 s62, {sW}, 8")
        p("s_add_u32 s62, s62, s2")
        lab = self.cond(f"s_cmp_eq_u32 s62, {3 * 256 + 255}", 0)
        p(f"v_lshrrev_b32 v32, 2, {vL}")
        p(f"v_and_b32 v33, 3, {vL}")
        p("v_lshlrev_b32 v32, 7, v32")
        p(f"v_lshl_add_u32 {vPA}, v33, 4, v32")
        p(f"s_movk_i32 s62, {WS_XCC}")
        chk = []
        for n in range(4): chk.append(f"v_xor_b32 v{40 + n}, {sN}, v{40 + n}")
        chk += ["v_or3_b32 v40, v40, v41, v42", "v_or_b32 v40, v40, v43", "v_cmp_gt_u32 vcc, 8, v40"]
        self.poll([f"buffer_load_dwordx4 v[40:43], {vPA}, {WS}, s62 offen sc1"], chk)
        p(f"buffer_store_dword {vN}, off, {WS}, 0 sc1")
        self.endcond(lab)

    def build(self):
        p = self.p
        self.prologue()
        self.mod_job()
        p(self.wq_group(2)); p(self.wq_group(3))
        self.h_job()
        self.vec_gather()
        self.phase1()
        import phases2
        phases2.rest(self)
        body = p.text()
        hdr = open("cdna_kernels/%s.s.ref" % NAME).read().split("; Override launch")[0]
        s = hdr + "; @launch grid=(256,1,1) block=(256,1,1) lds=163840\n"
        s += f'.amdgcn_target "amdgcn-amd-amdhsa--gfx950"\n.text\n.globl {NAME}_kernel\n.p2align 8\n.type {NAME}_kernel,@function\n{NAME}_kernel:\n'
        s += body + "".join(self.ool) + "L_END:\n    s_endpgm\n"
        s += f""".section .rodata,"a"
.p2align 6
.amdhsa_kernel {NAME}_kernel
  .amdhsa_next_free_vgpr 512
  .amdhsa_next_free_sgpr 102
  .amdhsa_accum_offset 256
  .amdhsa_group_segment_fixed_size 0
  .amdhsa_kernarg_size 104
  .amdhsa_user_sgpr_count 2
  .amdhsa_user_sgpr_kernarg_segment_ptr 1
  .amdhsa_system_sgpr_workgroup_id_x 1
  .amdhsa_float_denorm_mode_32 3
.end_amdhsa_kernel
"""
        return s


if __name__ == "__main__":
    import argparse
    ap = argparse.ArgumentParser()
    ap.add_argument("-o", default="cdna_kernels/%s.s" % NAME)
    ap.add_argument("--stop", type=int, default=99)
    ap.add_argument("--stamps", action="store_true")
    ap.add_argument("--slow", action="store_true")
    ap.add_argument("--opt", default="")
    a = ap.parse_args()
    sys.modules["kern"] = sys.modules["__main__"]
    k = K(a.stop, a.stamps, a.slow, a.opt.split(","))
    s = k.build()
    open(a.o, "w").write(s)
    if a.stamps:
        open(a.o + ".stamps", "w").write("\n".join(k.stamp_names))
    print("lines", s.count("\n"), "nops", k.p.nnop)
```

```python
import sys, struct, math
from asmlib import Prog, I, W, weave

NAME = "adaLN_cond__sliding_local_dilated__mixer_channel_mlp__prompt"

def fb(x):
    return "0x%08x" % struct.unpack("<I", struct.pack("<f", x))[0]

WS_XCC = 0x1000
WS_FH = 0x2000
WS_FO = 0x4000
WS_FA = 0x6000
WS_FD = 0x8000
WS_FE = 0xA000
WS_MODP = 0x10000
WS_EXT = 0x20000
WS_GRAM = 0x2F000
WS_DBG = 0x40000
WS_CL = 0x100000
QS = 0x25000
CLS = 0x98000
Q_HID = 0
Q_O = 0
Q_A = 0x1C000
Q_H = 0x1C000
Q_ST = 0x23000
CL_HALO = 4 * QS
WS_SIZE = 0x1000000

L_WQ = 0
L_WO = 86016
L_MS = L_WO
L_XS = L_WO + 16384
L_SC = L_WO + 32768
L_MT = L_WO + 33280
L_SP = 143872
L_VEC = L_SP
L_XT = L_SP + 2048
L_ET = L_SP + 10240
L_HP = 0
L_KX = 16384
L_VX = 28672
L_W1B = 0
L_W1A = 57344
W2SLOT = [0, 16384, 32768, 114688, 131072, 147456, 49152, 65536, 81920, 98304]

X, WQ, WO, W1, W2, WM, OUT, WS = ("s[4:7]", "s[8:11]", "s[12:15]", "s[16:19]", "s[20:23]", "s[24:27]", "s[28:31]", "s[32:35]")
sRB, sJ, sW, sH, sN, sFAST, sCL, sROT, sXCC, sMH, sNT = ("s42", "s43", "s44", "s45", "s46", "s47", "s48", "s49", "s50", "s51", "s52")
sCNT = "s53"
sWB = "s54"
sSH = "s55"
STR = "s[56:59]"
sPIT = "s60"
sJOB = "s61"
sT = ["s%d" % i for i in range(62, 70)]
sHOFF = ["s%d" % i for i in range(70, 77)]
sWOFF = ["s%d" % i for i in range(77, 84)]
sQ = "s84"
sQ2 = "s85"
sXROW = "s86"
sMSK = "s87"
sWL = "s88"
sU = ["s%d" % i for i in range(89, 100)]
STAMP0 = 100

vL, vTID, vL16, vN = "v0", "v1", "v2", "v3"
vSA = [4, 5, 6, 7]
vSB = [8, 9, 10, 11]
vT16 = [12, 13, 14, 15]
vT32 = [16, 17]
vWq = [18, 19, 20]
vTq = [21, 22]
vPA, vPD, vPX, vPY = "v23", "v24", "v25", "v26"
vF16 = "v27"
vROW = "v28"
vt = [29, 30, 31]

POLL_LIMIT = 40000

def vr(b, n=1):
    return f"v{b}" if n == 1 else f"v[{b}:{b + n - 1}]"
def ar(b, n=1):
    return f"a{b}" if n == 1 else f"a[{b}:{b + n - 1}]"


class K:
    def __init__(self, stop=99, stamps=False, force_slow=False, opt=()):
        self.opt = set(opt)
        self.p = Prog()
        self.ool = []
        self.stop = stop
        self.stamps = stamps
        self.nstamp = 0
        self.force_slow = force_slow

    def stamp(self, name):
        if ("sc_" + name) in self.opt:
            e = self.p("s_memrealtime s[98:99]")
            self.p.wait(e)
        if not self.stamps: return
        k = self.nstamp
        self.nstamp += 1
        p = self.p
        e = p(f"s_memtime s[{STAMP0}:{STAMP0 + 1}]")
        p.wait(e)
        p(f"v_writelane_b32 v255, s{STAMP0}, {k}")
        self.stamp_names = getattr(self, "stamp_names", []) + [name]

    def cond(self, cmp_text, skip_if_scc):
        p = self.p
        lab = p.label("SK")
        p(cmp_text)
        p(f"s_cbranch_scc{skip_if_scc} {lab}")
        p.push()
        return lab
    def endcond(self, lab):
        self.p.pop()
        self.p(lab + ":")

    def xcc_check(self):
        p = self.p
        p(f"v_xor_b32 {vPY}, {sN}, {vPX}")
        p(f"v_cmp_gt_u32 s[62:63], 8, {vPY}")
        p(f"v_cmp_eq_u32 s[64:65], {sXCC}, {vPX}")

    def poll(self, loads, check, with_xcc=False):
        p = self.p
        lab, done = p.label("PL"), p.label("PD")
        p(f"s_mov_b32 {sCNT}, {POLL_LIMIT}")
        p(lab + ":")
        for l in loads: p(l)
        if with_xcc:
            p(f"buffer_load_dword {vPX}, v{vt[2]}, {WS}, 0 offen sc1")
        p.waitall(vm=True, lk=False)
        for c in check: p(c)
        if with_xcc:
            self.xcc_check()
            p("s_and_b64 vcc, vcc, s[62:63]")
        p("s_cmp_eq_u64 vcc, -1")
        p(f"s_cbranch_scc1 {done}")
        p(f"s_sub_u32 {sCNT}, {sCNT}, 1")
        p(f"s_cbranch_scc0 {lab}")
        p("s_endpgm")
        p(done + ":")
        if with_xcc:
            p("s_cmp_eq_u64 s[64:65], -1")
            p(f"s_cselect_b32 {sFAST}, {0 if self.force_slow else 1}, 0")

    def poll_flags(self, with_xcc=False):
        self.poll([f"buffer_load_dword {vPD}, {vPA}, {WS}, 0 offen sc1"],
                  [f"v_cmp_eq_u32 vcc, {sN}, {vPD}"], with_xcc)
        self.acquire()

    def acquire(self):
        p = self.p
        a, b = p.label("AQ"), p.label("AR")
        p(f"s_cmp_eq_u32 {sFAST}, 0")
        p(f"s_cbranch_scc1 {a}")
        p(b + ":")
        self.ool.append(f"{a}:\n    buffer_inv sc1\n    s_waitcnt vmcnt(0)\n    s_branch {b}\n")

    def publish(self, stores, sflag):
        p = self.p
        a, b = p.label("PS"), p.label("PR")
        p.wait(stores)
        p(f"s_cmp_eq_u32 {sFAST}, 0")
        p(f"s_cbranch_scc1 {a}")
        e = p(f"buffer_store_dword {vN}, off, {WS}, {sflag}")
        p(b + ":")
        self.ool.append(f"{a}:\n    s_waitcnt vmcnt(0)\n    buffer_wbl2 sc1\n    s_waitcnt vmcnt(0)\n"
                        f"    buffer_store_dword {vN}, off, {WS}, {sflag} sc1\n    s_branch {b}\n")
        return e

    def strip_voff(self, dst, pitch, tmp):
        p = self.p
        a, b = tmp
        p(f"v_lshrrev_b32 v{a}, 3, {vL}")
        p(f"v_and_b32 v{b}, 2, v{a}")
        p(f"v_lshrrev_b32 v{dst[1]}, 2, v{a}")
        p(f"v_or_b32 v{b}, v{b}, v{dst[1]}")
        p(f"v_lshlrev_b32 v{b}, 1, v{b}")
        p(f"v_and_b32 v{dst[1]}, 7, {vL}")
        p(f"v_xor_b32 v{b}, v{b}, v{dst[1]}")
        p(f"v_lshlrev_b32 v{b}, 4, v{b}")
        if isinstance(pitch, int):
            p(f"v_mul_u32_u24 v{a}, {pitch}, v{a}")
            p(f"v_add_u32 v{dst[0]}, v{a}, v{b}")
            for e in (1, 2, 3):
                p(f"v_add_u32 v{dst[e]}, {e * (8 * pitch - 1024)}, v{dst[0]}")
        else:
            p(f"v_mad_u32_u24 v{dst[0]}, v{a}, {pitch}, v{b}")
            p(f"s_lshl_b32 {sT[0]}, {pitch}, 3")
            p(f"s_sub_u32 {sT[0]}, {sT[0]}, 1024")
            for e in (1, 2, 3):
                p(f"v_add_u32 v{dst[e]}, {sT[0]}, v{dst[e - 1]}")

    def wq_group(self, G):
        out = [I(f"s_add_u32 m0, {sWL}, {L_WQ + G * 12288}")]
        for e in range(3):
            out.append(I(f"buffer_load_dwordx4 v{vWq[e]}, {WQ}, {sWOFF[G]} offen offset:{e * 1024} lds"))
        return out

    def tagcheck(self, regs, tmp):
        out = []
        a, b, acc = tmp
        for n, r in enumerate(regs):
            out.append(f"v_perm_b32 v{a}, v{r + 1}, v{r}, {sMSK}")
            out.append(f"v_perm_b32 v{b}, v{r + 3}, v{r + 2}, {sMSK}")
            out.append(f"v_lshl_or_b32 v{a}, v{b}, 16, v{a}")
            if n == 0:
                out.append(f"v_xor_b32 v{acc}, {sN}, v{a}")
            else:
                out.append(f"v_xor_b32 v{a}, {sN}, v{a}")
                out.append(f"v_or_b32 v{acc}, v{acc}, v{a}")
        out.append(f"v_cmp_eq_u32 vcc, 0, v{acc}")
        return out

    def round4(self, r, t):
        p = self.p
        p(f"v_cvt_pk_bf16_f32 v{t}, v{r}, v{r + 1}")
        p(f"v_cvt_pk_bf16_f32 v{t + 1}, v{r + 2}, v{r + 3}")
        p(f"v_lshlrev_b32 v{r}, 16, v{t}")
        p(f"v_and_b32 v{r + 1}, 0xffff0000, v{t}")
        p(f"v_lshlrev_b32 v{r + 2}, 16, v{t + 1}")
        p(f"v_and_b32 v{r + 3}, 0xffff0000, v{t + 1}")

    def gather896(self, col0, R, with_xcc):
        p = self.p
        p(f"v_min_u32 {vPA}, 223, {vTID}")
        p(f"v_lshlrev_b32 {vPA}, 4, {vPA}")
        for kq in range(4):
            p(f"s_mov_b32 s{66 + kq}, {WS_MODP + kq * 10752 + col0 * 4}")
        loads = [f"buffer_load_dwordx4 {vr(R + 4 * kq, 4)}, {vPA}, {WS}, s{66 + kq} offen sc1" for kq in range(4)]
        self.poll(loads, self.tagcheck([R + 4 * kq for kq in range(4)], (R + 16, R + 17, R + 18)), with_xcc)
        for n in range(16):
            p(f"v_and_b32 v{R + n}, 0xffffff00, v{R + n}")
        for n in range(0, 8, 2):
            p(f"v_pk_add_f32 {vr(R + n, 2)}, {vr(R + n, 2)}, {vr(R + 8 + n, 2)}")
        for n in range(0, 4, 2):
            p(f"v_pk_add_f32 {vr(R + n, 2)}, {vr(R + n, 2)}, {vr(R + 4 + n, 2)}")
        self.round4(R, R + 16)
        p(f"v_cmp_le_u32 vcc, 112, {vTID}")
        p(f"v_cndmask_b32 v{R + 18}, 0, 1.0, vcc")
        for n in range(4):
            p(f"v_add_f32 v{R + n}, v{R + n}, v{R + 18}")
        self.round4(R, R + 16)

    def prologue(self):
        p = self.p
        p("s_cmp_ge_u32 s2, 256")
        p("s_cbranch_scc1 L_END")
        ld = []
        for reg, off in ((24, 72), (40, 64), (32, 96), (4, 0), (8, 8), (12, 16), (16, 32), (20, 48), (28, 80), (36, 40), (38, 56)):
            ld.append(p(f"s_load_dwordx2 s[{reg}:{reg + 1}], s[0:1], {off}"))
        if self.stamps:
            p("v_mov_b32 v255, 0")
            ld.append(p("s_memrealtime s[96:97]"))
            ld.append(p("s_memtime s[98:99]"))
        if any(o.startswith("sc_") for o in self.opt):
            ld.append(p("s_memrealtime s[96:97]"))
            ld.append(p("s_memrealtime s[98:99]"))
        for reg, size in ((4, 1835008), (8, 1204224), (12, 401408), (16, 1605632), (20, 1605632), (24, 2408448), (28, 1835008), (32, WS_SIZE)):
            p(f"s_mov_b32 s{reg + 2}, {size}")
            p(f"s_mov_b32 s{reg + 3}, 0x20000")
        p(f"v_mov_b32 {vTID}, v0")
        p(f"v_lshrrev_b32 v{vt[0]}, 6, v0")
        p(f"v_and_b32 {vL}, 63, v0")
        p(f"v_readfirstlane_b32 {sW}, v{vt[0]}")
        p(f"s_and_b32 {sRB}, s2, 15")
        p(f"s_lshr_b32 {sJ}, s2, 4")
        heads = [0, 1, 3, 5, 7, 8, 10, 12, 14, 15, 2, 4, 6, 9, 11, 13]
        tab = sum(h << (4 * i) for i, h in enumerate(heads))
        p(f"s_mov_b32 s62, 0x{tab & 0xffffffff:08x}")
        p(f"s_mov_b32 s63, 0x{tab >> 32:08x}")
        p(f"s_lshl_b32 s64, {sJ}, 2")
        p("s_lshr_b64 s[62:63], s[62:63], s64")
        p(f"s_and_b32 {sH}, s62, 15")
        p(f"s_mov_b32 {sMSK}, 0x0c0c0400")
        p(f"s_lshl_b32 {sWB}, {sW}, 12")
        p(f"v_lshlrev_b32 {vL16}, 4, {vL}")
        p(f"s_mov_b32 {sJOB}, s2")
        self.strip_voff(vSB, 5376, (vt[0], vt[1]))
        p(f"s_and_b32 s62, {sJOB}, 3")
        p(f"s_lshr_b32 s63, {sJOB}, 2")
        p("s_mul_i32 s64, s62, 112")
        p(f"s_lshl_b32 s65, {sW}, 5")
        p("s_add_u32 s65, s65, s64")
        p("s_mul_i32 s65, s65, 5376")
        p("s_lshl_b32 s66, s63, 7")
        p("s_add_u32 s65, s65, s66")
        p(f"v_min_u32 v{vt[0]}, 55, {vL}")
        p("s_lshl_b32 s64, s64, 1")
        p(f"v_lshl_add_u32 v{vt[0]}, v{vt[0]}, 2, s64")
        p(f"v_lshrrev_b32 v{vt[1]}, 2, {vL}")
        p(f"v_mul_u32_u24 v{vt[1]}, 896, v{vt[1]}")
        p(f"v_and_b32 v{vWq[1]}, 3, {vL}")
        p(f"v_lshl_add_u32 v{vWq[0]}, v{vWq[1]}, 4, v{vt[1]}")
        p(f"v_add_u32 v{vWq[1]}, {14336 - 1024}, v{vWq[0]}")
        p(f"v_add_u32 v{vWq[2]}, {2 * (14336 - 1024)}, v{vWq[0]}")
        p(f"s_cmp_eq_u32 {sH}, 15")
        p(f"s_cselect_b32 {sSH}, 8, 0")
        p(f"s_lshr_b32 s66, {sRB}, 3")
        p(f"s_lshl_b32 s67, {sH}, 1")
        p("s_add_u32 s66, s66, s67")
        p("s_mul_i32 s67, s66, 37")
        p("s_lshr_b32 s67, s67, 8")
        p("s_mul_i32 s67, s67, 7")
        p(f"s_sub_u32 {sROT}, s66, s67")
        p(f"s_mul_i32 {sCL}, {sRB}, {CLS}")
        p(f"s_add_u32 {sCL}, {sCL}, {WS_CL}")
        p(f"s_mul_i32 {sQ}, {sW}, {QS}")
        p(f"s_add_u32 {sQ}, {sQ}, {sCL}")
        p(f"s_mul_i32 s66, {sH}, 56")
        p(f"s_sub_u32 s66, s66, {sSH}")
        p(f"s_mul_i32 s67, {sW}, {3 * 14336}")
        p("s_add_u32 s66, s66, s67")
        p(f"s_mov_b32 s67, {sROT}")
        for G in range(7):
            p(f"s_mul_i32 {sWOFF[G]}, s67, {12 * 14336}")
            p(f"s_add_u32 {sWOFF[G]}, {sWOFF[G]}, s66")
            p(f"s_lshl_b32 {sHOFF[G]}, s67, 9")
            if G < 6:
                p("s_add_u32 s67, s67, 1")
                p("s_cmp_eq_u32 s67, 7")
                p("s_cselect_b32 s67, 0, s67")
        p(f"s_mul_i32 {sWL}, {sW}, 3072")
        p(f"s_lshr_b32 s66, {sJ}, 2")
        p("s_lshl_b32 s66, s66, 6")
        p(f"s_bfe_u32 s67, {sJ}, 0x10001")
        p("s_add_u32 s66, s66, s67")
        p(f"s_and_b32 s67, {sJ}, 1")
        p("s_lshl_b32 s67, s67, 5")
        p("s_add_u32 s66, s66, s67")
        p(f"s_lshl_b32 s67, {sW}, 3")
        p("s_add_u32 s66, s66, s67")
        p(f"s_and_b32 s67, {sW}, 1")
        p("s_lshl_b32 s67, s67, 3")
        p(f"s_lshr_b32 s68, {sW}, 1")
        p("s_add_u32 s67, s67, s68")
        p(f"s_cmp_eq_u32 {sRB}, 0")
        p("s_cselect_b32 s68, 0, 16")
        p("s_sub_u32 s67, s67, s68")
        p(f"s_cmp_eq_u32 {sJ}, 8")
        p("s_cselect_b32 s66, s67, s66")
        p(f"s_lshl_b32 s67, {sRB}, 7")
        p("s_add_u32 s66, s66, s67")
        p("s_mul_i32 s66, s66, 896")
        p(f"s_getreg_b32 {sXCC}, hwreg(HW_REG_XCC_ID, 0, 3)")
        p.wait(ld)
        if self.stamps:
            p("v_writelane_b32 v255, s96, 60")
            p("v_writelane_b32 v255, s98, 61")
        nonce = p(f"s_load_dword {sN}, s[32:33], 0")
        lab = self.cond(f"s_cmp_lt_u32 {sJOB}, 168", 0)
        self.c_ld = p(f"global_load_dword v32, v{vt[0]}, s[40:41]")
        p(f"s_add_u32 m0, {sWB}, {L_MS}")
        self.ms_ld = [p(f"buffer_load_dwordx4 v{vSB[e]}, {WM}, s65 offen offset:{e * 1024} lds") for e in range(4)]
        self.endcond(lab)
        lab = self.cond(f"s_cmp_lt_u32 {sJ}, 9", 0)
        p(f"s_add_u32 m0, {sWB}, {L_XS}")
        self.xs_ld = []
        for r in range(4):
            self.xs_ld.append(p(f"buffer_load_dwordx4 {vL16}, {X}, s66 offen offset:{r * 1024} lds"))
            if r < 3: p("s_add_u32 s66, s66, 768")
        self.endcond(lab)
        p("s_getpc_b64 s[62:63]")
        p("L_PC:")
        p(f"v_and_b32 v{vt[1]}, 15, {vTID}")
        p(f"s_lshr_b32 s64, s2, 3")
        p(f"v_lshl_add_u32 v{vt[1]}, s64, 4, v{vt[1]}")
        p(f"v_lshlrev_b32 v{vt[1]}, 7, v{vt[1]}")
        p(f"v_min_u32 v{vt[1]}, L_END-L_PC, v{vt[1]}")
        p(f"global_load_dword v254, v{vt[1]}, s[62:63]")
        p(self.wq_group(0))
        p(self.wq_group(1))
        a, b, c = vt
        p(f"v_lshrrev_b32 v{a}, 4, {vL}")
        p(f"v_bfe_u32 v{b}, {vL}, 2, 2")
        p(f"v_and_b32 v{c}, 3, {vL}")
        p(f"v_lshlrev_b32 v{c}, 3, v{c}")
        p(f"v_lshl_add_u32 v{c}, v{b}, 7, v{c}")
        p(f"v_and_b32 v{b}, 2, v{b}")
        p(f"v_and_b32 v34, 1, v{a}")
        p(f"v_lshrrev_b32 v35, 1, v{a}")
        p(f"v_lshl_add_u32 v36, v35, 11, v{c}")
        p(f"v_lshl_add_u32 v36, v34, 9, v36")
        p(f"v_or_b32 v37, v{b}, v34")
        for nt in range(4):
            p(f"v_xor_b32 v38, {nt}, v37")
            p(f"v_lshl_add_u32 v{vT16[nt]}, v38, 5, v36")
        p(f"v_lshl_add_u32 v36, v35, 9, v{c}")
        p(f"v_or_b32 v37, v{b}, v35")
        p(f"v_xor_b32 v37, v37, v34")
        for B in range(2):
            p(f"v_xor_b32 v38, {2 * B}, v37")
            p(f"v_lshl_add_u32 v{vT32[B]}, v38, 5, v36")
        p(f"v_bfe_u32 v{b}, {vL}, 2, 2")
        p(f"v_lshl_add_u32 v36, v35, 3, v{b}")
        p(f"v_mul_u32_u24 v36, 192, v36")
        p(f"v_lshl_add_u32 v36, v34, 5, v36")
        p(f"v_and_b32 v37, 3, {vL}")
        p(f"v_lshl_add_u32 v36, v37, 3, v36")
        p(f"v_add_u32 v{vTq[0]}, {sSH}, v36")
        p(f"v_add_u32 v{vTq[1]}, 43008, v{vTq[0]}")
        p(f"v_and_b32 v36, 15, {vL}")
        p(f"v_lshlrev_b32 v36, 4, v36")
        p(f"v_lshl_add_u32 {vF16}, v{a}, 9, v36")
        p(f"v_lshrrev_b32 v36, 3, {vL}")
        p(f"v_mul_u32_u24 v36, 1792, v36")
        p(f"v_and_b32 v37, 7, {vL}")
        p(f"v_lshl_add_u32 {vROW}, v37, 4, v36")
        p(f"s_and_b32 {sMH}, {sJ}, 1")
        p(f"s_lshr_b32 {sNT}, {sJ}, 1")
        p(f"s_cmp_lt_u32 {sJ}, 14")
        p("s_cselect_b32 s56, s12, s16")
        p("s_cselect_b32 s57, s13, s17")
        p("s_cselect_b32 s58, s14, s18")
        p("s_mov_b32 s59, 0x20000")
        p(f"s_movk_i32 {sPIT}, 896")
        p(f"s_cselect_b32 {sPIT}, {sPIT}, 3584")
        self.strip_voff(vSA, sPIT, (34, 35))
        p(f"s_lshl_b32 s62, {sMH}, 1")
        p(f"s_lshr_b32 s63, {sW}, 1")
        p("s_add_u32 s62, s62, s63")
        p(f"s_mul_i32 {sQ2}, s62, {QS}")
        p(f"s_add_u32 {sQ2}, {sQ2}, {sCL}")
        p(f"s_lshl_b32 s62, {sRB}, 7")
        p(f"s_lshl_b32 s64, {sMH}, 6")
        p("s_add_u32 s62, s62, s64")
        p("s_add_u32 s62, s62, s63")
        p(f"s_and_b32 s64, {sW}, 1")
        p("s_lshl_b32 s64, s64, 5")
        p("s_add_u32 s62, s62, s64")
        p("s_mul_i32 s62, s62, 896")
        p(f"s_lshl_b32 s64, {sNT}, 7")
        p(f"s_add_u32 {sXROW}, s62, s64")
        p(f"v_and_b32 v{c}, 15, {vL}")
        p(f"s_lshl_b32 s62, {sRB}, 7")
        p(f"s_add_u32 s62, s62, {WS_XCC}")
        p(f"v_lshl_add_u32 v{c}, v{c}, 2, s62")
        p("v_mov_b32 v34, 0")
        p("v_mov_b32 v35, 0")
        p(f"v_lshlrev_b32 v36, 3, {vL}")
        p(f"v_add_u32 v36, {L_WO + 57344}, v36")
        p("ds_write_b64 v36, v[34:35]")
        p.wait(nonce)
        p(f"s_add_u32 {sN}, {sN}, 0x01010101")
        p(f"v_mov_b32 {vN}, {sN}")
        p(f"s_andn2_b32 s63, {sN}, 7")
        p(f"s_or_b32 {sXCC}, {sXCC}, s63")
        p(f"s_lshl_b32 s63, {sJ}, 2")
        p("s_add_u32 s62, s62, s63")
        lab = self.cond(f"s_cmp_eq_u32 {sW}, 0", 0)
        p(f"v_mov_b32 v34, {sXCC}")
        p(f"buffer_store_dword v34, off, {WS}, s62 sc1")
        self.endcond(lab)
        self.stamp("prolog")

    def mod_job(self):
        p = self.p
        lab = self.cond(f"s_cmp_lt_u32 {sJOB}, 168", 0)
        p.wait(self.c_ld)
        p("v_lshlrev_b32 v34, 16, v32")
        p("v_and_b32 v35, 0xffff0000, v32")
        for r in (34, 35):
            p(f"v_mul_f32 v{r + 2}, {fb(-math.log2(math.e))}, v{r}")
        for r in (34, 35):
            p(f"v_exp_f32 v{r + 2}, v{r + 2}")
        for r in (34, 35):
            p(f"v_add_f32 v{r + 2}, 1.0, v{r + 2}")
        for r in (34, 35):
            p(f"v_rcp_f32 v{r + 2}, v{r + 2}")
        p(f"v_cmp_gt_u32 vcc, 56, {vL}")
        for r in (34, 35):
            p(f"v_mul_f32 v{r}, v{r}, v{r + 2}")
        p("v_cvt_pk_bf16_f32 v34, v34, v35")
        p("v_cndmask_b32 v34, 0, v34, vcc")
        p(f"v_lshlrev_b32 v35, 2, {vL}")
        p(f"v_add_u32 v35, {L_SC}, v35")
        wr = p("ds_write_b32 v35, v34")
        p(f"s_lshl_b32 s62, {sW}, 5")
        p(f"v_xor_b32 v36, s62, v{vT16[0]}")
        p(f"v_add_u32 v36, {L_MS}, v36")
        p(f"v_lshrrev_b32 v37, 5, {vL}")
        p(f"v_bfe_u32 v38, {vL}, 4, 1")
        p("v_lshlrev_b32 v37, 5, v37")
        p("v_lshl_add_u32 v37, v38, 3, v37")
        p(f"v_add_u32 v37, {L_SC}, v37")
        p(f"s_and_b32 s62, {sJOB}, 3")
        p("s_mul_i32 s62, s62, 10752")
        p(f"s_lshr_b32 s63, {sJOB}, 2")
        p("s_lshl_b32 s63, s63, 8")
        p("s_add_u32 s62, s62, s63")
        p(f"s_lshl_b32 s63, {sW}, 6")
        p("s_add_u32 s62, s62, s63")
        p(f"s_add_u32 s62, s62, {WS_MODP}")
        p(f"v_and_b32 v38, 0x30, {vL}")
        for r in range(4):
            p(f"v_bfe_u32 v{76 + r}, {vN}, {8 * r}, 8")
        p("s_mov_b32 s63, 0xffffff00")
        p.wait(self.ms_ld, wr)
        p("s_barrier")
        rd = []
        for s in range(4):
            for e in range(2):
                rd.append(p(f"ds_read_b64_tr_b16 {vr(40 + 4 * s + 2 * e, 2)}, v36 offset:{s * 4096 + e * 1024}"))
                rd.append(p(f"ds_read_b64 {vr(56 + 4 * s + 2 * e, 2)}, v37 offset:{s * 64 + e * 16}"))
        for s in range(4):
            p.wait(rd[4 * s + 3])
            p(f"v_mfma_f32_16x16x32_bf16 v[72:75], {vr(40 + 4 * s, 4)}, {vr(56 + 4 * s, 4)}, {'0' if s == 0 else 'v[72:75]'}")
        for r in range(4):
            p(f"v_and_or_b32 v{72 + r}, v{72 + r}, s63, v{76 + r}")
        p("s_mov_b32 s64, 0x00010001")
        p("s_mov_b32 s65, 0x00010001")
        p("s_mov_b64 exec, s[64:65]")
        p(f"buffer_store_dwordx4 v[72:75], v38, {WS}, s62 offen sc1")
        p("s_mov_b64 exec, -1")
        self.endcond(lab)
        self.stamp("modjob")

    def red_rows4(self, r, t):
        p = self.p
        p(f"v_add_f32_dpp v{r}, v{r}, v{r} row_ror:4 row_mask:0xf bank_mask:0xf")
        p(f"v_add_f32_dpp v{r}, v{r}, v{r} row_ror:8 row_mask:0xf bank_mask:0xf")
        p(f"v_mov_b32 v{t}, v{r}")
        p(f"v_permlane16_swap_b32 v{r}, v{t}")
        p(f"v_add_f32 v{r}, v{r}, v{t}")
        p(f"v_mov_b32 v{t}, v{r}")
        p(f"v_permlane32_swap_b32 v{r}, v{t}")
        p(f"v_add_f32 v{r}, v{r}, v{t}")

    def h_job(self):
        p = self.p
        els, fin = p.label("HE"), p.label("HF")
        p(f"s_cmp_lt_u32 {sJ}, 9")
        p(f"s_cbranch_scc0 {els}")
        p.push()
        Z, RAW, S = 64, 40, 36
        p(f"v_and_b32 v32, 3, {vL}")
        p(f"v_lshrrev_b32 v33, 2, {vL}")
        p("v_lshlrev_b32 v34, 10, v32")
        p("v_lshl_add_u32 v34, v33, 4, v34")
        p(f"s_add_u32 s62, {sWB}, {L_XS}")
        p("v_add_u32 v34, s62, v34")
        p.wait(self.xs_ld)
        rd = [p(f"ds_read_b128 {vr(RAW + 4 * s, 4)}, v34 offset:{s * 224}") for s in range(4)]
        p(f"v_cmp_gt_u32 s[64:65], 56, {vL}")
        for s in range(4):
            p.wait(rd[s])
            for n in range(4):
                p(f"v_lshlrev_b32 v{Z + 8 * s + 2 * n}, 16, v{RAW + 4 * s + n}")
                p(f"v_and_b32 v{Z + 8 * s + 2 * n + 1}, 0xffff0000, v{RAW + 4 * s + n}")
        p(f"v_pk_add_f32 {vr(S, 2)}, {vr(Z, 2)}, {vr(Z + 2, 2)}")
        for n in range(4, 32, 2):
            p(f"v_pk_add_f32 {vr(S, 2)}, {vr(S, 2)}, {vr(Z + n, 2)}")
        p(f"v_add_f32 v{S}, v{S}, v{S + 1}")
        p(f"v_cndmask_b32 v{S}, 0, v{S}, s[64:65]")
        self.red_rows4(S, S + 1)
        p(f"v_mul_f32 v{S}, {fb(1.0 / 448)}, v{S}")
        for n in range(0, 32, 2):
            p(f"v_pk_add_f32 {vr(Z + n, 2)}, {vr(Z + n, 2)}, {vr(S, 2)} op_sel_hi:[1,0] neg_lo:[0,1] neg_hi:[0,1]")
        p(f"v_pk_mul_f32 {vr(S, 2)}, {vr(Z, 2)}, {vr(Z, 2)}")
        for n in range(2, 32, 2):
            p(f"v_pk_fma_f32 {vr(S, 2)}, {vr(Z + n, 2)}, {vr(Z + n, 2)}, {vr(S, 2)}")
        p(f"v_add_f32 v{S}, v{S}, v{S + 1}")
        p(f"v_cndmask_b32 v{S}, 0, v{S}, s[64:65]")
        self.red_rows4(S, S + 1)
        p(f"v_mov_b32 v{S + 1}, {fb(1e-5)}")
        p(f"v_fmac_f32 v{S + 1}, {fb(1.0 / 448)}, v{S}")
        p(f"v_rsq_f32 v{S}, v{S + 1}")
        for n in range(0, 32, 2):
            p(f"v_pk_mul_f32 {vr(Z + n, 2)}, {vr(Z + n, 2)}, {vr(S, 2)} op_sel_hi:[1,0]")
        p(f"v_lshlrev_b32 v34, 5, v33")
        p(f"v_add_u32 v34, {L_MT}, v34")
        p(f"v_lshlrev_b32 v35, 4, {vTID}")
        p(f"v_add_u32 v35, {L_MT}, v35")
        self.stamp("xstats")
        self.gather896(0, RAW, True)
        self.stamp("modpoll")
        wr = p(f"ds_write_b128 v35, {vr(RAW, 4)}")
        p(f"s_lshr_b32 s62, {sJ}, 1")
        p(f"s_mul_i32 s62, s62, {QS}")
        p(f"s_and_b32 s63, {sJ}, 1")
        p(f"s_lshl_b32 s63, s63, 2")
        p(f"s_add_u32 s63, s63, {sW}")
        p("s_mul_i32 s63, s63, 3584")
        p("s_add_u32 s62, s62, s63")
        p(f"s_cmp_eq_u32 {sJ}, 8")
        p(f"s_cselect_b32 s63, 0, {Q_H}")
        p("s_add_u32 s62, s62, s63")
        p(f"s_add_u32 s62, s62, {sCL}")
        p(f"s_lshl_b32 s63, {sRB}, 8")
        p(f"s_lshl_b32 s64, {sJ}, 4")
        p("s_add_u32 s63, s63, s64")
        p(f"s_lshl_b32 s64, {sW}, 2")
        p("s_add_u32 s63, s63, s64")
        p(f"s_add_u32 s63, s63, {WS_FH}")
        p.wait(wr)
        p("s_barrier")
        M = 96
        rd = []
        for s in range(4):
            for e in range(2):
                rd.append(p(f"ds_read_b128 {vr(M + 16 * s + 4 * e, 4)}, v34 offset:{s * 448 + e * 16}"))
                rd.append(p(f"ds_read_b128 {vr(M + 16 * s + 8 + 4 * e, 4)}, v34 offset:{1792 + s * 448 + e * 16}"))
        p("s_mov_b32 s64, -1")
        p("s_mov_b32 s65, 0x00ffffff")
        p("s_mov_b64 exec, s[64:65]")
        st = []
        for s in range(4):
            p.wait(rd[4 * s + 3])
            for n in range(0, 8, 2):
                p(f"v_pk_fma_f32 {vr(Z + 8 * s + n, 2)}, {vr(Z + 8 * s + n, 2)}, {vr(M + 16 * s + 8 + n, 2)}, {vr(M + 16 * s + n, 2)}")
            for n in range(4):
                p(f"v_cvt_pk_bf16_f32 v{RAW + 4 * s + n}, v{Z + 8 * s + 2 * n}, v{Z + 8 * s + 2 * n + 1}")
            st.append(p(f"buffer_store_dwordx4 {vr(RAW + 4 * s, 4)}, {vL16}, {WS}, s62 offen offset:{s * 896}"))
        p("s_mov_b64 exec, -1")
        p(self.wq_group(4))
        self.publish(st, "s63")
        p(f"s_branch {fin}")
        p.pop()
        p(els + ":")
        p.push()
        p(self.wq_group(4))
        p.pop()
        p(fin + ":")
        self.stamp("hpub")

    def vec_gather(self):
        p = self.p
        lab = self.cond(f"s_cmp_lt_u32 {sJ}, 14", 0)
        R = 40
        p(f"v_lshrrev_b32 v32, 4, {vL}")
        p("v_mul_u32_u24 v32, 10752, v32")
        p(f"v_and_b32 v33, 15, {vL}")
        p(f"v_lshl_add_u32 {vPA}, v33, 4, v32")
        p(f"s_mul_i32 s66, {sW}, 1792")
        p(f"s_lshl_b32 s67, {sNT}, 8")
        p("s_add_u32 s66, s66, s67")
        p(f"s_add_u32 s66, s66, {WS_MODP + 896 * 4}")
        p(f"s_lshl_b32 s67, {sNT}, 7")
        p("v_lshl_add_u32 v32, v33, 3, s67")
        b2 = p("global_load_dwordx2 v[48:49], v32, s[38:39]")
        self.poll([f"buffer_load_dwordx4 {vr(R, 4)}, {vPA}, {WS}, s66 offen sc1"], self.tagcheck([R], (44, 45, 46)))
        for n in range(4):
            p(f"v_and_b32 v{R + n}, 0xffffff00, v{R + n}")
        for sw in ("32", "16"):
            for n in range(4):
                p(f"v_mov_b32 v{R + 4 + n}, v{R + n}")
            for n in range(4):
                p(f"v_permlane{sw}_swap_b32 v{R + n}, v{R + 4 + n}")
            for n in range(4):
                p(f"v_add_f32 v{R + n}, v{R + n}, v{R + 4 + n}")
        self.round4(R, 44)
        p(f"s_cmp_eq_u32 {sW}, 2")
        p("s_cselect_b32 s66, 1.0, 0")
        for n in range(4):
            p(f"v_add_f32 v{R + n}, s66, v{R + n}")
        self.round4(R, 44)
        p(f"s_lshl_b32 s66, {sW}, 8")
        p(f"s_add_u32 s66, s66, {L_VEC}")
        p("v_lshl_add_u32 v32, v33, 4, s66")
        p(f"ds_write_b128 v32, {vr(R, 4)}")
        p("v_lshlrev_b32 v44, 16, v48")
        p("v_and_b32 v45, 0xffff0000, v48")
        p("v_lshlrev_b32 v46, 16, v49")
        p("v_and_b32 v47, 0xffff0000, v49")
        p("v_lshlrev_b32 v32, 4, v33")
        p(f"v_add_u32 v32, {L_VEC + 1024}, v32")
        p("ds_write_b128 v32, v[44:47]")
        p.waitall(vm=False, lk=True)
        self.endcond(lab)

    def strip_dma(self, srd, voff, soff, pitch, n0, n1, ldsbase_s, ldsimm):
        out = []
        for n in range(n0, n1):
            if n % 4 == 0 or n == n0:
                out.append(I(f"s_add_u32 m0, {ldsbase_s}, {ldsimm + (n // 4) * 4096}"))
            out.append(I(f"buffer_load_dwordx4 v{voff[n % 4]}, {srd}, {soff} offen offset:{(n % 4) * 1024} lds"))
            if n % 4 == 3:
                out.append(I(f"s_add_u32 {soff}, {soff}, {pitch}"))
        return out

    def phase1(self):
        p = self.p
        HF, HH, AQ, AK, AV, AH, WB = 32, 144, 160, 176, 192, 208, 224
        vH, vHH, vTH, vHX = "v248", "v249", "v250", "v251"
        p(f"v_and_b32 v32, 15, {vL}")
        p("v_min_u32 v32, 11, v32")
        p(f"s_lshl_b32 s62, {sW}, 3")
        p("v_add_u32 v33, s62, v32")
        p("v_add_u32 v34, 24, v32")
        p("v_cmp_gt_u32 vcc, 8, v32")
        p("v_cndmask_b32 v33, v34, v33, vcc")
        p(f"s_lshl_b32 s62, {sRB}, 8")
        p(f"s_add_u32 s62, s62, {WS_FH}")
        p(f"v_lshl_add_u32 {vPA}, v33, 2, s62")
        p(f"v_bfe_u32 v32, {vL}, 2, 3")
        p("v_mul_u32_u24 v32, 3584, v32")
        p(f"v_lshrrev_b32 v33, 5, {vL}")
        p("v_lshl_add_u32 v32, v33, 6, v32")
        p(f"v_and_b32 v34, 3, {vL}")
        p("v_lshl_add_u32 v32, v34, 4, v32")
        p(f"s_add_u32 s62, {sQ}, {Q_H}")
        p(f"v_add_u32 {vH}, s62, v32")
        p(f"v_bfe_u32 v32, {vL}, 2, 2")
        p("v_mul_u32_u24 v35, 3584, v32")
        p(f"v_lshrrev_b32 v33, 4, {vL}")
        p("v_lshl_add_u32 v35, v33, 6, v35")
        p("v_lshl_add_u32 v35, v34, 4, v35")
        p(f"s_add_u32 s62, {sCL}, {CL_HALO}")
        p(f"v_add_u32 {vHH}, s62, v35")
        p("v_lshl_add_u32 v35, v33, 3, v32")
        p("v_mul_u32_u24 v35, 192, v35")
        p("v_lshl_add_u32 v35, v34, 3, v35")
        p(f"s_mul_i32 s62, {sW}, 24576")
        p(f"s_add_u32 s62, s62, {sSH}")
        p(f"v_add_u32 {vTH}, s62, v35")
        p(f"s_cmp_eq_u32 {sW}, 1")
        p(f"s_cselect_b32 s66, {sHOFF[2]}, {sHOFF[0]}")
        p(f"s_cselect_b32 s67, {sHOFF[3]}, {sHOFF[1]}")
        p(f"s_cmp_eq_u32 {sW}, 2")
        p(f"s_cselect_b32 s66, {sHOFF[4]}, s66")
        p(f"s_cselect_b32 s67, {sHOFF[5]}, s67")
        p(f"s_cmp_eq_u32 {sW}, 3")
        p(f"s_cselect_b32 s66, {sHOFF[6]}, s66")
        p(f"s_cselect_b32 s67, {WS_SIZE}, s67")
        p("s_cselect_b32 s68, 0, 12288")
        p(f"v_add_u32 v252, s68, {vTH}")
        p(f"v_and_b32 v32, 15, {vL}")
        p("v_lshrrev_b32 v35, 3, v32")
        p("v_lshlrev_b32 v35, 11, v35")
        p("v_and_b32 v36, 7, v32")
        p("v_lshl_add_u32 v35, v36, 4, v35")
        p("v_and_b32 v36, 1, v33")
        p("v_lshl_add_u32 v35, v36, 9, v35")
        p("v_lshrrev_b32 v37, 1, v33")
        p("v_lshl_add_u32 v35, v37, 3, v35")
        p(f"s_and_b32 s62, {sW}, 1")
        p("s_lshl_b32 s63, s62, 10")
        p(f"s_add_u32 s63, s63, {L_KX + 24 * 16}")
        p("v_add_u32 v35, s63, v35")
        p("v_lshlrev_b32 v37, 9, v37")
        p("v_lshl_add_u32 v37, v36, 8, v37")
        p("v_lshl_add_u32 v37, v32, 3, v37")
        p("s_lshl_b32 s63, s62, 7")
        p(f"s_add_u32 s63, s63, {L_VX}")
        p("v_add_u32 v37, s63, v37")
        p(f"s_cmp_lt_u32 {sW}, 2")
        p("s_cselect_b64 vcc, -1, 0")
        p(f"v_cndmask_b32 {vHX}, v37, v35, vcc")
        p(f"s_sub_u32 s62, s2, 224")
        p("s_min_u32 s62, s62, 27")
        p(f"s_cmp_lt_u32 {sJ}, 14")
        p(f"s_cselect_b32 s62, {sNT}, s62")
        p("s_lshl_b32 s62, s62, 7")
        p(f"s_mul_i32 s63, {sPIT}, 112")
        p(f"s_mul_i32 s63, s63, {sW}")
        p(f"s_add_u32 {sJOB}, s62, s63")
        p(f"s_lshl_b32 {sPIT}, {sPIT}, 5")
        p(f"s_mul_i32 s68, {sW}, 14336")
        self.strip_voff(vSB, 3584, (32, 33))
        p(f"s_lshr_b32 {sU[0]}, {sWB}, 1")
        p(f"s_add_u32 {sU[1]}, {sXROW}, {14336 - 1024}")
        p(f"s_mov_b32 {sU[2]}, {fb(-1e30)}")
        p(f"s_lshr_b32 s62, {sW}, 1")
        p(f"s_or_b32 s62, s62, {sRB}")
        p("s_cmp_eq_u32 s62, 0")
        p(f"s_cselect_b32 {sU[3]}, 0, 8")
        p(f"v_and_b32 v253, 31, {vL}")
        p(f"v_lshrrev_b32 v32, 5, {vL}")
        p("v_lshlrev_b32 v32, 2, v32")
        p("v_sub_u32 v253, v253, v32")
        self.stamp("prepoll")
        self.poll_flags(with_xcc=True)
        self.stamp("hpoll")

        hld = [None] * 28
        def hload(G):
            o = []
            for e in range(4):
                x = I(f"buffer_load_dwordx4 {vr(HF + 4 * (4 * G + e), 4)}, {vH}, {WS}, {sHOFF[G]} offen offset:{e * 128} sc1")
                hld[4 * G + e] = x; o.append(x)
            return o
        hh = [I(f"buffer_load_dwordx4 {vr(HH + 4 * s, 4)}, {vHH}, {WS}, s{66 + (s >> 1)} offen offset:{(s & 1) * 256} sc1") for s in range(4)]
        w5, w6 = self.wq_group(5), self.wq_group(6)
        wo = self.strip_dma(STR, vSA, sJOB, sPIT, 0, 14, "s68", L_WO)
        xt = [I(f"s_add_u32 m0, {sU[0]}, {L_XT}"),
              I(f"buffer_load_dwordx4 {vROW}, {X}, {sXROW} offen lds"),
              I(f"buffer_load_dwordx4 {vROW}, {X}, {sU[1]} offen offset:1024 lds")]
        self.wo_ld = [x for x in wo + xt if x.tok]

        wrd = {}
        def wread(s):
            o = []
            base = vTq[0] if s < 14 else vTq[1]
            for S in range(3):
                for e in range(2):
                    x = I(f"ds_read_b64_tr_b16 {vr(WB + 12 * (s & 1) + 4 * S + 2 * e, 2)}, v{base} offset:{(s % 14) * 3072 + e * 768 + S * 64}")
                    wrd[(s, S)] = x; o.append(x)
            return o
        p(hload(0)); p(hload(1))
        p("s_barrier")
        p(wread(0))
        p(w5); p(hload(2))
        vq = hload(3) + w6 + hh + hload(4) + hload(5) + hload(6) + wo + xt
        SC, SP = HF, HF + 16
        bias = []
        for n in range(16):
            off = 8 * (n >> 2) + (n & 3)
            bias += [I(f"v_subrev_u32 v254, {off}, v253"), I("v_cmp_le_u32 vcc, 8, v254"), I(f"v_mov_b32 v{SC + n}, {sU[2]}"), I(f"v_mov_b32 v{SP + n}, {sU[2]}"),
                     I(f"v_cndmask_b32 v{SC + n}, 0, v{SC + n}, vcc")]
        for r in range(4):
            bias += [I(f"v_add_u32 v254, {8 - r}, v253"), I(f"v_cmp_le_u32 vcc, {sU[3]}, v254"),
                     I(f"v_cndmask_b32 v{SP + 12 + r}, 0, v{SP + 12 + r}, vcc")]

        def step(s, fill):
            nxt = wread(s + 1) if s + 1 < 28 else []
            b = WB + 12 * (s & 1)
            h = vr(HF + 4 * s, 4)
            mm = [f"v_mfma_f32_32x32x16_bf16 {vr(AQ, 16)}, {vr(b, 4)}, {h}, {'0' if s == 0 else vr(AQ, 16)}",
                  f"v_mfma_f32_32x32x16_bf16 {vr(AK, 16)}, {vr(b + 4, 4)}, {h}, {'0' if s == 0 else vr(AK, 16)}",
                  f"v_mfma_f32_32x32x16_bf16 {vr(AV, 16)}, {h}, {vr(b + 8, 4)}, {'0' if s == 0 else vr(AV, 16)}"]
            for S in range(3):
                p(nxt[2 * S:2 * S + 2])
                p.wait(wrd[(s, S)], hld[s] if S == 0 else None)
                p(mm[S])
                for q, n in fill:
                    for _ in range(n if isinstance(n, int) else n[S]):
                        if q: p(q.pop(0))

        for s in range(20):
            fill = [(vq, (1, 1, 0))]
            if s >= 8: fill.append((bias, 3))
            if s == 19:
                p.wait([x for x in w5 + w6 if x.tok])
                p("s_barrier")
            step(s, fill)
        assert not bias
        HB = HF + 32
        hrd = {}
        def hread(s):
            o = []
            base = vTH if s < 2 else "v252"
            for c in range(4):
                for e in range(2):
                    x = I(f"ds_read_b64_tr_b16 {vr(HB + 16 * (s & 1) + 4 * c + 2 * e, 2)}, {base} offset:{(s & 1) * 6144 + e * 768 + 64 + c * 32}")
                    hrd[(s, c)] = x; o.append(x)
            return o
        p(hread(0))
        for s in range(4):
            nxt = hread(s + 1) if s < 3 else []
            for c in range(4):
                p(nxt[2 * c:2 * c + 2])
                p.wait(hrd[(s, c)], hh[s])
                w_, h_ = vr(HB + 16 * (s & 1) + 4 * c, 4), vr(HH + 4 * s, 4)
                a_, b_ = (w_, h_) if c < 2 else (h_, w_)
                p(f"v_mfma_f32_16x16x32_bf16 {vr(AH + 4 * c, 4)}, {a_}, {b_}, {'0' if s == 0 else vr(AH + 4 * c, 4)}")
        step(20, [(vq, (1, 1, 0))])
        p("s_barrier")
        p(f"s_lshr_b32 s62, {sWB}, 2")
        p(f"v_add_u32 v253, s62, {vL16}")
        p(f"v_add_u32 v254, {sWB}, {vL16}")
        hw = [I(f"ds_write_b128 v253, {vr(AH + 4 * c, 4)} offset:{L_HP + c * 4096}") for c in range(4)]
        step(21, [(vq, (1, 1, 0)), (list(hw), (2, 1, 1))])
        step(22, [(vq, (1, 1, 0))])
        p.wait(hw)
        p("s_barrier")
        hr = [I(f"ds_read_b128 {vr(AH + 4 * c, 4)}, v254 offset:{L_HP + c * 1024}") for c in range(4)]
        step(23, [(vq, (1, 1, 0)), (list(hr), (2, 1, 1))])
        hs = [W(hr)]
        for n in range(8): hs.append(I(f"v_add_f32 v{AH + n}, v{AH + n}, v{AH + 8 + n}"))
        for n in range(4): hs.append(I(f"v_add_f32 v{AH + n}, v{AH + n}, v{AH + 4 + n}"))
        hs += [I(f"v_cvt_pk_bf16_f32 v{AH + 4}, v{AH}, v{AH + 1}"), I(f"v_cvt_pk_bf16_f32 v{AH + 5}, v{AH + 2}, v{AH + 3}"),
               I(f"ds_write_b64 {vHX}, {vr(AH + 4, 2)}")]
        QF, KF, VF, KP, VP, PF, PP = 64, 72, 80, 88, 96, 100, 108
        vMK, vKA, vVA = "v112", "v113", "v114"
        hs += [I(f"v_mov_b32 v{VP + 2}, 0"), I(f"v_mov_b32 v{VP + 3}, 0"), I(f"v_mov_b32 v{PP + 2}, 0"), I(f"v_mov_b32 v{PP + 3}, 0"),
               I(f"v_cmp_gt_u32 vcc, 32, {vL}"), I(f"s_lshr_b32 s62, {sWB}, 1"), I(f"s_lshr_b32 s63, {sWB}, 3"),
               I(f"v_cndmask_b32 {vMK}, 0, -1, vcc"),
               I(f"v_add_u32 {vKA}, s62, {vL16}"), I(f"v_lshl_add_u32 {vVA}, {vL}, 3, s63"),
               I(f"v_and_b32 v253, 31, {vL}"), I("v_cmp_eq_u32 s[64:65], 28, v253"), I("v_mov_b32 v254, 0x3f803f80"),
               I(f"s_lshl_b32 s66, {sH}, 11"), I(f"s_add_u32 s66, s66, {sQ}"), I(f"s_add_u32 s66, s66, {Q_O}"),
               I(f"s_lshl_b32 s67, {sRB}, 9"), I(f"s_lshl_b32 s63, {sW}, 7"), I("s_add_u32 s67, s67, s63"),
               I(f"s_lshl_b32 s63, {sJ}, 2"), I("s_add_u32 s67, s67, s63"), I(f"s_add_u32 s67, s67, {WS_FO}")]
        for s in range(24, 28):
            step(s, [(vq, (1, 1, 0)), (hs, 4)])
        p(vq); p(hs)
        self.stamp("gemm1")
        for n in range(8): p(f"v_cvt_pk_bf16_f32 v{QF + n}, v{AQ + 2 * n}, v{AQ + 2 * n + 1}")
        for n in range(8): p(f"v_cvt_pk_bf16_f32 v{KF + n}, v{AK + 2 * n}, v{AK + 2 * n + 1}")
        for n in (6, 7): p(f"v_and_b32 v{QF + n}, {vMK}, v{QF + n}")
        wr = [p(f"ds_write_b128 {vKA}, {vr(KF + 4 * f, 4)} offset:{L_KX + 4096 + f * 1024}") for f in range(2)]
        for n in (6, 7): p(f"v_cvt_pk_bf16_f32 v{VF + n}, v{AV + 2 * n}, v{AV + 2 * n + 1}")
        wr.append(p(f"ds_write_b64 {vVA}, {vr(VF + 6, 2)} offset:{L_VX + 1024}"))
        p(f"v_mfma_f32_32x32x16_bf16 {vr(SC, 16)}, {vr(KF, 4)}, {vr(QF, 4)}, {vr(SC, 16)}")
        p(f"v_mfma_f32_32x32x16_bf16 {vr(SC, 16)}, {vr(KF + 4, 4)}, {vr(QF + 4, 4)}, {vr(SC, 16)}")
        p.wait(wr)
        p("s_barrier")
        rk = [p(f"ds_read_b128 {vr(KP + 4 * f, 4)}, {vKA} offset:{L_KX + f * 1024}") for f in range(2)]
        rv = p(f"ds_read_b64 {vr(VP, 2)}, {vVA} offset:{L_VX}")
        for n in range(6): p(f"v_cvt_pk_bf16_f32 v{VF + n}, v{AV + 2 * n}, v{AV + 2 * n + 1}")
        for n in range(8): p(f"v_cndmask_b32 v{VF + n}, v{VF + n}, v254, s[64:65]")
        p.wait(rk[0])
        p(f"v_mfma_f32_32x32x16_bf16 {vr(SP, 16)}, {vr(KP, 4)}, {vr(QF, 4)}, {vr(SP, 16)}")
        p.wait(rk[1])
        p(f"v_mfma_f32_32x32x16_bf16 {vr(SP, 16)}, {vr(KP + 4, 4)}, {vr(QF + 4, 4)}, {vr(SP, 16)}")
        m, t = 116, 117
        p(f"v_max3_f32 v{m}, v{SC}, v{SC + 1}, v{SC + 2}")
        for n in range(3, 15, 2): p(f"v_max3_f32 v{m}, v{m}, v{SC + n}, v{SC + n + 1}")
        p.wait(rv)
        for n in range(2): p(f"v_cndmask_b32 v{VP + n}, v{VP + n}, v254, s[64:65]")
        p(f"v_max3_f32 v{m}, v{m}, v{SC + 15}, v{SP + 12}")
        p(f"v_max3_f32 v{m}, v{m}, v{SP + 13}, v{SP + 14}")
        p(f"v_max_f32 v{m}, v{m}, v{SP + 15}")
        p(f"v_mov_b32 v{t}, v{m}")
        cs = 28 ** -0.5 * math.log2(math.e)
        p(f"s_mov_b32 s62, {fb(cs)}")
        p(f"s_mov_b32 s63, {fb(cs)}")
        p(f"v_permlane32_swap_b32 v{m}, v{t}")
        p(f"v_max_f32 v{m}, v{m}, v{t}")
        p(f"v_mul_f32 v{m}, {fb(-cs)}, v{m}")
        rs = [SC + n for n in range(0, 16, 2)] + [SP + 12, SP + 14]
        for r in rs: p(f"v_pk_fma_f32 {vr(r, 2)}, {vr(r, 2)}, s[62:63], {vr(m, 2)} op_sel_hi:[1,1,0]")
        for n, r in enumerate(rs):
            p(f"v_exp_f32 v{r}, v{r}")
            p(f"v_exp_f32 v{r + 1}, v{r + 1}")
            if n > 0: p(f"v_cvt_pk_bf16_f32 v{PF + n - 1}, v{rs[n - 1]}, v{rs[n - 1] + 1}")
            if n == 5: p(f"v_mfma_f32_32x32x16_bf16 {vr(AQ, 16)}, {vr(VF, 4)}, {vr(PF, 4)}, 0")
        p(f"v_mfma_f32_32x32x16_bf16 {vr(AQ, 16)}, {vr(VF + 4, 4)}, {vr(PF + 4, 4)}, {vr(AQ, 16)}")
        p(f"v_cvt_pk_bf16_f32 v{PF + 9}, v{rs[9]}, v{rs[9] + 1}")
        p(f"v_mfma_f32_32x32x16_bf16 {vr(AQ, 16)}, {vr(VP, 4)}, {vr(PP, 4)}, {vr(AQ, 16)}")
        p(f"v_mov_b32 v{m}, v{AQ + 12}")
        p(f"v_permlane32_swap_b32 v{AQ + 12}, v{m}")
        p(f"v_rcp_f32 v{m}, v{m}")
        st = []
        for f in range(2):
            for n in range(0, 8, 2):
                p(f"v_pk_mul_f32 {vr(AQ + 8 * f + n, 2)}, {vr(AQ + 8 * f + n, 2)}, {vr(m, 2)} op_sel_hi:[1,0]")
            for n in range(4):
                p(f"v_cvt_pk_bf16_f32 v{QF + 4 * f + n}, v{AQ + 8 * f + 2 * n}, v{AQ + 8 * f + 2 * n + 1}")
            if f == 1:
                for n in (6, 7): p(f"v_and_b32 v{QF + n}, {vMK}, v{QF + n}")
            st.append(p(f"buffer_store_dwordx4 {vr(QF + 4 * f, 4)}, {vL16}, {WS}, s66 offen offset:{f * 1024}"))
        self.o_st = st
        self.stamp("attn")
        p.wait(self.wo_ld)
        p("s_barrier")

    def finish(self):
        p = self.p
        if any(o.startswith("sc_") for o in self.opt):
            self.stamp("end")
            lab = p.label("SPIN")
            p("s_add_u32 s98, s98, 6000")
            p(lab + ":")
            e = p("s_memrealtime s[100:101]")
            p.wait(e)
            p("s_sub_u32 s100, s100, s98")
            p("s_cmp_lt_i32 s100, 0")
            p(f"s_cbranch_scc1 {lab}")
        if self.stamps:
            e = p(f"s_memrealtime s[{STAMP0}:{STAMP0 + 1}]")
            p.wait(e)
            p(f"v_writelane_b32 v255, s{STAMP0}, 62")
            e = p(f"s_memtime s[{STAMP0}:{STAMP0 + 1}]")
            p.wait(e)
            p(f"v_writelane_b32 v255, s{STAMP0}, 63")
            p("s_lshl_b32 s62, s2, 10")
            p(f"s_add_u32 s62, s62, {WS_DBG}")
            p(f"v_lshlrev_b32 v254, 2, {vTID}")
            p(f"buffer_store_dword v255, v254, {WS}, s62 offen")
        p("s_endpgm")

    def nonce_duty(self):
        p = self.p
        p(f"s_lshl_b32 s62, {sW}, 8")
        p("s_add_u32 s62, s62, s2")
        lab = self.cond(f"s_cmp_eq_u32 s62, {3 * 256 + 255}", 0)
        p(f"v_lshrrev_b32 v32, 2, {vL}")
        p(f"v_and_b32 v33, 3, {vL}")
        p("v_lshlrev_b32 v32, 7, v32")
        p(f"v_lshl_add_u32 {vPA}, v33, 4, v32")
        p(f"s_movk_i32 s62, {WS_XCC}")
        chk = []
        for n in range(4): chk.append(f"v_xor_b32 v{40 + n}, {sN}, v{40 + n}")
        chk += ["v_or3_b32 v40, v40, v41, v42", "v_or_b32 v40, v40, v43", "v_cmp_gt_u32 vcc, 8, v40"]
        self.poll([f"buffer_load_dwordx4 v[40:43], {vPA}, {WS}, s62 offen sc1"], chk)
        p(f"buffer_store_dword {vN}, off, {WS}, 0 sc1")
        self.endcond(lab)

    def build(self):
        p = self.p
        self.prologue()
        self.mod_job()
        p(self.wq_group(2)); p(self.wq_group(3))
        self.h_job()
        self.vec_gather()
        self.phase1()
        import phases2
        phases2.rest(self)
        body = p.text()
        hdr = open("cdna_kernels/%s.s.ref" % NAME).read().split("; Override launch")[0]
        s = hdr + "; @launch grid=(256,1,1) block=(256,1,1) lds=163840\n"
        s += f'.amdgcn_target "amdgcn-amd-amdhsa--gfx950"\n.text\n.globl {NAME}_kernel\n.p2align 8\n.type {NAME}_kernel,@function\n{NAME}_kernel:\n'
        s += body + "".join(self.ool) + "L_END:\n    s_endpgm\n"
        s += f""".section .rodata,"a"
.p2align 6
.amdhsa_kernel {NAME}_kernel
  .amdhsa_next_free_vgpr 512
  .amdhsa_next_free_sgpr 102
  .amdhsa_accum_offset 256
  .amdhsa_group_segment_fixed_size 0
  .amdhsa_kernarg_size 104
  .amdhsa_user_sgpr_count 2
  .amdhsa_user_sgpr_kernarg_segment_ptr 1
  .amdhsa_system_sgpr_workgroup_id_x 1
  .amdhsa_float_denorm_mode_32 3
.end_amdhsa_kernel
"""
        return s


if __name__ == "__main__":
    import argparse
    ap = argparse.ArgumentParser()
    ap.add_argument("-o", default="cdna_kernels/%s.s" % NAME)
    ap.add_argument("--stop", type=int, default=99)
    ap.add_argument("--stamps", action="store_true")
    ap.add_argument("--slow", action="store_true")
    ap.add_argument("--opt", default="")
    a = ap.parse_args()
    sys.modules["kern"] = sys.modules["__main__"]
    k = K(a.stop, a.stamps, a.slow, a.opt.split(","))
    s = k.build()
    open(a.o, "w").write(s)
    if a.stamps:
        open(a.o + ".stamps", "w").write("\n".join(k.stamp_names))
    print("lines", s.count("\n"), "nops", k.p.nnop)
```

```python
from kern import *

def kb32(s):
    return 32 * (s >> 1) + 8 * (s & 1)

def rounds(p, n, dq, rq, fq=None, nr=8, nf=0):
    for _ in range(n):
        if dq: p(dq.pop(0))
        for i in range(nr):
            if rq: p(rq.pop(0))
            if fq and i < nf: p(fq.pop(0))

def nonce_duty(k):
    p = k.p
    p(f"s_lshl_b32 s62, {sW}, 8")
    p("s_add_u32 s62, s62, s2")
    lab = k.cond(f"s_cmp_eq_u32 s62, {3 * 256 + 255}", 0)
    p(f"v_lshrrev_b32 v32, 2, {vL}")
    p(f"v_and_b32 v33, 3, {vL}")
    p("v_lshlrev_b32 v32, 7, v32")
    p(f"v_lshl_add_u32 {vPA}, v33, 4, v32")
    p(f"s_movk_i32 s62, {WS_XCC}")
    chk = [f"v_xor_b32 v{40 + n}, {sN}, v{40 + n}" for n in range(4)]
    chk += ["v_or3_b32 v40, v40, v41, v42", "v_or_b32 v40, v40, v43", "v_cmp_gt_u32 vcc, 8, v40"]
    k.poll([f"buffer_load_dwordx4 v[40:43], {vPA}, {WS}, s62 offen sc1"], chk)
    p(f"buffer_store_dword {vN}, off, {WS}, 0 sc1")
    k.endcond(lab)

def idle_path(k):
    p = k.p
    AC, AG, FA, FB = 64, 68, 80, 96
    p("s_sub_u32 s66, s2, 224")
    p("s_min_u32 s66, s66, 27")
    p(f"v_and_b32 v32, 15, {vL}")
    p("s_lshl_b32 s62, s66, 2")
    p(f"s_add_u32 s62, s62, {sW}")
    p("s_lshl_b32 s63, s62, 5")
    p("v_lshl_add_u32 v33, v32, 1, s63")
    b1 = p("global_load_ushort v34, v33, s[36:37]")
    p("s_lshl_b32 s63, s62, 2")
    p(f"s_add_u32 s67, s63, {WS_FE}")
    p("s_lshr_b32 s63, s62, 1")
    p("s_lshl_b32 s63, s63, 10")
    p("s_and_b32 s62, s62, 1")
    p("s_lshl_b32 s62, s62, 8")
    p("s_add_u32 s62, s62, s63")
    p(f"s_add_u32 s68, s62, {WS_EXT}")
    p("s_lshl_b32 s62, s66, 6")
    p(f"s_add_u32 s69, s62, {WS_GRAM}")
    p("v_mov_b32 v33, 3072")
    for row, off in ((0, 896), (1, 0), (4, 2048)):
        p(f"v_cmp_eq_u32 vcc, {row}, v32")
        p(f"v_mov_b32 v35, {off}")
        p("v_cndmask_b32 v33, v33, v35, vcc")
    p(f"v_lshrrev_b32 v35, 5, {vL}")
    p("v_lshl_add_u32 v33, v35, 5, v33")
    p(f"v_bfe_u32 v35, {vL}, 4, 1")
    p("v_lshl_add_u32 v33, v35, 3, v33")
    p(f"v_add_u32 v33, {L_ET}, v33")
    p(f"s_lshl_b32 s62, {sW}, 5")
    p(f"v_xor_b32 v35, s62, v{vT16[0]}")
    p(f"v_add_u32 v35, {L_WO}, v35")
    rd = {}
    def read(s):
        for e in range(2):
            p(f"ds_read_b64 {vr(FA + 4 * (s % 3) + 2 * e, 2)}, v33 offset:{s * 64 + e * 16}")
            rd[s] = p(f"ds_read_b64_tr_b16 {vr(FB + 4 * (s % 3) + 2 * e, 2)}, v35 offset:{s * 4096 + e * 1024}")
    read(0); read(1)
    for s in range(14):
        if s + 2 < 14: read(s + 2)
        p.wait(rd[s])
        a = vr(FA + 4 * (s % 3), 4)
        p(f"v_mfma_f32_16x16x32_bf16 {vr(AC, 4)}, {a}, {vr(FB + 4 * (s % 3), 4)}, {'0' if s == 0 else vr(AC, 4)}")
        p(f"v_mfma_f32_16x16x32_bf16 {vr(AG, 4)}, {a}, {a}, {'0' if s == 0 else vr(AG, 4)}")
        if s == 5: k.publish(k.o_st, sU[5])
    p(f"v_cvt_pk_bf16_f32 v41, v{AC}, v{AC + 1}")
    p("v_lshlrev_b32 v44, 16, v41")
    p("v_and_b32 v45, 0xffff0000, v41")
    p(f"v_sub_f32 v46, v{AC}, v44")
    p(f"v_sub_f32 v47, v{AC + 1}, v45")
    p("v_cvt_pk_bf16_f32 v40, v44, v46")
    p("v_cvt_pk_bf16_f32 v42, v47, v45")
    p(f"v_cmp_gt_u32 vcc, 16, {vL}")
    p.wait(b1)
    p("v_lshl_or_b32 v43, v34, 16, v34")
    p("v_cndmask_b32 v43, 0, v43, vcc")
    p(f"v_lshlrev_b32 v33, 3, {vL}")
    lab = k.cond("s_cmp_lt_u32 s2, 252", 0)
    p("s_mov_b32 exec_hi, 0")
    st = [p(f"buffer_store_dwordx4 v[40:43], {vF16}, {WS}, s68 offen sc1")]
    p("s_mov_b32 exec_lo, 0xff")
    st.append(p(f"buffer_store_dwordx2 {vr(AG, 2)}, v33, {WS}, s69 offen sc1"))
    p("s_mov_b64 exec, -1")
    p.wait(st)
    p(f"buffer_store_dword {vN}, off, {WS}, s67 sc1")
    k.endcond(lab)
    k.stamp("ext")
    nonce_duty(k)
    p(f"v_lshlrev_b32 v32, 7, {vL}")
    p(f"s_and_b32 s62, {sJ}, 1")
    p("s_mul_i32 s62, s62, 40960")
    p(f"s_add_u32 s62, s62, {sQ}")
    p(f"s_add_u32 s62, s62, 32768")
    p(f"s_lshr_b32 s63, {sRB}, 3")
    p("s_lshl_b32 s63, s63, 1")
    p(f"s_and_b32 s64, {sJ}, 1")
    p("s_add_u32 s63, s63, s64")
    p(f"s_mul_i32 s64, {sW}, 49")
    p("s_add_u32 s63, s63, s64")
    p("s_lshl_b32 s63, s63, 13")
    for n in range(13):
        if n < k.o("nw2t", 6):
            p(f"buffer_load_dword v33, v32, {W2}, s63 offen")
            p(f"s_add_u32 s63, s63, {4 * 8192}")
        if n < 5 and 'hsc1' not in k.opt:
            p(f"buffer_load_dword v33, v32, {WS}, s62 offen sc1")
            p("s_add_u32 s62, s62, 8192")
    k.finish()


def phase2(k):
    p = k.p
    OF, AC, XV, GA, SB, SS, GB, B2, T, PK, S = 32, 96, 112, 128, 144, 160, 176, 208, 224, 240, 32
    TB = [248, 249, 250, 251]
    sW1B, sW1A, sO, sA, sST, sFA = sU[0], sU[1], sU[2], sU[3], sU[6], sU[7]
    a, b = 252, 253
    p(f"s_lshl_b32 {sW1A}, {sJ}, 8")
    p(f"s_mul_i32 s62, {sW}, {112 * 3584}")
    p(f"s_add_u32 {sW1A}, {sW1A}, s62")
    p(f"s_add_u32 {sW1B}, {sW1A}, 128")
    for nt in range(4):
        p(f"v_add_u32 v{TB[nt]}, {L_WO}, v{vT16[nt]}")
    p.wait(k.wo_ld)
    p("s_barrier")
    p(f"s_cmp_lt_u32 {sJ}, 14")
    p("s_cbranch_scc0 L_IDLE")
    w1b = k.strip_dma(W1, vSB, sW1B, 32 * 3584, sW14, L_W1B)
    rd = [I(f"ds_read_b64_tr_b16 {ar(16 * h + 4 * nt + 2 * e, 2)}, v{TB[nt ^ (h & 1)]} offset:{28 * h * 128 + e * 1024}")
          for h in range(16) for nt in range(4) for e in range(2)]
    rdl = list(rd)
    pre = Is(f"v_lshrrev_b32 v{a}, 4, {vL}", f"v_and_b32 v{b}, 15, {vL}",
             f"s_lshl_b32 s63, {sMH}, 1", f"s_lshr_b32 s64, {sW}, 1", "s_add_u32 s63, s63, s64", "s_lshl_b32 s63, s63, 7",
             f"s_lshl_b32 s64, {sRB}, 9", "s_add_u32 s63, s63, s64",
             f"s_add_u32 s64, s63, {WS_FO}", f"v_lshl_add_u32 {vPA}, v{b}, 2, s64",
             f"s_and_b32 s65, {sW}, 1", "s_lshl_b32 s64, s65, 3", f"s_add_u32 s64, s64, {sNT}", "s_lshl_b32 s64, s64, 2", "s_add_u32 s63, s63, s64",
             f"s_add_u32 {sFA}, s63, {WS_FA}",
             "s_lshl_b32 s63, s65, 8", f"s_add_u32 {sO}, {sQ2}, s63",
             "s_mul_i32 s63, s65, 14336", f"s_add_u32 {sA}, {sQ2}, s63", f"s_lshl_b32 s63, {sNT}, 11", f"s_add_u32 {sA}, {sA}, s63",
             f"s_add_u32 {sA}, {sA}, {Q_A}",
             "s_mul_i32 s63, s65, 3584", f"s_add_u32 {sST}, {sQ2}, s63", f"s_lshl_b32 s63, {sNT}, 9", f"s_add_u32 {sST}, {sST}, s63",
             f"s_add_u32 {sST}, {sST}, {Q_ST}",
             f"v_lshlrev_b32 v{T}, 7, v{b}", f"v_lshl_add_u32 v{T}, v{a}, 3, v{T}", f"s_lshr_b32 s63, {sWB}, 1", f"s_add_u32 s63, s63, {L_XT}",
             f"v_add_u32 v{T}, s63, v{T}", f"v_lshlrev_b32 v{T + 1}, 4, v{a}", f"v_add_u32 v{T + 1}, {L_VEC}, v{T + 1}",
             f"v_lshrrev_b32 v{a}, 5, {vL}", f"v_lshlrev_b32 v{a}, 8, v{a}", f"v_lshl_add_u32 v21, v{b}, 4, v{a}")
    pre += k.vi
    n1, n2 = k.o("o_r1", 5), k.o("o_r2", 7)
    rounds(p, n1, w1b, rd, pre, nf=6)
    k.publish(k.o_st, sU[5])
    k.stamp("opub")
    rounds(p, n2, w1b, rd, pre, nf=6)
    p(pre)
    k.stamp("wopre")
    k.poll_flags()
    k.stamp("opoll")
    oq, old = [], []
    for h in range(16):
        x = I(f"buffer_load_dwordx4 {vr(OF + 4 * h, 4)}, {vF16}, {WS}, {sO} offen offset:{Q_O + (h & 1) * 2048} sc1")
        old.append(x)
        oq.append([x, I(f"s_add_u32 {sO}, {sO}, 4096")] if h & 1 and h < 15 else [x])
    PRE = k.o("g2pre", 6)
    xr = [I(f"ds_read_b64 {vr(PK + 2 * n, 2)}, v{T} offset:{n * 32}") for n in range(4)]
    vrd = [I(f"ds_read_b128 {vr(reg + 4 * n, 4)}, v{T + 1} offset:{vi * 256 + n * 64}") for vi, reg in ((0, GA), (2, SS), (1, SB), (3, GB), (4, B2)) for n in range(4)]
    rd += xr
    rounds(p, PRE, oq, rd, nr=6)
    p(rd)
    w1a = k.strip_dma(W1, vSB, sW1A, 32 * 3584, sW14, L_W1A)
    k.w1b_last = w1b[-1][-1] if w1b else None
    fill = [W(xr)]
    for n in range(8):
        fill += Is(f"v_lshlrev_b32 v{XV + 2 * n}, 16, v{PK + n}", f"v_and_b32 v{XV + 2 * n + 1}, 0xffff0000, v{PK + n}")
    dq = oq + w1b
    p.wait(old[0], rdl[7])
    for h in range(16):
        for nt in range(4):
            p(f"v_mfma_f32_16x16x32_bf16 {vr(AC + 4 * nt, 4)}, {ar(16 * h + 4 * nt, 4)}, {vr(OF + 4 * h, 4)}, {'0' if h == 0 else vr(AC + 4 * nt, 4)}")
            if nt == 0:
                x = dq.pop(0) if dq else w1a.pop(0)
                if x: p(x)
                elif fill: p(fill.pop(0))
            elif nt == 3:
                if h < 15: p.wait(old[h + 1], rdl[8 * h + 15])
                if h == k.o("g2bar", 4):
                    p.wait(rdl[-1], k.vi[-1]); p("s_barrier")
                    fill += vrd
            elif fill:
                p(fill.pop(0))
    p(fill)
    k.stamp("gemm2")
    p.wait(vrd)
    st = []
    for u in range(2):
        for n in range(8 * u, 8 * u + 8, 2):
            p(f"v_pk_fma_f32 {vr(AC + n, 2)}, {vr(AC + n, 2)}, {vr(GA + n, 2)}, {vr(XV + n, 2)}")
        for n in range(8 * u, 8 * u + 8, 2):
            p(f"v_pk_mul_f32 {vr(T + n, 2)}, {vr(AC + n, 2)}, {vr(SS + n, 2)}")
        for n in range(4 * u, 4 * u + 4):
            p(f"v_cvt_pk_bf16_f32 v{PK + n}, v{T + 2 * n}, v{T + 2 * n + 1}")
        st.append(p(f"buffer_store_dwordx4 {vr(PK + 4 * u, 4)}, {vL16}, {WS}, {sA} offen offset:{u * 1024}"))
    terms = [(AC, None), (AC, AC), (T, None), (T, T), (T, SS), (T, SB)]
    for n in range(0, 16, 2):
        for si, (x, y) in enumerate(terms):
            d = vr(S + 2 * si, 2)
            if y is None:
                if n == 0: continue
                p(f"v_pk_add_f32 {d}, {vr(x, 2) if n == 2 else d}, {vr(x + n, 2)}")
            elif n == 0:
                p(f"v_pk_mul_f32 {d}, {vr(x, 2)}, {vr(y, 2)}")
            else:
                p(f"v_pk_fma_f32 {d}, {vr(x + n, 2)}, {vr(y + n, 2)}, {d}")
    for si in (0, 3, 1, 4, 2, 5):
        p(f"v_add_f32 v{S + 2 * si}, v{S + 2 * si}, v{S + 2 * si + 1}")
    for n in range(3):
        p(f"v_permlane32_swap_b32 v{S + 2 * n}, v{S + 6 + 2 * n}")
    for n in range(3):
        p(f"v_add_f32 v{S + 12 + n}, v{S + 2 * n}, v{S + 6 + 2 * n}")
        p(f"v_add_f32 v{S + 16 + n}, v{S + 2 * n}, v{S + 6 + 2 * n}")
    for n in range(3):
        p(f"v_permlane16_swap_b32 v{S + 12 + n}, v{S + 16 + n}")
    for n in range(3):
        p(f"v_add_f32 v{S + 12 + n}, v{S + 12 + n}, v{S + 16 + n}")
    st.append(p(f"buffer_store_dwordx4 {vr(S + 12, 4)}, v21, {WS}, {sST} offen"))
    k.stamp("epi2")
    k.a_st, k.sFA, k.w1a = st, sFA, w1a
    keep = [I(f"v_pk_fma_f32 {vr(AC + n, 2)}, {vr(B2 + n, 2)}, {vr(GB + n, 2)}, {vr(AC + n, 2)}") for n in range(0, 16, 2)]
    for n in range(16):
        keep += Is(f"v_accvgpr_write_b32 a{224 + n}, v{AC + n}", f"v_accvgpr_write_b32 a{240 + n}, v{GB + n}")
    k.keep = keep


def w2_dma(slot, sW2):
    out = []
    for e in range(4):
        g = [I(f"s_add_u32 m0, {sWB}, {W2SLOT[slot]}"), I(f"s_add_u32 {sW2}, {sW2}, {32 * 896}")] if e == 0 else []
        out.append(g + [I(f"buffer_load_dwordx4 v{vSA[e]}, {W2}, {sW2} offen offset:{e * 1024} lds")])
    return out

def phase3(k):
    p = k.p
    AF, AC, WB, EX, AE = 32, 144, 208, 232, 248
    C1, C3, BE = 252, 253, 254
    RAW, R, G4, G2 = AF + 84, 192, 204, 30
    TA = [18, 19]
    vA3, vST, vEF = "v20", "v21", "v22"
    sA, sST, sW2, sD0, sD1, sFD = sU[0], sU[2], sU[3], sU[4], sU[5], sU[6]
    k.sW2, k.sFD = sW2, sFD
    w1a = k.w1a
    p(f"v_and_b32 v29, 7, {vL}")
    p(f"s_lshl_b32 s62, {sJ}, 5")
    p(f"s_add_u32 s62, s62, {WS_FE}")
    p(f"v_lshl_add_u32 {vEF}, v29, 2, s62")
    efl = f"buffer_load_dword {vPD}, {vEF}, {WS}, 0 offen sc1"
    ef = p(efl)
    if k.w1b_last is not None:
        p.wait(k.w1b_last); p("s_barrier")
    rd = [I(f"ds_read_b64_tr_b16 {ar(112 * t + 4 * s + 2 * e, 2)}, v{vT32[t]} offset:{L_W1B + (kb32(s) + 16 * e) * 128}")
          for t in range(2) for s in range(28) for e in range(2)]
    rdl = list(rd)
    keep = k.keep
    rounds(p, k.o("a_r1", 5), w1a, rd, keep, nf=4)
    k.publish(k.a_st, k.sFA)
    k.stamp("apub")
    pre = keep + Is(f"v_add_u32 v{TA[0]}, {L_W1A}, v{vT32[0]}", f"v_add_u32 v{TA[1]}, {L_W1A}, v{vT32[1]}",
              f"v_bfe_u32 v25, {vL}, 4, 1", f"v_mul_u32_u24 {vA3}, 14336, v25", f"v_add_u32 {vA3}, {vA3}, {vST}",
              "v_mul_u32_u24 v25, 3584, v25", f"v_add_u32 {vST}, v25, {vST}",
              f"s_add_u32 {sA}, {sQ}, {Q_A}", f"s_add_u32 {sST}, {sQ}, {Q_ST}",
              "v_min_u32 v29, 6, v29", f"v_and_b32 {vPA}, 8, {vL}", f"v_or_b32 v29, v29, {vPA}",
              f"s_lshl_b32 s64, {sRB}, 9", f"s_lshl_b32 s65, {sW}, 7", "s_add_u32 s64, s64, s65", f"s_add_u32 s64, s64, {WS_FA}",
              f"v_lshl_add_u32 {vPA}, v29, 2, s64")
    rounds(p, len(w1a), w1a, rd, pre, nf=4)
    p(pre)
    p.wait(ef)
    p(k.recheck([efl], [f"v_cmp_eq_u32 vcc, {sN}, {vPD}"]))
    p(f"s_lshl_b32 s62, {sJ}, 12")
    p(f"s_add_u32 s62, s62, {WS_EXT}")
    p(f"s_lshl_b32 s63, {sJ}, 7")
    p(f"s_add_u32 s63, s63, {WS_GRAM}")
    eq = [I(f"buffer_load_dwordx4 {vr(G4, 4)}, off, {WS}, s63 sc1"), I(f"buffer_load_dwordx2 {vr(G2, 2)}, off, {WS}, s63 offset:32 sc1")]
    eq += [I(f"buffer_load_dwordx4 {vr(EX + 4 * t, 4)}, {vL16}, {WS}, s62 offen offset:{t * 1024} sc1") for t in range(4)]
    eql = list(eq)
    ne = k.o("a_ext", 2)
    rounds(p, ne, eq, rd, nr=4)
    k.stamp("w1pre")
    p(f"s_mov_b32 s66, s62")
    for x in eq: x.text = x.text.replace("s62", "s66")
    k.poll_flags()
    k.stamp("apoll")
    ald, aq = [], []
    for s in range(28):
        x = I(f"buffer_load_dwordx4 {vr(AF + 4 * s, 4)}, {vA3}, {WS}, {sA} offen offset:{(s % 8) * 512} sc1")
        ald.append(x)
        aq.append([x, I(f"s_add_u32 {sA}, {sA}, 4096")] if s % 8 == 7 else [x])
    sld = [I(f"buffer_load_dwordx4 {vr(RAW + 4 * n, 4)}, {vST}, {WS}, {sST} offen offset:{n * 512} sc1") for n in range(7)]
    wrd = {}
    def wread(s):
        wrd[s] = [I(f"ds_read_b64_tr_b16 {vr(WB + 8 * (s % 3) + 4 * t + 2 * e, 2)}, v{TA[t]} offset:{(kb32(s) + 16 * e) * 128}")
                  for t in range(2) for e in range(2)]
        return list(wrd[s])
    p(aq.pop(0)); p(aq.pop(0))
    p("s_barrier")
    rd = wread(0) + wread(1) + rd
    PRE = k.o("p1pre", 6)
    rounds(p, PRE - 2, aq, rd)
    p(rd)
    post = Is(f"s_mul_i32 {sW2}, {sW}, {448 * 896}", f"s_lshl_b32 s62, {sNT}, 7", f"s_add_u32 {sW2}, {sW2}, s62", f"s_sub_u32 {sW2}, {sW2}, {32 * 896}",
              f"s_lshl_b32 {sD0}, {sJ}, 13", f"s_add_u32 {sD0}, {sD0}, {sQ}", f"s_add_u32 {sD1}, {sD0}, 4096",
              f"s_lshl_b32 s62, {sRB}, 8", f"s_lshl_b32 s63, {sW}, 6", "s_add_u32 s62, s62, s63", f"s_lshl_b32 s63, {sJ}, 2",
              "s_add_u32 s62, s62, s63", f"s_add_u32 {sFD}, s62, {WS_FD}")
    D = 448.0
    A_ = -2.0 * math.sqrt(2.0 / math.pi) * math.log2(math.e)
    B_ = A_ * 0.044715
    sm = [W(sld, eql[:2])]
    def v(t): sm.append(I(t))
    for n in range(3):
        v(f"v_add_f32 v{R + n}, v{RAW + n}, v{RAW + 4 + n}")
        v(f"v_add_f32 v{R + 4 + n}, v{RAW + 8 + n}, v{RAW + 12 + n}")
        v(f"v_add_f32 v{R + 8 + n}, v{RAW + 16 + n}, v{RAW + 20 + n}")
        v(f"v_add_f32 v{R + n}, v{R + n}, v{RAW + 24 + n}")
    nraw = len(sm)
    for n in range(3):
        v(f"v_add_f32 v{R + 4 + n}, v{R + 4 + n}, v{R + 8 + n}")
    for n in range(3):
        v(f"v_add_f32 v{R + n}, v{R + n}, v{R + 4 + n}")
    for n in range(3):
        v(f"v_mov_b32 v{R + 4 + n}, v{R + n}")
    v(f"v_cmp_gt_u32 s[64:65], 32, {vL}")
    for n in range(3):
        v(f"v_permlane32_swap_b32 v{R + n}, v{R + 4 + n}")
    S1, S2, S3, S4, S5, S6 = R, R + 1, R + 2, R + 4, R + 5, R + 6
    mu, v1, sg1, gm, e2, t0, t1, rho = R, R + 1, R + 3, R + 7, R + 8, R + 9, R + 10, R + 11
    Gss, Gsb, Gbb, Gs, Gb = G4, G4 + 1, G4 + 3, G2, G2 + 1
    v(f"v_mul_f32 v{mu}, {fb(-1 / D)}, v{S1}")
    v(f"v_mul_f32 v{v1}, {fb(1 / D)}, v{S2}")
    v(f"v_fma_f32 v{v1}, -v{mu}, v{mu}, v{v1}")
    v(f"v_max_f32 v{v1}, 0, v{v1}")
    v(f"v_add_f32 v{v1}, {fb(1e-5)}, v{v1}")
    v(f"v_sqrt_f32 v{sg1}, v{v1}")
    v(f"v_fma_f32 v{gm}, v{mu}, v{Gs}, v{S3}")
    v(f"v_fma_f32 v{t0}, v{mu}, v{Gsb}, v{S6}")
    v(f"v_fma_f32 v{gm}, v{sg1}, v{Gb}, v{gm}")
    v(f"v_mul_f32 v{gm}, {fb(-1 / D)}, v{gm}")
    v(f"v_mul_f32 v{t0}, v{sg1}, v{t0}")
    v(f"v_fma_f32 v{t0}, v{mu}, v{S5}, v{t0}")
    v(f"v_mul_f32 v{t1}, v{mu}, v{mu}")
    v(f"v_fma_f32 v{e2}, v{t1}, v{Gss}, v{S4}")
    v(f"v_fma_f32 v{e2}, v{v1}, v{Gbb}, v{e2}")
    v(f"v_fma_f32 v{e2}, 2.0, v{t0}, v{e2}")
    v(f"v_mul_f32 v{e2}, {fb(1 / D)}, v{e2}")
    v(f"v_fma_f32 v{e2}, -v{gm}, v{gm}, v{e2}")
    v(f"v_max_f32 v{e2}, 0, v{e2}")
    v(f"v_fmac_f32 v{e2}, {fb(1e-5)}, v{v1}")
    v(f"v_sqrt_f32 v{BE}, v{e2}")
    v(f"v_rsq_f32 v{rho}, v{e2}")
    v(f"v_cndmask_b32 v{mu}, v{gm}, v{mu}, s[64:65]")
    v(f"v_mul_f32 v{C1}, {fb(A_)}, v{rho}")
    v(f"v_mul_f32 v{t0}, v{rho}, v{rho}")
    v(f"v_mul_f32 v{t0}, v{t0}, v{rho}")
    v(f"v_mul_f32 v{C3}, {fb(B_)}, v{t0}")
    v(f"v_cvt_pk_bf16_f32 v{AE}, v{mu}, v{mu}")
    v(f"v_cvt_pk_bf16_f32 v{t0}, v{sg1}, v{BE}")
    v(f"v_and_b32 v{t1}, 0xffff0000, v{AE}")
    v(f"v_sub_f32 v{mu}, v{mu}, v{t1}")
    v(f"v_lshlrev_b32 v{t1}, 16, v{t0}")
    v(f"v_and_b32 v{t0}, 0xffff0000, v{t0}")
    v(f"v_sub_f32 v{sg1}, v{sg1}, v{t1}")
    v(f"v_sub_f32 v{e2}, v{BE}, v{t0}")
    v(f"v_cvt_pk_bf16_f32 v{AE + 1}, v{mu}, v{t1}")
    v(f"v_cvt_pk_bf16_f32 v{AE + 2}, v{t1}, v{sg1}")
    v(f"v_cvt_pk_bf16_f32 v{AE + 3}, v{t0}, v{e2}")
    nsm = len(sm)

    def mm(t, s):
        acc = vr(AC + 16 * t, 16)
        if s == 28:
            return I(f"v_mfma_f32_32x32x16_bf16 {acc}, {vr(EX + 4 * t, 4)}, {vr(AE, 4)}, {acc}")
        a = vr(WB + 8 * (s % 3) + 4 * t, 4) if t < 2 else ar(112 * (t - 2) + 4 * s, 4)
        return I(f"v_mfma_f32_32x32x16_bf16 {acc}, {a}, {vr(AF + 4 * s, 4)}, {'0' if s == 0 else acc}")
    w2q = []
    for sg in range(10): w2q += w2_dma(sg, sW2)
    k.w2_ld = {sg: w2q[4 * sg + 3][-1] for sg in range(10)}
    xq = list(sld)
    n2 = 0
    SM0 = k.o("p1sm", 11)
    p.wait(wrd[0], ald[0], rdl[-1])
    for s in range(28):
        nxt = wread(s + 2) if s + 2 < 28 else []
        if s == 28 - PRE:
            p("s_barrier")
            aq += eq + w2q[:PRE - len(eq)]; w2q = w2q[PRE - len(eq):]
        third = s < 7 or (s >= SM0 and n2 < k.o("p1n2", 14))
        fq = post if s < SM0 else sm
        p(mm(0, s)); p(nxt[:2])
        if s + PRE == 21: assert nsm - len(sm) >= nraw, "statistics registers still live"
        p(aq.pop(0))
        p(mm(1, s)); p(nxt[2:])
        take(p, fq, (3 if third else 2) + (0 if nxt else 2))
        if third:
            p(mm(2, n2)); n2 += 1
            bud = 4
            if xq: p(xq.pop(0)); bud -= 3
            take(p, fq, bud)
        if s < 27: p.wait(wrd[s + 1], ald[s + 1])
    assert not post
    p(sm)
    p.wait(eql)
    p(mm(0, 28)); p(mm(1, 28))
    p("s_barrier")
    k.stamp("p1")
    TM, PO = WB, WB + 8
    stores = []
    hfl = "sc1" if 'hsc1' in k.opt else ""
    def gelu(t, grp, pk):
        x = AC + 16 * t + 4 * grp
        tm = TM + 4 * (grp & 1)
        f = grp >> 1
        po = PO + 4 * ((2 * t + f) % 4) + 2 * (grp & 1)
        o = []
        if pk:
            o += [f"v_pk_mul_f32 {vr(tm + n, 2)}, {vr(x + n, 2)}, {vr(x + n, 2)}" for n in (0, 2)]
            o += [f"v_pk_fma_f32 {vr(tm + n, 2)}, {vr(tm + n, 2)}, {vr(C1, 2)}, {vr(C1, 2)} op_sel:[0,1,0] op_sel_hi:[1,1,0]" for n in (0, 2)]
            o += [f"v_pk_mul_f32 {vr(tm + n, 2)}, {vr(tm + n, 2)}, {vr(x + n, 2)}" for n in (0, 2)]
        else:
            o += [f"v_mul_f32 v{tm + n}, v{x + n}, v{x + n}" for n in range(4)]
            o += [f"v_fma_f32 v{tm + n}, v{tm + n}, v{C3}, v{C1}" for n in range(4)]
            o += [f"v_mul_f32 v{tm + n}, v{tm + n}, v{x + n}" for n in range(4)]
        o += [f"v_exp_f32 v{tm + n}, v{tm + n}" for n in range(4)]
        if pk:
            o += [f"v_pk_fma_f32 {vr(tm + n, 2)}, {vr(tm + n, 2)}, {vr(BE, 2)}, {vr(BE, 2)} op_sel_hi:[1,0,0]" for n in (0, 2)]
        else:
            o += [f"v_fma_f32 v{tm + n}, v{tm + n}, v{BE}, v{BE}" for n in range(4)]
        o += [f"v_rcp_f32 v{tm + n}, v{tm + n}" for n in range(4)]
        if pk:
            o += [f"v_pk_mul_f32 {vr(tm + n, 2)}, {vr(tm + n, 2)}, {vr(x + n, 2)}" for n in (0, 2)]
        else:
            o += [f"v_mul_f32 v{tm + n}, v{tm + n}, v{x + n}" for n in range(4)]
        o += [f"v_cvt_pk_bf16_f32 v{po + n}, v{tm + 2 * n}, v{tm + 2 * n + 1}" for n in range(2)]
        o = Is(*o)
        if grp & 1:
            x = I(f"buffer_store_dwordx4 {vr(po - 2, 4)}, {vL16}, {WS}, {sD0 if t < 2 else sD1} offen offset:{((2 * t + f) % 4) * 1024} {hfl}")
            stores.append(x); o.append(x)
        return o
    mq = [mm(2, s) for s in range(n2, 29)] + [mm(3, s) for s in range(29)]
    groups = [(t, g) for t in range(4) for g in range(4)]
    gi = 0
    cur = []
    for n, m in enumerate(mq):
        p(m)
        bud = 6
        if w2q and n % 2 == 0:
            bud -= cost(w2q[0]) + 1; p(w2q.pop(0))
        if n < 2: continue
        while bud > 0:
            if not cur:
                if n >= len(mq) - 3 or gi >= 8: break
                cur = gelu(*groups[gi], False); gi += 1
            if cost(cur[0]) > bud + (1 if bud == 6 else 0): break
            bud -= cost(cur[0]); p(cur.pop(0))
    p(cur)
    while gi < 16:
        g = gelu(*groups[gi], True); gi += 1
        p(g[:10])
        if w2q and gi < 16: p(w2q.pop(0))
        p(g[10:])
        if w2q and gi < 15: p(w2q.pop(0))
    k.w2q = w2q
    k.d_st = stores
    k.stamp("gelu")


def phase4(k):
    p = k.p
    HB, AC, RD, TB = 32, 160, 192, 240
    BS, GB = 128, 144
    NR = 24
    sW2 = k.sW2
    for b in range(3):
        p(f"s_add_u32 s62, {sWB}, {65536 * b}")
        for nt in range(4):
            p(f"v_add_u32 v{TB + 4 * b + nt}, s62, v{vT16[nt]}")
    lastrd = {}
    def wread(sg):
        base = W2SLOT[sg % 10]
        o = [I(f"ds_read_b64_tr_b16 {ar(16 * sg + 4 * nt + 2 * e, 2)}, v{TB + 4 * (base >> 16) + nt} offset:{(base & 0xffff) + e * 1024}")
             for nt in range(4) for e in range(2)]
        lastrd[sg] = o[-1]
        o[0] = [W(k.w2_ld[sg]), o[0]]
        return o
    rd = []
    for sg in range(10): rd += wread(sg)
    dq = list(k.w2q)
    for sg in range(10, 14):
        d = w2_dma(sg - 10, sW2)
        k.w2_ld[sg] = d[3][-1]
        d[0] = [W(lastrd[sg - 10])] + d[0]
        dq += d
    sM = [sU[0], sU[1], sU[2], sU[7]]
    vRW, vTW, vTR = "v18", "v19", "v20"
    vRR = ["v21", "v22", "v31"]
    pre = Is(f"s_mul_i32 s64, {sW}, 7", "s_lshr_b32 s64, s64, 1", f"v_and_b32 v29, 3, {vL}", "v_add_u32 v29, s64, v29",
             f"v_and_b32 v30, 4, {vL}", "v_lshl_add_u32 v29, v30, 2, v29",
             f"s_lshl_b32 s64, {sRB}, 8", f"s_lshl_b32 s63, {sMH}, 7", "s_add_u32 s64, s64, s63", f"s_add_u32 s64, s64, {WS_FD}",
             f"v_lshl_add_u32 {vPA}, v29, 2, s64",
             f"s_mul_i32 s64, {sMH}, {2 * QS}", f"s_add_u32 s64, s64, {sCL}", f"s_mul_i32 s63, {sW}, {28 * 1024}", "s_add_u32 s64, s64, s63")
    for rho in range(4):
        pre += Is(f"s_add_u32 s65, {sW}, {rho + 1}", "s_bfe_u32 s63, s65, 0x10001", f"s_mul_i32 s63, s63, {QS}", "s_and_b32 s65, s65, 1",
                  "s_lshl_b32 s65, s65, 8", "s_add_u32 s65, s65, s63", f"s_add_u32 {sM[rho]}, s65, s64")
    for c in range(16):
        pre += Is(f"v_accvgpr_read_b32 v{BS + c}, a{224 + c}", f"v_accvgpr_read_b32 v{GB + c}, a{240 + c}")
    post = Is(f"v_add_u32 {vRW}, {sWB}, {vL16}")
    for rho in range(3):
        post += Is(f"s_sub_u32 s62, {sW}, {rho + 1}", "s_and_b32 s62, s62, 3", "s_lshl_b32 s62, s62, 12", f"s_add_u32 s62, s62, {W2SLOT[4 + rho]}",
                   f"v_add_u32 {vRR[rho]}, s62, {vL16}")
    post2 = Is(f"s_add_u32 s62, {sWB}, {W2SLOT[7]}",
               f"v_and_b32 v29, 15, {vL}", "v_mul_u32_u24 v29, 144, v29", f"v_lshrrev_b32 v30, 4, {vL}", "v_lshl_add_u32 v29, v30, 3, v29", f"v_add_u32 {vTW}, s62, v29",
               f"v_lshrrev_b32 v29, 3, {vL}", "v_mul_u32_u24 v29, 144, v29", f"v_and_b32 v30, 7, {vL}", "v_lshl_add_u32 v29, v30, 4, v29", f"v_add_u32 {vTR}, s62, v29",
               f"s_add_u32 {sU[4]}, {sXROW}, 14336")
    p(rd[:8]); rd = rd[8:]
    rounds(p, k.o("d_r1", 5), dq, rd, pre, nr=5, nf=5)
    k.publish(k.d_st, k.sFD)
    k.stamp("dpub")
    rounds(p, len(dq), dq, rd, pre, nr=5, nf=5)
    p(rd); p(pre)
    k.stamp("w2pre")
    k.poll_flags()
    k.stamp("dpoll")
    hl, hq = [], []
    for rho in range(4):
        for sg in range(14):
            n = 14 * rho + sg
            x = I(f"buffer_load_dwordx4 {vr(HB + 4 * (n % NR), 4)}, {vF16}, {WS}, {sM[rho]} offen offset:{(sg & 1) * 2048} sc1")
            hl.append(x)
            hq.append([x, I(f"s_add_u32 {sM[rho]}, {sM[rho]}, 4096")] if sg & 1 and sg < 13 else [x])
    PRE = k.o("g4pre", 7)
    late = []
    for sg in range(10, 14): late += wread(sg)
    pq = hq[:PRE]
    rounds(p, PRE, pq, late, nr=5)
    p(late)
    fill = post
    p.wait(hl[0], lastrd[9])
    for n in range(56):
        rho, sg = divmod(n, 14)
        acc = AC + 16 * (rho & 1)
        if 'p4pass' in k.opt and sg == 0: k.stamp(f"pass{rho}")
        if sg == 2 and rho >= 1:
            pa = AC + 16 * ((rho - 1) & 1)
            fill.append(I(f"v_add_u32 v25, {W2SLOT[4 + rho - 1]}, {vRW}"))
            w_ = [I(f"ds_write_b128 v25, {vr(pa + 4 * c, 4)} offset:{c * 1024}") for c in range(4)]
            for x in w_: fill += [x, None]
            if rho == 1: fill += post2
            if rho >= 2:
                qs = (0, 1) if rho == 2 else (2,)
                fill.append([W(w_), I("s_barrier")])
                r_ = [I(f"ds_read_b128 {vr(RD + 16 * q + 4 * c, 4)}, {vRR[q]} offset:{c * 1024}") for q in qs for c in range(4)]
                fill += r_ + [None, None, W(r_)]
                for q in qs:
                    for c in range(0, 16, 2):
                        fill.append(Is(f"v_fmac_f32 v{BS + c}, v{RD + 16 * q + c}, v{GB + c}", f"v_fmac_f32 v{BS + c + 1}, v{RD + 16 * q + c + 1}, v{GB + c + 1}"))
        extra = None
        for nt in range(4):
            p(f"v_mfma_f32_16x16x32_bf16 {vr(acc + 4 * nt, 4)}, {ar(16 * sg + 4 * nt, 4)}, {vr(HB + 4 * (n % NR), 4)}, {'0' if sg == 0 else vr(acc + 4 * nt, 4)}")
            if nt == 0 and n + PRE < 56:
                p(hq[n + PRE][0]); extra = hq[n + PRE][1:]
            elif nt == 3:
                if n < 55: p.wait(hl[n + 1], lastrd[13] if n == 9 else None)
                if fill and not (isinstance(fill[0], Ent) and fill[0].kind == 'i' and fill[0].text.startswith("ds_write")): p(fill.pop(0))
            else:
                if extra: p(extra); extra = None
                if fill: p(fill.pop(0))
    p(fill)
    k.stamp("gemm4")
    acc = AC + 16
    wr = []
    for c in range(4):
        for n in (0, 2):
            p(f"v_pk_fma_f32 {vr(BS + 4 * c + n, 2)}, {vr(acc + 4 * c + n, 2)}, {vr(GB + 4 * c + n, 2)}, {vr(BS + 4 * c + n, 2)}")
        for n in range(2):
            p(f"v_cvt_pk_bf16_f32 v{RD + 2 * c + n}, v{BS + 4 * c + 2 * n}, v{BS + 4 * c + 2 * n + 1}")
        wr.append(p(f"ds_write_b64 {vTW}, {vr(RD + 2 * c, 2)} offset:{c * 32}"))
    r_ = [p(f"ds_read_b128 {vr(RD + 8 + 4 * u, 4)}, {vTR} offset:{u * 8 * 144}") for u in range(2)]
    for u in range(2):
        p.wait(r_[u])
        p(f"buffer_store_dwordx4 {vr(RD + 8 + 4 * u, 4)}, {vROW}, {OUT}, {sXROW if u == 0 else sU[4]} offen {k.opt.get('ofl', '')}")


def rest(k):
    p = k.p
    mark = len(p.e)
    p.push()
    phase2(k)
    phase3(k)
    phase4(k)
    k.finish()
    p.pop()
    p("L_IDLE:")
    p.push()
    idle_path(k)
    p.pop()
```

```python
import sys, struct, math
from asmlib import Prog, I, W, Ent

NAME = "adaLN_cond__sliding_local_dilated__mixer_channel_mlp__prompt"

def fb(x):
    return "0x%08x" % struct.unpack("<I", struct.pack("<f", x))[0]

WS_XCC = 0x1000
WS_FH = 0x2000
WS_FO = 0x4000
WS_FA = 0x6000
WS_FD = 0x8000
WS_FE = 0xA000
WS_FH2 = 0xC000
WS_MODP = 0x10000
WS_EXT = 0x20000
WS_GRAM = 0x2F000
WS_DBG = 0x40000
WS_CL = 0x100000
QS = 0x25000
CLS = 0x98000
Q_HID = 0
Q_O = 0
Q_A = 0x1C000
Q_H = 0x1C000
Q_ST = 0x23000
CL_HALO = 4 * QS
WS_SIZE = 0x1000000

L_WQ = 0
L_WO = 86016
L_MS = L_WO
L_XS = L_WO + 16384
L_SC = L_WO + 32768
L_MT = L_WO + 33280
L_SP = 143872
L_VEC = L_SP
L_XT = L_SP + 2048
L_ET = L_SP + 10240
L_HP = 0
L_KX = 16384
L_VX = 28672
L_W1B = 0
L_W1A = 57344
W2SLOT = [0, 16384, 32768, 114688, 131072, 147456, 49152, 65536, 81920, 98304]

X, WQ, WO, W1, W2, WM, OUT, WS = ("s[4:7]", "s[8:11]", "s[12:15]", "s[16:19]", "s[20:23]", "s[24:27]", "s[28:31]", "s[32:35]")
sXW, sFH = "s40", "s41"
sRB, sJ, sW, sH, sN, sFAST, sCL, sHD, sXCC, sMH, sNT = ("s42", "s43", "s44", "s45", "s46", "s47", "s48", "s49", "s50", "s51", "s52")
sCNT = "s53"
sWB = "s54"
sSH = "s55"
STR = "s[56:59]"
sPIT = "s60"
sMO = "s61"
sHOFF = ["s%d" % i for i in range(70, 77)]
sWOFF = ["s%d" % i for i in range(77, 84)]
sQ = "s84"
sQ2 = "s85"
sXROW = "s86"
sSTR = "s87"
sWL = "s88"
sW14 = "s89"
sU = ["s%d" % i for i in range(90, 98)]
STAMP0 = 100

vL, vTID, vL16, vN = "v0", "v1", "v2", "v3"
vSA = [4, 5, 6, 7]
vSB = [8, 9, 10, 11]
vT16 = [12, 13, 14, 15]
vT32 = [16, 17]
vWq = [18, 19, 20]
vTq = [21, 22]
vPA, vPD, vPX, vDUM = "v23", "v24", "v25", "v26"
vF16 = "v27"
vROW = "v28"
vt = [29, 30, 31]
AQ, AK, AV, AH, WB1, HB1, SC, SP = 32, 48, 64, 80, 96, 132, 164, 180
QF, KF, VF, KP, VP, PF, PP = 196, 204, 212, 220, 228, 232, 240
vH, vHH, vTH, vTH2, vHX, vMK, vKA, vVA, vONE, vHW, vHR = ["v%d" % i for i in range(244, 255)]
TG = [SP, SP + 1, SP + 2, SP + 3]
vPH, vB2A, vTO = ["v%d" % (SP + 4 + i) for i in range(3)]
VG, vVG = 148, "v31"

POLL_LIMIT = 40000

def vr(b, n=1):
    return f"v{b}" if n == 1 else f"v[{b}:{b + n - 1}]"
def ar(b, n=1):
    return f"a{b}" if n == 1 else f"a[{b}:{b + n - 1}]"
def Is(*ts):
    return [I(t) for t in ts]

def cost(e):
    if isinstance(e, (list, tuple)): return sum(cost(x) for x in e)
    if e is None: return 1
    if e.kind == 'w': return 1
    if e.kind != 'i': return 0
    op = e.text.split()[0]
    if op.startswith(("buffer_", "global_")): return 3
    if op == "ds_write_b128": return 6
    if op.startswith("ds_write"): return 3
    if op.startswith(("v_exp", "v_rcp", "v_rsq", "v_sqrt")): return 2
    if op.startswith("s_cbranch"): return 3
    if op == "s_barrier": return 2
    return 1

def take(p, q, budget, force=False):
    while q and (cost(q[0]) <= budget or force):
        e = q.pop(0)
        budget -= cost(e)
        force = False
        p(e)
    return budget


class K:
    def __init__(self, stop=99, stamps=False, force_slow=False, opt=()):
        self.opt = {}
        for o in opt:
            k, _, v = o.partition("=")
            self.opt[k] = v
        self.p = Prog()
        self.ool = []
        self.stop = stop
        self.stamps = stamps
        self.stamp_names = []
        self.force_slow = force_slow

    def o(self, name, default):
        return int(self.opt[name]) if name in self.opt else default

    def stamp(self, name):
        p = self.p
        if ("sc_" + name) in self.opt:
            p.wait(p("s_memrealtime s[98:99]"))
        if not self.stamps: return
        if name not in self.stamp_names: self.stamp_names.append(name)
        p.wait(p(f"s_memtime s[{STAMP0}:{STAMP0 + 1}]"))
        p(f"v_writelane_b32 v255, s{STAMP0}, {self.stamp_names.index(name)}")

    def cond(self, cmp_text, skip_if_scc):
        p = self.p
        lab = p.label("SK")
        p(cmp_text)
        p(f"s_cbranch_scc{skip_if_scc} {lab}")
        p.push()
        return lab
    def endcond(self, lab):
        self.p.pop()
        self.p(lab + ":")

    def poll(self, loads, check):
        p = self.p
        lab = p.label("PL")
        p(f"s_mov_b32 {sCNT}, {POLL_LIMIT}")
        p(lab + ":")
        for l in loads: p(l)
        p(f"s_sub_u32 {sCNT}, {sCNT}, 1")
        p("s_cbranch_scc1 L_END")
        p.waitall(vm=True, lk=False)
        for c in check: p(c)
        p("s_cmp_eq_u64 vcc, -1")
        p(f"s_cbranch_scc0 {lab}")

    def recheck(self, loads, check):
        p = self.p
        a, b = p.label("RC"), p.label("RB")
        body = "".join("    " + l + "\n" for l in loads) + "    s_waitcnt vmcnt(0)\n" + "".join("    " + c + "\n" for c in check)
        self.ool.append(f"{a}:\n    s_mov_b32 {sCNT}, {POLL_LIMIT}\n{a}_l:\n{body}    s_nop 1\n    s_cmp_eq_u64 vcc, -1\n    s_cbranch_scc1 {b}\n"
                        f"    s_sub_u32 {sCNT}, {sCNT}, 1\n    s_cbranch_scc0 {a}_l\n    s_endpgm\n")
        return Is(*check[:-1]) + [[I(check[-1]), I("s_cmp_eq_u64 vcc, -1"), I(f"s_cbranch_scc0 {a}"), Ent('l', b + ":")]]

    def slow_poll(self, name, addr, soff, done):
        return f"""    s_mov_b32 {sCNT}, {POLL_LIMIT}
{name}_l:
    buffer_load_dword {vPD}, {addr}, {WS}, {soff} offen sc1
    s_sub_u32 {sCNT}, {sCNT}, 1
    s_cbranch_scc1 L_END
    s_waitcnt vmcnt(0)
    v_cmp_eq_u32 vcc, {sN}, {vPD}
    s_nop 1
    s_cmp_eq_u32 vcc_lo, -1
    s_cbranch_scc0 {name}_l
    buffer_inv sc1
    s_waitcnt vmcnt(0)
    s_branch {done}
"""

    def poll_flags(self):
        p = self.p
        slow, done = p.label("SP"), p.label("PD")
        p(f"s_cmp_eq_u32 {sFAST}, 0")
        p(f"s_cbranch_scc1 {slow}")
        self.poll([f"buffer_load_dword {vPD}, {vPA}, {WS}, 0 offen sc1"], [f"v_cmp_eq_u32 vcc, {sN}, {vPD}"])
        p(done + ":")
        self.ool.append(f"{slow}:\n" + self.slow_poll(slow, vPA, "0", done))

    def poll_h(self):
        p = self.p
        lab, done, again, nop, slow = p.label("PL"), p.label("PD"), p.label("PA"), p.label("HN"), p.label("HS")
        p(f"s_mov_b32 {sCNT}, {POLL_LIMIT}")
        p(f"s_mov_b32 {sFAST}, 1")
        p(f"s_branch {lab}")
        p(again + ":")
        p(f"v_xor_b32 {vPD}, {sN}, {vPD}")
        p(f"v_cmp_gt_u32 s[62:63], 8, {vPD}")
        p("s_andn2_b32 s63, s63, vcc_hi")
        p(f"s_cbranch_scc1 {slow}")
        p(lab + ":")
        p(f"buffer_load_dword {vPD}, {vPH}, {WS}, 0 offen sc1")
        p(f"s_sub_u32 {sCNT}, {sCNT}, 1")
        p("s_cbranch_scc1 L_END")
        p.waitall(vm=True, lk=False)
        p(f"v_cmp_eq_u32 vcc, {vPD}, {vPX}")
        if self.force_slow:
            p("s_nop 1"); p("s_mov_b32 vcc_hi, 0")
        p("s_cmp_eq_u64 vcc, -1")
        p(f"s_cbranch_scc0 {again}")
        p(done + ":")
        self.ool.append(f"""{slow}:
    s_mov_b32 {sFAST}, 0
    s_cmp_lt_u32 {sJ}, 9
    s_cbranch_scc0 {nop}
    buffer_wbl2 sc1
    s_add_u32 s62, {sFH}, {WS_FH2 - WS_FH}
    s_waitcnt vmcnt(0)
    buffer_store_dword {vN}, off, {WS}, s62 sc1
{nop}:
    s_mov_b32 s62, {WS_FH2 - WS_FH}
""" + self.slow_poll(slow, vPH, "s62", done))

    def publish(self, stores, sflag):
        p = self.p
        a, b = p.label("PS"), p.label("PR")
        p(f"s_cmp_eq_u32 {sFAST}, 0")
        p(f"s_cbranch_scc1 {a}")
        p.wait(stores)
        e = p(f"buffer_store_dword {vN}, off, {WS}, {sflag}")
        p(b + ":")
        self.ool.append(f"{a}:\n    s_waitcnt vmcnt(0)\n    buffer_wbl2 sc1\n    s_waitcnt vmcnt(0)\n"
                        f"    buffer_store_dword {vN}, off, {WS}, {sflag} sc1\n    s_branch {b}\n")
        return e

    def strip_voff(self, dst, pitch, sw):
        o = [f"v_lshrrev_b32 v{dst[1]}, 3, {vL}"]
        if isinstance(pitch, int):
            o += [f"v_mul_u32_u24 v{dst[0]}, {pitch}, v{dst[1]}", f"v_add_u32 v{dst[0]}, v{dst[0]}, v{sw}"]
            o += [f"v_add_u32 v{dst[e]}, {e * (8 * pitch - 1024)}, v{dst[0]}" for e in (1, 2, 3)]
        else:
            o += [f"v_mad_u32_u24 v{dst[0]}, v{dst[1]}, {pitch}, v{sw}", f"s_lshl_b32 s62, {pitch}, 3", "s_sub_u32 s62, s62, 1024"]
            o += [f"v_add_u32 v{dst[e]}, s62, v{dst[e - 1]}" for e in (1, 2, 3)]
        return o

    def wq_group(self, G):
        out = []
        for e in range(3):
            x = I(f"buffer_load_dwordx4 v{vWq[e]}, {WQ}, {sWOFF[G]} offen offset:{e * 1024} lds")
            out.append([I(f"s_add_u32 m0, {sWL}, {L_WQ + G * 12288}"), x] if e == 0 else [x])
        return out

    def strip_dma(self, srd, voff, soff, pitch, ldsbase_s, ldsimm):
        out = []
        for n in range(14):
            g = []
            if n % 4 == 0:
                if n: g.append(I(f"s_add_u32 {soff}, {soff}, {pitch}"))
                g.insert(0, I(f"s_add_u32 m0, {ldsbase_s}, {ldsimm + (n // 4) * 4096}"))
            g.append(I(f"buffer_load_dwordx4 v{voff[n % 4]}, {srd}, {soff} offen offset:{(n % 4) * 1024} lds"))
            out.append(g)
        return out

    def tagcheck(self, regs, t):
        out = []
        if len(regs) == 1:
            r = regs[0]
            out += [f"v_xor_b32 v{t + n}, v{r + n}, v{TG[n]}" for n in range(4)]
            out += [f"v_or3_b32 v{t}, v{t}, v{t + 1}, v{t + 2}", f"v_or_b32 v{t}, v{t}, v{t + 3}"]
        else:
            for n in range(4):
                out.append(f"v_bitop3_b32 v{t + n}, v{regs[0] + n}, v{regs[1] + n}, v{TG[n]} bitop3:0x7e")
                out.append(f"v_bitop3_b32 v{t + 4 + n}, v{regs[2] + n}, v{regs[3] + n}, v{TG[n]} bitop3:0x7e")
            out += [f"v_or3_b32 v{t}, v{t}, v{t + 1}, v{t + 2}", f"v_or3_b32 v{t + 3}, v{t + 3}, v{t + 4}, v{t + 5}",
                    f"v_or3_b32 v{t}, v{t}, v{t + 6}, v{t + 7}", f"v_or_b32 v{t}, v{t}, v{t + 3}"]
        out += [f"v_and_b32 v{t}, 0xff, v{t}", f"v_cmp_eq_u32 vcc, 0, v{t}"]
        return out

    def round4(self, r, t, unpack=True):
        o = [f"v_cvt_pk_bf16_f32 v{t}, v{r}, v{r + 1}", f"v_cvt_pk_bf16_f32 v{t + 1}, v{r + 2}, v{r + 3}"]
        if unpack:
            o += [f"v_lshlrev_b32 v{r}, 16, v{t}", f"v_and_b32 v{r + 1}, 0xffff0000, v{t}",
                  f"v_lshlrev_b32 v{r + 2}, 16, v{t + 1}", f"v_and_b32 v{r + 3}, 0xffff0000, v{t + 1}"]
        return o

    def gather_pre(self, col0, one):
        o = [f"v_min_u32 {vPA}, 223, {vTID}", f"v_lshlrev_b32 {vPA}, 4, {vPA}", f"v_cmp_le_u32 vcc, 112, {vTID}"]
        o += [f"s_mov_b32 s{66 + kq}, {WS_MODP + kq * 10752 + col0 * 4}" for kq in range(4)]
        o += [f"v_cndmask_b32 v{one}, 0, 1.0, vcc"]
        return o

    def gather896(self, R, one, extra, unpack):
        p = self.p
        loads = [f"buffer_load_dwordx4 {vr(R + 4 * kq, 4)}, {vPA}, {WS}, s{66 + kq} offen sc1" for kq in range(4)]
        self.poll(loads, self.tagcheck([R + 4 * kq for kq in range(4)], R + 16))
        self.stamp("modpoll")
        if extra: p(extra.pop(0))
        for n in range(16):
            p(f"v_and_b32 v{R + n}, 0xffffff00, v{R + n}")
        if extra: p(extra.pop(0))
        for n in range(0, 8, 2):
            p(f"v_pk_add_f32 {vr(R + n, 2)}, {vr(R + n, 2)}, {vr(R + 8 + n, 2)}")
        for n in range(0, 4, 2):
            p(f"v_pk_add_f32 {vr(R + n, 2)}, {vr(R + n, 2)}, {vr(R + 4 + n, 2)}")
        p(self.round4(R, R + 16))
        for n in (0, 2):
            p(f"v_pk_add_f32 {vr(R + n, 2)}, {vr(R + n, 2)}, {vr(one, 2)} op_sel_hi:[1,0]")
        p(self.round4(R, R + 16, unpack))

    def head(self):
        p = self.p
        ld = [p("s_load_dwordx16 s[72:87], s[0:1], 0"),
              p("s_load_dwordx8 s[88:95], s[0:1], 64"),
              p("s_load_dwordx2 s[32:33], s[0:1], 96")]
        if self.stamps:
            p("v_mov_b32 v255, 0")
            ld.append(p("s_memrealtime s[98:99]"))
            ld.append(p("s_memtime s[100:101]"))
        if any(o.startswith("sc_") for o in self.opt):
            ld.append(p("s_memrealtime s[98:99]"))
        p("s_cmp_ge_u32 s2, 256")
        p("s_cbranch_scc1 L_END")
        p("s_getpc_b64 s[62:63]")
        p("L_PC:")
        p(f"v_and_b32 v{vt[1]}, 15, v0")
        p("s_lshr_b32 s64, s2, 3")
        p(f"v_lshl_add_u32 v{vt[1]}, s64, 4, v{vt[1]}")
        p(f"v_lshlrev_b32 v{vt[1]}, 7, v{vt[1]}")
        p(f"v_min_u32 v{vt[1]}, L_END-L_PC, v{vt[1]}")
        p("s_mov_b64 exec, 0xffff")
        p(f"global_load_dword {vDUM}, v{vt[1]}, s[62:63]")
        p("s_mov_b64 exec, -1")
        p(f"v_mov_b32 {vTID}, v0")
        p(f"v_lshrrev_b32 v{vt[0]}, 6, v0")
        p(f"v_and_b32 {vL}, 63, v0")
        p(f"v_readfirstlane_b32 {sW}, v{vt[0]}")
        for reg, size in ((4, 1835008), (8, 1204224), (12, 401408), (16, 1605632), (20, 1605632), (24, 2408448), (28, 1835008), (32, WS_SIZE)):
            p(f"s_mov_b32 s{reg + 2}, {size}")
            p(f"s_mov_b32 s{reg + 3}, 0x20000")
        p(f"s_and_b32 {sRB}, s2, 15")
        p(f"s_lshr_b32 {sJ}, s2, 4")
        p(f"s_mul_i32 {sCL}, {sRB}, {CLS}")
        p(f"s_add_u32 {sCL}, {sCL}, {WS_CL}")
        p(f"s_lshl_b32 {sWB}, {sW}, 12")
        p(f"v_lshlrev_b32 {vL16}, 4, {vL}")
        a, b, c = vt
        p(f"v_lshrrev_b32 v{a}, 3, {vL}")
        p(f"v_and_b32 v{b}, 2, v{a}")
        p(f"v_lshrrev_b32 v{a}, 2, v{a}")
        p(f"v_or_b32 v{b}, v{b}, v{a}")
        p(f"v_and_b32 v{a}, 7, {vL}")
        p(f"v_lshlrev_b32 v{b}, 1, v{b}")
        p(f"v_xor_b32 v{b}, v{b}, v{a}")
        p(f"v_lshlrev_b32 v{c}, 4, v{b}")
        p(self.strip_voff(vSB, 5376, c))
        p("s_and_b32 s62, s2, 3")
        p("s_lshr_b32 s63, s2, 2")
        p("s_mul_i32 s64, s62, 112")
        p(f"s_lshl_b32 s65, {sW}, 5")
        p("s_add_u32 s65, s65, s64")
        p("s_mul_i32 s65, s65, 5376")
        p("s_lshl_b32 s66, s63, 7")
        p("s_add_u32 s65, s65, s66")
        p(f"v_min_u32 v{a}, 55, {vL}")
        p("s_lshl_b32 s64, s64, 1")
        p(f"v_lshl_add_u32 v{a}, v{a}, 2, s64")
        p(f"s_mul_i32 s66, {sW}, {(CLS - 4) // 8 * 4}")
        p(f"s_add_u32 s66, s66, {sCL}")
        p(f"s_cmp_eq_u32 {sW}, 3")
        p("s_cselect_b32 s66, 0, s66")
        p(f"v_mov_b32 v{b}, 0")
        p(f"s_lshl_b32 m0, {sW}, 1")
        p.wait(ld)
        p("s_movrels_b64 s[62:63], s[88:89]")
        p("s_movrels_b64 s[68:69], s[72:73]")
        p("s_movrels_b64 s[70:71], s[80:81]")
        p("s_mov_b64 s[24:25], s[90:91]")
        p("s_mov_b64 exec, 1")
        p(f"buffer_load_dword {vDUM}, off, {WM}, s65")
        p(f"global_load_dword {vDUM}, v{b}, s[68:69]")
        p(f"buffer_load_dword {vDUM}, off, {WS}, s66 sc1")
        p(f"global_load_dword {vDUM}, v{b}, s[62:63]")
        p(f"global_load_dword {vDUM}, v{b}, s[70:71]")
        p("s_mov_b64 exec, -1")
        self.nonce = p(f"s_load_dword {sN}, s[32:33], 0")
        if self.stamps:
            p("v_writelane_b32 v255, s98, 60")
            p("v_writelane_b32 v255, s100, 61")

    def set_ptrs(self):
        return [f"s_mov_b64 s[{d}:{d + 1}], s[{r}:{r + 1}]" for d, r in ((4, 72), (8, 74), (12, 76), (16, 80), (36, 82), (20, 84), (38, 86), (28, 92))]

    def job_issue(self):
        p = self.p
        self.c_ld = p(f"global_load_dword v32, v{vt[0]}, s[88:89]")
        p(f"s_add_u32 m0, {sWB}, {L_MS}")
        self.ms_ld = [p(f"buffer_load_dwordx4 v{vSB[e]}, {WM}, s65 offen offset:{e * 1024} lds") for e in range(4)]

    def x_issue(self):
        p = self.p
        p([f"s_lshr_b32 s66, {sJ}, 2", "s_lshl_b32 s66, s66, 6", f"s_bfe_u32 s67, {sJ}, 0x10001", "s_add_u32 s66, s66, s67",
           f"s_and_b32 s67, {sJ}, 1", "s_lshl_b32 s67, s67, 5", "s_add_u32 s66, s66, s67", f"s_lshl_b32 s67, {sW}, 3", "s_add_u32 s66, s66, s67",
           f"s_and_b32 s67, {sW}, 1", "s_lshl_b32 s67, s67, 3", f"s_lshr_b32 s68, {sW}, 1", "s_add_u32 s67, s67, s68",
           f"s_cmp_eq_u32 {sRB}, 0", "s_cselect_b32 s68, 0, 16", "s_sub_u32 s67, s67, s68",
           f"s_cmp_eq_u32 {sJ}, 8", "s_cselect_b32 s66, s67, s66", f"s_lshl_b32 s67, {sRB}, 7", "s_add_u32 s66, s66, s67",
           "s_mul_i32 s66, s66, 896", f"s_add_u32 m0, {sWB}, {L_XS}", "s_mov_b32 exec_hi, 0x00ffffff"])
        self.xs_ld = []
        for r in range(4):
            self.xs_ld.append(p(f"buffer_load_dwordx4 {vL16}, {X}, s66 offen offset:{r * 1024} lds"))
            if r < 3: p("s_add_u32 s66, s66, 768")
        p("s_mov_b32 exec_hi, -1")

    def setup_w(self):
        heads = [0, 1, 3, 5, 7, 8, 10, 12, 14, 15, 2, 4, 6, 9, 11, 13]
        tab = sum(h << (4 * i) for i, h in enumerate(heads))
        o = [f"s_mov_b32 s62, 0x{tab & 0xffffffff:08x}", f"s_mov_b32 s63, 0x{tab >> 32:08x}", f"s_lshl_b32 s64, {sJ}, 2",
             "s_lshr_b64 s[62:63], s[62:63], s64", f"s_and_b32 {sH}, s62, 15",
             f"v_lshrrev_b32 v{vWq[2]}, 2, {vL}", f"v_mul_u32_u24 v{vWq[2]}, 896, v{vWq[2]}", f"v_and_b32 v{vWq[1]}, 3, {vL}",
             f"v_lshl_add_u32 v{vWq[0]}, v{vWq[1]}, 4, v{vWq[2]}",
             f"v_add_u32 v{vWq[1]}, {14336 - 1024}, v{vWq[0]}", f"v_add_u32 v{vWq[2]}, {2 * (14336 - 1024)}, v{vWq[0]}",
             f"s_cmp_eq_u32 {sH}, 15", f"s_cselect_b32 {sSH}, 8, 0",
             f"s_lshr_b32 s62, {sRB}, 3", "s_lshl_b32 s62, s62, 2", f"s_and_b32 s63, {sJ}, 1", "s_lshl_b32 s63, s63, 1",
             f"s_cmp_eq_u32 {sJ}, 9", "s_cselect_b32 s63, 0, s63", "s_add_u32 s63, s62, s63", "s_lshl_b32 s63, s63, 9",
             f"s_mul_i32 s62, {sH}, 56", f"s_sub_u32 s62, s62, {sSH}", f"s_mul_i32 s64, {sW}, {3 * 14336}", "s_add_u32 s62, s62, s64",
             f"s_mul_i32 {sWL}, {sW}, 3072"]
        for G in range(7):
            src = "s63" if G == 0 else sHOFF[G]
            if G == 0: o.append(f"s_mov_b32 {sHOFF[0]}, s63")
            o += [f"s_mul_i32 {sWOFF[G]}, {src}, 336", f"s_add_u32 {sWOFF[G]}, {sWOFF[G]}, s62"]
            if G < 6:
                o += [f"s_add_u32 {sHOFF[G + 1]}, {src}, 512", f"s_cmp_eq_u32 {sHOFF[G + 1]}, 3584", f"s_cselect_b32 {sHOFF[G + 1]}, 0, {sHOFF[G + 1]}"]
        return o

    def setup_t16(self):
        o = [f"v_lshrrev_b32 v33, 4, {vL}", f"v_bfe_u32 v34, {vL}, 2, 2", f"v_and_b32 v35, 3, {vL}", "v_lshlrev_b32 v35, 3, v35",
             "v_lshl_add_u32 v35, v34, 7, v35",
             "v_and_b32 v34, 2, v34", "v_and_b32 v36, 1, v33", "v_lshrrev_b32 v37, 1, v33",
             "v_lshl_add_u32 v38, v37, 11, v35", "v_lshl_add_u32 v38, v36, 9, v38", "v_or_b32 v39, v34, v36",
             f"v_lshl_add_u32 v{vT16[0]}, v39, 5, v38"]
        o += [f"v_xor_b32 v{vT16[nt]}, {32 * nt}, v{vT16[0]}" for nt in (1, 2, 3)]
        o += ["v_lshl_add_u32 v38, v37, 9, v35", "v_or_b32 v39, v34, v37", "v_xor_b32 v39, v39, v36",
              f"v_lshl_add_u32 v{vT32[0]}, v39, 5, v38", f"v_xor_b32 v{vT32[1]}, 64, v{vT32[0]}"]
        return o

    def setup_job(self):
        return [f"s_lshl_b32 s62, {sW}, 5", f"v_xor_b32 v76, s62, v{vT16[0]}", f"v_add_u32 v76, {L_MS}, v76",
                f"v_lshrrev_b32 v77, 5, {vL}", f"v_bfe_u32 v78, {vL}, 4, 1", "v_lshlrev_b32 v77, 5, v77", "v_lshl_add_u32 v77, v78, 3, v77",
                f"v_add_u32 v77, {L_SC}, v77", f"v_and_b32 v78, 0x30, {vL}", f"v_lshlrev_b32 v79, 2, {vL}", f"v_add_u32 v79, {L_SC}, v79",
                "s_and_b32 s62, s2, 3", "s_mul_i32 s62, s62, 10752", "s_lshr_b32 s63, s2, 2", "s_lshl_b32 s63, s63, 8", "s_add_u32 s62, s62, s63",
                f"s_lshl_b32 s63, {sW}, 6", "s_add_u32 s62, s62, s63", f"s_add_u32 {sMO}, s62, {WS_MODP}"]

    def setup_h(self):
        return [f"s_lshr_b32 s62, {sJ}, 1", f"s_mul_i32 s62, s62, {QS}", f"s_and_b32 s63, {sJ}, 1", "s_lshl_b32 s63, s63, 2",
                f"s_add_u32 s63, s63, {sW}", "s_mul_i32 s63, s63, 3584", "s_add_u32 s62, s62, s63", f"s_cmp_eq_u32 {sJ}, 8",
                f"s_cselect_b32 s63, 0, {Q_H}", "s_add_u32 s62, s62, s63", f"s_add_u32 {sHD}, s62, {sCL}",
                f"s_lshl_b32 s63, {sRB}, 8", f"s_lshl_b32 s64, {sJ}, 4", "s_add_u32 s63, s63, s64", f"s_lshl_b32 s64, {sW}, 2",
                "s_add_u32 s63, s63, s64", f"s_add_u32 {sFH}, s63, {WS_FH}",
                f"v_min_u32 v163, 27, {vL}", "v_lshlrev_b32 v163, 7, v163",
                f"v_and_b32 v160, 3, {vL}", f"v_lshrrev_b32 v161, 2, {vL}", "v_lshlrev_b32 v160, 10, v160", "v_lshl_add_u32 v160, v161, 4, v160",
                f"s_add_u32 s62, {sWB}, {L_XS}", "v_add_u32 v160, s62, v160",
                "v_lshlrev_b32 v161, 5, v161", f"v_add_u32 v161, {L_MT}, v161",
                f"v_lshlrev_b32 v162, 4, {vTID}", f"v_add_u32 v162, {L_MT}, v162"]

    def setup_p1(self):
        o = [f"s_getreg_b32 {sXCC}, hwreg(HW_REG_XCC_ID, 0, 3)",
             f"s_mul_i32 {sQ}, {sW}, {QS}", f"s_add_u32 {sQ}, {sQ}, {sCL}",
             f"v_lshrrev_b32 v33, 4, {vL}", f"v_bfe_u32 v34, {vL}, 2, 2", f"v_and_b32 v35, 3, {vL}", f"v_lshrrev_b32 v36, 5, {vL}",
             f"v_and_b32 v37, 15, {vL}",
             "v_lshl_add_u32 v38, v36, 3, v34", "v_mul_u32_u24 v38, 192, v38", "v_and_b32 v39, 1, v33", "v_lshl_add_u32 v38, v39, 5, v38",
             "v_lshl_add_u32 v38, v35, 3, v38", f"v_add_u32 v{vTq[0]}, {sSH}, v38", f"v_add_u32 v{vTq[1]}, 43008, v{vTq[0]}",
             f"v_bfe_u32 v38, {vL}, 2, 3", "v_mul_u32_u24 v38, 3584, v38", "v_lshl_add_u32 v38, v36, 6, v38", "v_lshl_add_u32 v38, v35, 4, v38",
             f"s_add_u32 s62, {sQ}, {Q_H}", f"v_add_u32 {vH}, s62, v38",
             "v_mul_u32_u24 v38, 3584, v34", "v_lshl_add_u32 v38, v33, 6, v38", "v_lshl_add_u32 v38, v35, 4, v38",
             f"s_and_b32 s63, {sW}, 1", "s_lshl_b32 s64, s63, 8", f"s_add_u32 s62, {sCL}, s64", f"s_add_u32 s62, s62, {CL_HALO}",
             f"v_add_u32 {vHH}, s62, v38",
             "v_lshl_add_u32 v38, v33, 3, v34", "v_mul_u32_u24 v38, 192, v38", "v_lshl_add_u32 v38, v35, 3, v38", f"v_add_u32 v38, {sSH}, v38",
             f"s_mul_i32 s62, {sW}, 6144", f"v_add_u32 {vTH}, s62, v38",
             "s_mul_i32 s62, s63, 6144", f"s_add_u32 s62, s62, {12 * 6144}", f"v_add_u32 {vTH2}, s62, v38",
             "v_lshrrev_b32 v38, 3, v37", "v_lshlrev_b32 v38, 11, v38", "v_and_b32 v34, 7, v37", "v_lshl_add_u32 v38, v34, 4, v38",
             "v_lshl_add_u32 v38, v39, 9, v38", "v_lshl_add_u32 v38, v36, 3, v38",
             "s_lshl_b32 s62, s63, 10", f"s_add_u32 s62, s62, {L_KX + 24 * 16}", "v_add_u32 v38, s62, v38",
             "v_lshlrev_b32 v34, 8, v33", "v_lshl_add_u32 v34, v37, 3, v34",
             "s_lshl_b32 s62, s63, 7", f"s_add_u32 s62, s62, {L_VX}", "v_add_u32 v34, s62, v34",
             f"s_cmp_lt_u32 {sW}, 2", "s_cselect_b64 vcc, -1, 0",
             f"s_cselect_b32 {sU[0]}, {sHOFF[0]}, {sHOFF[1]}", f"s_cselect_b32 {sU[1]}, {sHOFF[2]}, {sHOFF[3]}",
             f"s_cselect_b32 {sU[2]}, {sHOFF[4]}, {sHOFF[5]}", f"s_cselect_b32 {sU[3]}, {sHOFF[6]}, {WS_SIZE}",
             f"v_cndmask_b32 {vHX}, v34, v38, vcc",
             "v_min_u32 v38, 11, v37", f"s_lshl_b32 s62, {sW}, 3", "v_add_u32 v34, s62, v38", "v_cmp_gt_u32 vcc, 8, v38", "v_add_u32 v38, 24, v38",
             f"s_lshl_b32 s62, {sRB}, 8", f"s_add_u32 s62, s62, {WS_FH}",
             "v_cndmask_b32 v34, v38, v34, vcc", "v_lshl_add_u32 v34, v34, 2, s62", f"v_cmp_gt_u32 vcc, 32, {vL}",
             f"s_lshl_b32 s62, {sRB}, 7", f"s_add_u32 s62, s62, {WS_XCC}", "v_lshl_add_u32 v38, v37, 2, s62",
             f"v_cndmask_b32 {vPH}, v38, v34, vcc", f"v_cndmask_b32 {vMK}, 0, -1, vcc",
             f"s_lshl_b32 s64, {sJ}, 2", f"s_add_u32 {sXW}, s62, s64",
             f"s_lshr_b32 s62, {sWB}, 1", f"v_add_u32 {vKA}, s62, {vL16}", f"s_lshr_b32 s62, {sWB}, 3", f"v_lshl_add_u32 {vVA}, {vL}, 3, s62",
             f"s_lshr_b32 s62, {sWB}, 2", f"v_add_u32 {vHW}, s62, {vL16}", f"v_add_u32 {vHR}, {sWB}, {vL16}",
             f"v_mov_b32 {vONE}, 0x3f803f80", f"v_mov_b32 v{VP + 2}, 0", f"v_mov_b32 v{VP + 3}, 0", f"v_mov_b32 v{PP + 2}, 0", f"v_mov_b32 v{PP + 3}, 0",
             f"v_and_b32 v38, 31, {vL}", "v_lshlrev_b32 v34, 2, v36", "v_sub_u32 v38, v38, v34", "v_add_u32 v38, 5, v38",
             "s_mov_b64 s[62:63], 0xff", "v_lshlrev_b64 v[34:35], v38, s[62:63]", "v_not_b32 v34, v34", "v_not_b32 v35, v35",
             f"s_lshr_b32 s62, {sW}, 1", f"s_or_b32 s62, s62, {sRB}", "s_cmp_eq_u32 s62, 0", "s_cselect_b32 s62, 0xf0, 0", "v_or_b32 v34, s62, v34"]
        big = fb(-1e30)
        for n in range(16):
            bit = 8 * (n >> 2) + (n & 3) + 12
            o += [f"v_bfe_i32 v{SC + n}, v{34 + (bit >> 5)}, {bit & 31}, 1", f"v_and_b32 v{SC + n}, {big}, v{SC + n}"]
        for r in range(4):
            o += [f"v_bfe_i32 v{SP + 12 + r}, v34, {4 + r}, 1", f"v_and_b32 v{SP + 12 + r}, {big}, v{SP + 12 + r}"]
        return o

    def setup_late(self):
        a, b, c = vt
        o = [f"s_and_b32 {sMH}, {sJ}, 1", f"s_lshr_b32 {sNT}, {sJ}, 1", f"s_min_u32 {sNT}, {sNT}, 6",
             "s_sub_u32 s63, s2, 224", "s_min_u32 s63, s63, 27", f"s_movk_i32 {sPIT}, 896", "s_mov_b32 s59, 0x20000",
             [f"s_cmp_lt_u32 {sJ}, 14", "s_cselect_b64 s[56:57], s[12:13], s[16:17]", "s_cselect_b32 s58, s14, s18",
              f"s_cselect_b32 {sPIT}, {sPIT}, 3584", f"s_cselect_b32 s63, {sNT}, s63"],
             "s_lshl_b32 s63, s63, 7", f"s_mul_i32 s64, {sPIT}, 112", f"s_mul_i32 s64, s64, {sW}", f"s_add_u32 {sSTR}, s63, s64"]
        o += self.strip_voff(vSA, sPIT, c)
        o += [f"s_lshl_b32 {sPIT}, {sPIT}, 5", f"s_mul_i32 {sW14}, {sW}, 14336",
              f"v_lshrrev_b32 v{a}, 3, {vL}", f"v_mul_u32_u24 v{a}, 1792, v{a}", f"v_and_b32 v{b}, 7, {vL}", f"v_lshl_add_u32 {vROW}, v{b}, 4, v{a}",
              f"s_lshl_b32 s62, {sMH}, 1", f"s_lshr_b32 s63, {sW}, 1", "s_add_u32 s62, s62, s63", f"s_mul_i32 {sQ2}, s62, {QS}", f"s_add_u32 {sQ2}, {sQ2}, {sCL}",
              f"s_lshl_b32 s62, {sRB}, 7", f"s_lshl_b32 s64, {sMH}, 6", "s_add_u32 s62, s62, s64", "s_add_u32 s62, s62, s63",
              f"s_and_b32 s64, {sW}, 1", "s_lshl_b32 s64, s64, 5", "s_add_u32 s62, s62, s64", "s_mul_i32 s62, s62, 896",
              f"s_lshl_b32 s64, {sNT}, 7", f"s_add_u32 {sXROW}, s62, s64",
              f"v_lshl_add_u32 {vB2A}, {vL}, 1, s64",
              f"v_lshrrev_b32 v{a}, 4, {vL}", f"v_and_b32 v{b}, 15, {vL}", f"v_lshlrev_b32 v{b}, 4, v{b}", f"v_lshl_add_u32 {vF16}, v{a}, 9, v{b}",
              f"s_lshl_b32 {sU[4]}, {sH}, 11", f"s_add_u32 {sU[4]}, {sU[4]}, {sQ}",
              f"s_lshl_b32 s62, {sRB}, 9", f"s_lshl_b32 s63, {sW}, 7", "s_add_u32 s62, s62, s63", f"s_lshl_b32 s63, {sJ}, 2", "s_add_u32 s62, s62, s63",
              f"s_add_u32 {sU[5]}, s62, {WS_FO}"]
        o += self.strip_voff(vSB, 3584, c)
        o += [f"s_mul_i32 s62, {sW}, 1792", f"s_lshl_b32 s63, {sNT}, 8", "s_add_u32 s62, s62, s63", f"v_lshl_add_u32 {vVG}, {vL}, 2, s62"]
        o += [f"v_lshlrev_b32 v{a}, 3, {vL}", f"v_add_u32 v{a}, {L_WO + 57344}, v{a}", f"ds_write_b64 v{a}, {vr(VP + 2, 2)}"]
        o += [f"v_lshlrev_b32 {vTO}, 7, {vL}", f"s_lshl_b32 s62, {sJ}, 13",
              [f"s_cmp_eq_u32 {sJ}, 4", f"s_cselect_b32 s62, {Q_ST}, s62"], f"s_add_u32 s62, s62, {sQ}",
              [f"s_cmp_lt_u32 {sJ}, 5", f"s_cselect_b32 {sU[6]}, s62, {WS_SIZE}"]]
        return [Is(*x) if isinstance(x, list) else I(x) for x in o]

    def nonce_use(self):
        p = self.p
        p.wait(self.nonce)
        p(f"s_add_u32 {sN}, {sN}, 0x01010101")
        p(f"v_mov_b32 {vN}, {sN}")
        p(f"s_andn2_b32 s63, {sN}, 7")
        p(f"s_or_b32 {sXCC}, {sXCC}, s63")
        for r in range(4):
            p(f"v_bfe_u32 v{TG[r]}, {vN}, {8 * r}, 8")
        p(f"v_mov_b32 {vPD}, {sXCC}")
        p(f"v_bfi_b32 {vPX}, {vMK}, {vN}, {vPD}")

    def id_store(self):
        lab = self.cond(f"s_cmp_eq_u32 {sW}, 0", 0)
        self.p(f"buffer_store_dword {vPD}, off, {WS}, {sXW} sc1")
        self.endcond(lab)

    def mod_job(self):
        p = self.p
        p(f"v_cmp_gt_u32 vcc, 56, {vL}")
        p("s_mov_b32 s63, 0xffffff00")
        p("s_mov_b32 s64, 0x00010001")
        p("s_mov_b32 s65, 0x00010001")
        p.wait(self.c_ld)
        p("v_lshlrev_b32 v34, 16, v32")
        p("v_and_b32 v35, 0xffff0000, v32")
        for r in (34, 35): p(f"v_mul_f32 v{r + 2}, {fb(-math.log2(math.e))}, v{r}")
        for r in (34, 35): p(f"v_exp_f32 v{r + 2}, v{r + 2}")
        for r in (34, 35): p(f"v_add_f32 v{r + 2}, 1.0, v{r + 2}")
        for r in (34, 35): p(f"v_rcp_f32 v{r + 2}, v{r + 2}")
        for r in (34, 35): p(f"v_mul_f32 v{r}, v{r}, v{r + 2}")
        p("v_cvt_pk_bf16_f32 v34, v34, v35")
        p("v_cndmask_b32 v34, 0, v34, vcc")
        p("ds_write_b32 v79, v34")
        rb = [p(f"ds_read_b64 {vr(56 + 4 * s + 2 * e, 2)}, v77 offset:{s * 64 + e * 16}") for s in range(4) for e in range(2)]
        p.wait(self.ms_ld)
        p("s_barrier")
        rd = [p(f"ds_read_b64_tr_b16 {vr(40 + 4 * s + 2 * e, 2)}, v76 offset:{s * 4096 + e * 1024}") for s in range(4) for e in range(2)]
        for s in range(4):
            p.wait(rd[2 * s + 1])
            p(f"v_mfma_f32_16x16x32_bf16 v[72:75], {vr(40 + 4 * s, 4)}, {vr(56 + 4 * s, 4)}, {'0' if s == 0 else 'v[72:75]'}")
        p("s_mov_b64 exec, s[64:65]")
        for r in range(4):
            p(f"v_and_or_b32 v{72 + r}, v{72 + r}, s63, v{TG[r]}")
        p(f"buffer_store_dwordx4 v[72:75], v78, {WS}, {sMO} offen sc1")
        p("s_mov_b64 exec, -1")
        self.stamp("modjob")

    def red_rows4(self, r, t):
        p = self.p
        p(f"v_add_f32_dpp v{r}, v{r}, v{r} row_ror:4 row_mask:0xf bank_mask:0xf")
        p(f"v_add_f32_dpp v{r}, v{r}, v{r} row_ror:8 row_mask:0xf bank_mask:0xf")
        p(f"v_mov_b32 v{t}, v{r}")
        p(f"v_permlane16_swap_b32 v{r}, v{t}")
        p(f"v_add_f32 v{r}, v{r}, v{t}")
        p(f"v_mov_b32 v{t}, v{r}")
        p(f"v_permlane32_swap_b32 v{r}, v{t}")
        p(f"v_add_f32 v{r}, v{r}, v{t}")

    def h_job(self):
        p = self.p
        Z, RAW, S, M, ONE = 64, 40, 36, 96, 38
        wq = []
        for G in range(5): wq += self.wq_group(G)
        p(f"buffer_load_dword {vDUM}, v163, {WS}, {sHD} offen sc1")
        n0 = self.o("wearly", 3)
        p(wq[:n0]); wq = wq[n0:]
        p(f"v_cmp_gt_u32 s[64:65], 56, {vL}")
        p.wait(self.xs_ld)
        rd = [p(f"ds_read_b128 {vr(RAW + 4 * s, 4)}, v160 offset:{s * 224}") for s in range(4)]
        for s in range(4):
            p.wait(rd[s])
            for n in range(4):
                p(f"v_lshlrev_b32 v{Z + 8 * s + 2 * n}, 16, v{RAW + 4 * s + n}")
                p(f"v_and_b32 v{Z + 8 * s + 2 * n + 1}, 0xffff0000, v{RAW + 4 * s + n}")
        p(f"v_pk_add_f32 {vr(S, 2)}, {vr(Z, 2)}, {vr(Z + 2, 2)}")
        for n in range(4, 32, 2):
            p(f"v_pk_add_f32 {vr(S, 2)}, {vr(S, 2)}, {vr(Z + n, 2)}")
        p(f"v_add_f32 v{S}, v{S}, v{S + 1}")
        p(f"v_cndmask_b32 v{S}, 0, v{S}, s[64:65]")
        self.red_rows4(S, S + 1)
        p(f"v_mul_f32 v{S}, {fb(1.0 / 448)}, v{S}")
        for n in range(0, 32, 2):
            p(f"v_pk_add_f32 {vr(Z + n, 2)}, {vr(Z + n, 2)}, {vr(S, 2)} op_sel_hi:[1,0] neg_lo:[0,1] neg_hi:[0,1]")
        p(f"v_pk_mul_f32 {vr(S, 2)}, {vr(Z, 2)}, {vr(Z, 2)}")
        for n in range(2, 32, 2):
            p(f"v_pk_fma_f32 {vr(S, 2)}, {vr(Z + n, 2)}, {vr(Z + n, 2)}, {vr(S, 2)}")
        p(f"v_add_f32 v{S}, v{S}, v{S + 1}")
        p(f"v_cndmask_b32 v{S}, 0, v{S}, s[64:65]")
        self.red_rows4(S, S + 1)
        p(f"v_mov_b32 v{S + 1}, {fb(1e-5)}")
        p(f"v_fmac_f32 v{S + 1}, {fb(1.0 / 448)}, v{S}")
        p(f"v_rsq_f32 v{S}, v{S + 1}")
        p(self.gather_pre(0, ONE))
        for n in range(0, 32, 2):
            p(f"v_pk_mul_f32 {vr(Z + n, 2)}, {vr(Z + n, 2)}, {vr(S, 2)} op_sel_hi:[1,0]")
        self.stamp("xstats")
        self.gather896(RAW, ONE, wq, True)
        wr = p(f"ds_write_b128 v162, {vr(RAW, 4)}")
        p(wq.pop(0))
        p.wait(wr)
        p("s_barrier")
        rd = []
        for s in range(4):
            for e in range(2):
                rd.append(p(f"ds_read_b128 {vr(M + 16 * s + 4 * e, 4)}, v161 offset:{s * 448 + e * 16}"))
                rd.append(p(f"ds_read_b128 {vr(M + 16 * s + 8 + 4 * e, 4)}, v161 offset:{1792 + s * 448 + e * 16}"))
            if s == 1: p(wq.pop(0))
        p("s_mov_b32 exec_hi, 0x00ffffff")
        st = []
        for s in range(4):
            p.wait(rd[4 * s + 3])
            for n in range(0, 8, 2):
                p(f"v_pk_fma_f32 {vr(Z + 8 * s + n, 2)}, {vr(Z + 8 * s + n, 2)}, {vr(M + 16 * s + 8 + n, 2)}, {vr(M + 16 * s + n, 2)}")
            for n in range(4):
                p(f"v_cvt_pk_bf16_f32 v{RAW + 4 * s + n}, v{Z + 8 * s + 2 * n}, v{Z + 8 * s + 2 * n + 1}")
            st.append(p(f"buffer_store_dwordx4 {vr(RAW + 4 * s, 4)}, {vL16}, {WS}, {sHD} offen offset:{s * 896}"))
        p("s_mov_b32 exec_hi, -1")
        n1 = self.o("wdrain", 3)
        late = self.setup_late()
        for n in range(n1):
            p(wq.pop(0)); p(late[:20]); late = late[20:]
        p.wait(st)
        p(f"buffer_store_dword {vN}, off, {WS}, {sFH}")
        self.stamp("hpub")
        while wq:
            p(wq.pop(0)); p(late[:20]); late = late[20:]
        p(late)

    def ext_tables(self):
        p = self.p
        R, ONE = 40, 38
        p(self.gather_pre(1344, ONE))
        self.gather896(R, ONE, None, False)
        p(f"v_lshlrev_b32 v33, 3, {vTID}")
        p(f"v_add_u32 v33, {L_ET}, v33")
        p(f"ds_write_b64 v33, {vr(R + 16, 2)}")
        p(f"v_lshlrev_b32 v33, 2, {vTID}")
        p(f"v_add_u32 v33, {L_ET}, v33")
        p(f"ds_write_b32 v33, {vONE} offset:2048")
        p(f"ds_write_b32 v33, v{VP + 2} offset:3072")
        p.waitall(vm=False, lk=True)

    def startup(self):
        p = self.p
        self.head()
        notp, none, join = p.label("RJ"), p.label("RN"), p.label("RX")
        p(f"s_cmp_lt_u32 {sJ}, 9")
        p(f"s_cbranch_scc0 {notp}")
        p.push()
        self.job_issue()
        p(self.set_ptrs())
        self.x_issue()
        p(self.setup_t16()); p(self.setup_job()); p(self.setup_w()); p(self.setup_h()); p(self.setup_p1())
        self.nonce_use()
        self.stamp("prolog")
        self.mod_job()
        self.id_store()
        self.h_job()
        p(f"s_branch {join}")
        p.pop()
        p(notp + ":")
        p.push()
        p("s_cmp_lt_u32 s2, 168")
        p(f"s_cbranch_scc0 {none}")
        p.push()
        self.job_issue()
        p(self.set_ptrs())
        p(self.setup_t16()); p(self.setup_job()); p(self.setup_w())
        p(self.wq_group(0)[:2])
        p(self.setup_p1())
        self.nonce_use()
        self.stamp("prolog")
        self.mod_job()
        self.id_store()
        p(self.wq_group(0)[2:])
        p(self.setup_late())
        for G in range(1, 5): p(self.wq_group(G))
        p(f"s_branch {join}")
        p.pop()
        p(none + ":")
        p.push()
        p(self.set_ptrs())
        p(self.setup_w())
        p(self.wq_group(0))
        p(self.setup_t16()); p(self.setup_p1()); p(self.setup_late())
        self.nonce_use()
        self.stamp("prolog")
        self.id_store()
        for G in range(1, 5): p(self.wq_group(G))
        lab = self.cond(f"s_cmp_ge_u32 {sJ}, 14", 0)
        self.ext_tables()
        self.endcond(lab)
        p.pop()
        p.pop()
        p(join + ":")

    def vec_items(self):
        R, T = VG, VG + 6
        lds = []
        for kq in range(4):
            lds += [f"s_mov_b32 s67, {WS_MODP + 896 * 4 + kq * 10752}", f"buffer_load_dword v{R + kq}, {vVG}, {WS}, s67 offen sc1"]
        loads = [Is(*lds[2 * kq:2 * kq + 2]) for kq in range(4)] + [Is(f"global_load_ushort v{R + 4}, {vB2A}, s[38:39]")]
        chk = [f"v_bitop3_b32 v{T + 1}, v{R}, v{R + 1}, v{T} bitop3:0x7e", f"v_bitop3_b32 v{T + 2}, v{R + 2}, v{R + 3}, v{T} bitop3:0x7e",
               f"v_or_b32 v{T + 1}, v{T + 1}, v{T + 2}", f"v_and_b32 v{T + 1}, 0xff, v{T + 1}", f"v_cmp_eq_u32 vcc, 0, v{T + 1}"]
        o = Is(f"v_and_b32 v{T}, 3, {vL}", f"v_lshlrev_b32 v{T}, 3, v{T}", f"v_lshrrev_b32 v{T}, v{T}, {vN}")
        o += [W(loads[-1])] + self.recheck(lds, chk)
        o += Is(*[f"v_and_b32 v{R + n}, 0xffffff00, v{R + n}" for n in range(4)])
        o += Is(f"v_add_f32 v{R}, v{R}, v{R + 2}", f"v_add_f32 v{R + 1}, v{R + 1}, v{R + 3}", f"v_add_f32 v{R}, v{R}, v{R + 1}",
                f"v_cvt_pk_bf16_f32 v{R}, v{R}, v{R}")
        o.append(Is(f"s_cmp_eq_u32 {sW}, 2", "s_cselect_b32 s62, 1.0, 0"))
        o += Is(f"v_and_b32 v{R}, 0xffff0000, v{R}", f"v_add_f32 v{R}, s62, v{R}", f"v_cvt_pk_bf16_f32 v{R}, v{R}, v{R}",
                f"v_lshlrev_b32 v{T}, 2, {vL}", f"v_add_u32 v{T}, {L_VEC}, v{T}", f"s_lshl_b32 s62, {sW}, 8",
                f"v_and_b32 v{R}, 0xffff0000, v{R}", f"v_add_u32 v{T + 1}, s62, v{T}", f"v_lshlrev_b32 v{R + 4}, 16, v{R + 4}",
                f"ds_write_b32 v{T + 1}, v{R}", f"ds_write_b32 v{T}, v{R + 4} offset:1024")
        return loads, o

    def phase1(self):
        p = self.p
        self.stamp("prepoll")
        self.poll_h()
        self.stamp("hpoll")
        hld = [I(f"buffer_load_dwordx4 {ar(4 * s, 4)}, {vH}, {WS}, {sHOFF[s >> 2]} offen offset:{(s & 3) * 128} sc1") for s in range(28)]
        hh = [I(f"buffer_load_dwordx4 {ar(112 + 4 * s, 4)}, {vHH}, {WS}, {sU[s]} offen sc1") for s in range(4)]
        w56 = self.wq_group(5) + self.wq_group(6)
        wo = self.strip_dma(STR, vSA, sSTR, sPIT, sW14, L_WO)
        xt = [Is(f"s_lshr_b32 s67, {sWB}, 1", f"s_add_u32 m0, s67, {L_XT}", f"s_add_u32 s67, {sXROW}, {14336 - 1024}",
                 f"buffer_load_dwordx4 {vROW}, {X}, {sXROW} offen lds"),
              Is(f"buffer_load_dwordx4 {vROW}, {X}, s67 offen offset:1024 lds")]
        self.wo_ld = wo[-1][-1]
        vl, self.vi = self.vec_items()
        tl = [I(f"buffer_load_dword {vDUM}, {vTO}, {WS}, {sU[6]} offen sc1")]

        def wread(s):
            base = vTq[0] if s < 14 else vTq[1]
            return [I(f"ds_read_b64_tr_b16 {vr(WB1 + 12 * (s % 3) + 4 * S + 2 * e, 2)}, v{base} offset:{(s % 14) * 3072 + e * 768 + S * 64}")
                    for S in range(3) for e in range(2)]
        def hread(sg, c0):
            base, off = (vTH, sg * 24576) if sg < 3 else (vTH2, 0)
            return [I(f"ds_read_b64_tr_b16 {vr(HB1 + 4 * c + 2 * e, 2)}, {base} offset:{off + e * 768 + 64 + c * 32}")
                    for c in (c0, c0 + 1) for e in range(2)]
        def hmfma(sg, c):
            w_, h_ = vr(HB1 + 4 * c, 4), ar(112 + 4 * sg, 4)
            a_, b_ = (w_, h_) if c < 2 else (h_, w_)
            return I(f"v_mfma_f32_16x16x32_bf16 {vr(AH + 4 * c, 4)}, {a_}, {b_}, {'0' if sg == 0 else vr(AH + 4 * c, 4)}")

        PRE = self.o("g1pre", 6)
        B1 = self.o("g1b1", 17)
        p(hld[:3])
        p("s_barrier")
        wrd = {0: wread(0), 1: wread(1)}
        p(wrd[0]); p(hld[3:4]); p(wrd[1]); p(hld[4:PRE])
        hstep = {8: (0, 0), 9: (0, 2), 12: (1, 0), 13: (1, 2), B1 + 1: (2, 0), B1 + 2: (2, 2), B1 + 3: (3, 0), B1 + 4: (3, 2)}
        xq = {0: [w56[0]], 1: [hh[0]], 2: [w56[1]], 4: [w56[2]], 5: [hh[1]], 6: [w56[3]], 8: [w56[4]], 10: [w56[5]], 11: [hh[2]], 12: [hh[3]],
              3: [vl[0]], 7: [vl[1]], 13: [vl[2]], 14: [vl[3]], 15: [vl[4]]}
        late = tl + xt + wo
        fill = []
        hw = [I(f"ds_write_b128 {vHW}, {vr(AH + 4 * c, 4)} offset:{L_HP + c * 4096}") for c in range(4)]
        hr = [I(f"ds_read_b128 {vr(AH + 4 * c, 4)}, {vHR} offset:{L_HP + c * 1024}") for c in range(4)]
        hs = hw + [[W(hw), I("s_barrier")]] + hr + [None, None, W(hr)]
        hs += [I(f"v_add_f32 v{AH + n}, v{AH + n}, v{AH + 8 + n}") for n in range(8)]
        hs += [I(f"v_add_f32 v{AH + n}, v{AH + n}, v{AH + 4 + n}") for n in range(4)]
        hs += Is(f"v_cvt_pk_bf16_f32 v{AH + 4}, v{AH}, v{AH + 1}", f"v_cvt_pk_bf16_f32 v{AH + 5}, v{AH + 2}, v{AH + 3}")
        hx = I(f"ds_write_b64 {vHX}, {vr(AH + 4, 2)}")
        hs.append(hx)
        hrd = {}
        for s in range(28):
            if 'g1steps' in self.opt and s % 4 == 0: self.stamp(f"g1s{s}")
            if s == B1:
                p.wait(w56[-1][-1])
                p("s_barrier")
            rq = []
            if s + 1 in hstep:
                hrd[s + 1] = hread(*hstep[s + 1]); rq += hrd[s + 1]
            if s + 2 < 28:
                wrd[s + 2] = wread(s + 2); rq += wrd[s + 2]
            b = WB1 + 12 * (s % 3)
            h = ar(4 * s, 4)
            mm = Is(f"v_mfma_f32_32x32x16_bf16 {vr(AK, 16)}, {vr(b + 4, 4)}, {h}, {'0' if s == 0 else vr(AK, 16)}",
                    f"v_mfma_f32_32x32x16_bf16 {vr(AQ, 16)}, {vr(b, 4)}, {h}, {'0' if s == 0 else vr(AQ, 16)}",
                    f"v_mfma_f32_32x32x16_bf16 {vr(AV, 16)}, {h}, {vr(b + 8, 4)}, {'0' if s == 0 else vr(AV, 16)}")
            p.wait(wrd[s], hld[s], hrd.get(s), hh[hstep[s][0]] if s in hstep else None)
            vm = [hld[s + PRE]] if s + PRE < 28 else []
            vm += xq.get(s, [])
            if s + PRE >= 28:
                vm += late[:2 - (s & 1)]; late = late[2 - (s & 1):]
            nper = -(-max(0, len(rq) - (2 if s in hstep else 0)) // 3)
            for g in range(3):
                p(mm[g])
                k = min(nper, len(rq))
                p(rq[:k]); rq = rq[k:]
                bud = 5 - k - (1 if g == 2 else 0)
                if g < 2 and vm:
                    bud -= cost(vm[0]); p(vm.pop(0))
                if s >= B1 + 5: bud = take(p, hs, bud, force=(bud >= 2))
                take(p, fill, bud)
                if s in hstep and g > 0:
                    p(hmfma(hstep[s][0], hstep[s][1] + g - 1))
                    p(rq[:1]); rq = rq[1:]
            assert not rq and not vm
        p(hs); p(fill)
        self.stamp("gemm1")
        def dma():
            if late: p(late.pop(0))
        p(f"v_and_b32 v{vt[0]}, 31, {vL}")
        p(f"v_cmp_eq_u32 s[64:65], 28, v{vt[0]}")
        for n in range(8): p(f"v_cvt_pk_bf16_f32 v{KF + n}, v{AK + 2 * n}, v{AK + 2 * n + 1}")
        wr = [p(f"ds_write_b128 {vKA}, {vr(KF + 4 * f, 4)} offset:{L_KX + 4096 + f * 1024}") for f in range(2)]
        for n in (6, 7): p(f"v_cvt_pk_bf16_f32 v{VF + n}, v{AV + 2 * n}, v{AV + 2 * n + 1}")
        wr.append(p(f"ds_write_b64 {vVA}, {vr(VF + 6, 2)} offset:{L_VX + 1024}"))
        for n in range(8): p(f"v_cvt_pk_bf16_f32 v{QF + n}, v{AQ + 2 * n}, v{AQ + 2 * n + 1}")
        for n in (6, 7): p(f"v_and_b32 v{QF + n}, {vMK}, v{QF + n}")
        p.wait(wr)
        p("s_barrier")
        rk = [p(f"ds_read_b128 {vr(KP + 4 * f, 4)}, {vKA} offset:{L_KX + f * 1024}") for f in range(2)]
        rv = p(f"ds_read_b64 {vr(VP, 2)}, {vVA} offset:{L_VX}")
        p(f"v_mfma_f32_32x32x16_bf16 {vr(SC, 16)}, {vr(KF, 4)}, {vr(QF, 4)}, {vr(SC, 16)}")
        dma()
        p(f"v_mfma_f32_32x32x16_bf16 {vr(SC, 16)}, {vr(KF + 4, 4)}, {vr(QF + 4, 4)}, {vr(SC, 16)}")
        for n in range(5): p(f"v_cvt_pk_bf16_f32 v{VF + n}, v{AV + 2 * n}, v{AV + 2 * n + 1}")
        p.wait(rk)
        p(f"v_mfma_f32_32x32x16_bf16 {vr(SP, 16)}, {vr(KP, 4)}, {vr(QF, 4)}, {vr(SP, 16)}")
        dma()
        p(f"v_cvt_pk_bf16_f32 v{VF + 5}, v{AV + 10}, v{AV + 11}")
        p(f"v_mfma_f32_32x32x16_bf16 {vr(SP, 16)}, {vr(KP + 4, 4)}, {vr(QF + 4, 4)}, {vr(SP, 16)}")
        m, t = AH, AH + 1
        cs = 28 ** -0.5 * math.log2(math.e)
        for n in range(4): p(f"v_cndmask_b32 v{VF + n}, v{VF + n}, {vONE}, s[64:65]")
        p(f"v_max3_f32 v{m}, v{SC}, v{SC + 1}, v{SC + 2}")
        for n in range(3, 15, 2): p(f"v_max3_f32 v{m}, v{m}, v{SC + n}, v{SC + n + 1}")
        for n in range(4, 6): p(f"v_cndmask_b32 v{VF + n}, v{VF + n}, {vONE}, s[64:65]")
        p(f"v_max3_f32 v{m}, v{m}, v{SC + 15}, v{SP + 12}")
        p(f"v_max3_f32 v{m}, v{m}, v{SP + 13}, v{SP + 14}")
        p(f"v_max_f32 v{m}, v{m}, v{SP + 15}")
        p(f"v_mov_b32 v{t}, v{m}")
        p(f"s_mov_b32 s62, {fb(cs)}")
        p(f"s_mov_b32 s63, {fb(cs)}")
        p(f"v_permlane32_swap_b32 v{m}, v{t}")
        p(f"v_max_f32 v{m}, v{m}, v{t}")
        p(f"v_mul_f32 v{m}, {fb(-cs)}, v{m}")
        dma()
        rs = [SC + n for n in range(0, 16, 2)] + [SP + 12, SP + 14]
        for r in rs: p(f"v_pk_fma_f32 {vr(r, 2)}, {vr(r, 2)}, s[62:63], {vr(m, 2)} op_sel_hi:[1,1,0]")
        for n, r in enumerate(rs):
            p(f"v_exp_f32 v{r}, v{r}")
            p(f"v_exp_f32 v{r + 1}, v{r + 1}")
            if n > 0: p(f"v_cvt_pk_bf16_f32 v{PF + n - 1}, v{rs[n - 1]}, v{rs[n - 1] + 1}")
            if n in (2, 6): dma()
            if n == 5: p(f"v_mfma_f32_32x32x16_bf16 {vr(AQ, 16)}, {vr(VF, 4)}, {vr(PF, 4)}, 0")
            if n == 7:
                for q in (6, 7): p(f"v_cndmask_b32 v{VF + q}, v{VF + q}, {vONE}, s[64:65]")
        p(f"v_cvt_pk_bf16_f32 v{PF + 9}, v{rs[9]}, v{rs[9] + 1}")
        p(f"v_mfma_f32_32x32x16_bf16 {vr(AQ, 16)}, {vr(VF + 4, 4)}, {vr(PF + 4, 4)}, {vr(AQ, 16)}")
        p.wait(rv)
        for n in range(2): p(f"v_cndmask_b32 v{VP + n}, v{VP + n}, {vONE}, s[64:65]")
        p(f"v_mfma_f32_32x32x16_bf16 {vr(AQ, 16)}, {vr(VP, 4)}, {vr(PP, 4)}, {vr(AQ, 16)}")
        dma(); dma()
        p(late); late = []
        p(f"v_mov_b32 v{m}, v{AQ + 12}")
        p(f"v_permlane32_swap_b32 v{AQ + 12}, v{m}")
        p(f"v_rcp_f32 v{m}, v{m}")
        st = []
        for f in range(2):
            for n in range(0, 8, 2):
                p(f"v_pk_mul_f32 {vr(AQ + 8 * f + n, 2)}, {vr(AQ + 8 * f + n, 2)}, {vr(m, 2)} op_sel_hi:[1,0]")
            for n in range(4):
                p(f"v_cvt_pk_bf16_f32 v{QF + 4 * f + n}, v{AQ + 8 * f + 2 * n}, v{AQ + 8 * f + 2 * n + 1}")
            if f == 1:
                for n in (6, 7): p(f"v_and_b32 v{QF + n}, {vMK}, v{QF + n}")
            st.append(p(f"buffer_store_dwordx4 {vr(QF + 4 * f, 4)}, {vL16}, {WS}, {sU[4]} offen offset:{Q_O + f * 1024}"))
        self.o_st = st
        self.stamp("attn")

    def finish(self):
        p = self.p
        if any(o.startswith("sc_") for o in self.opt):
            self.stamp("end")
            lab = p.label("SPIN")
            p("s_add_u32 s98, s98, 6000")
            p(lab + ":")
            p.wait(p("s_memrealtime s[100:101]"))
            p("s_sub_u32 s100, s100, s98")
            p("s_cmp_lt_i32 s100, 0")
            p(f"s_cbranch_scc1 {lab}")
        if self.stamps:
            p.wait(p(f"s_memrealtime s[{STAMP0}:{STAMP0 + 1}]"))
            p(f"v_writelane_b32 v255, s{STAMP0}, 62")
            p.wait(p(f"s_memtime s[{STAMP0}:{STAMP0 + 1}]"))
            p(f"v_writelane_b32 v255, s{STAMP0}, 63")
            p("s_lshl_b32 s62, s2, 10")
            p(f"s_add_u32 s62, s62, {WS_DBG}")
            p(f"v_lshlrev_b32 v254, 2, {vTID}")
            p(f"buffer_store_dword v255, v254, {WS}, s62 offen")
        p("s_endpgm")

    def build(self):
        p = self.p
        self.startup()
        self.phase1()
        import phases2
        phases2.rest(self)
        body = p.text()
        hdr = open("cdna_kernels/%s.s.ref" % NAME).read().split("; Override launch")[0]
        s = hdr + "; @launch grid=(256,1,1) block=(256,1,1) lds=163840\n"
        s += f'.amdgcn_target "amdgcn-amd-amdhsa--gfx950"\n.text\n.globl {NAME}_kernel\n.p2align 12\n.p2align 8\n.type {NAME}_kernel,@function\n{NAME}_kernel:\n'
        s += body + "".join(self.ool) + "L_END:\n    s_endpgm\n"
        s += f""".section .rodata,"a"
.p2align 6
.amdhsa_kernel {NAME}_kernel
  .amdhsa_next_free_vgpr 512
  .amdhsa_next_free_sgpr 102
  .amdhsa_accum_offset 256
  .amdhsa_group_segment_fixed_size 0
  .amdhsa_kernarg_size 104
  .amdhsa_user_sgpr_count 2
  .amdhsa_user_sgpr_kernarg_segment_ptr 1
  .amdhsa_system_sgpr_workgroup_id_x 1
  .amdhsa_float_denorm_mode_32 3
.end_amdhsa_kernel
"""
        return s


if __name__ == "__main__":
    import argparse
    ap = argparse.ArgumentParser()
    ap.add_argument("-o", default="cdna_kernels/%s.s" % NAME)
    ap.add_argument("--stop", type=int, default=99)
    ap.add_argument("--stamps", action="store_true")
    ap.add_argument("--slow", action="store_true")
    ap.add_argument("--opt", default="")
    a = ap.parse_args()
    sys.modules["kern"] = sys.modules["__main__"]
    k = K(a.stop, a.stamps, a.slow, [o for o in a.opt.split(",") if o])
    s = k.build()
    open(a.o, "w").write(s)
    if a.stamps:
        open(a.o + ".stamps", "w").write("\n".join(k.stamp_names))
    print("lines", s.count("\n"), "nops", k.p.nnop)
```

```python
from kern import *

def kb32(s):
    return 32 * (s >> 1) + 8 * (s & 1)

def rounds(p, n, dq, rq, fq=None, nr=8, nf=0):
    for _ in range(n):
        if dq: p(dq.pop(0))
        for i in range(nr):
            if rq: p(rq.pop(0))
            if fq and i < nf: p(fq.pop(0))

def nonce_duty(k):
    p = k.p
    p(f"s_lshl_b32 s62, {sW}, 8")
    p("s_add_u32 s62, s62, s2")
    lab = k.cond(f"s_cmp_eq_u32 s62, {3 * 256 + 255}", 0)
    p(f"v_lshrrev_b32 v32, 2, {vL}")
    p(f"v_and_b32 v33, 3, {vL}")
    p("v_lshlrev_b32 v32, 7, v32")
    p(f"v_lshl_add_u32 {vPA}, v33, 4, v32")
    p(f"s_movk_i32 s62, {WS_XCC}")
    chk = [f"v_xor_b32 v{40 + n}, {sN}, v{40 + n}" for n in range(4)]
    chk += ["v_or3_b32 v40, v40, v41, v42", "v_or_b32 v40, v40, v43", "v_cmp_gt_u32 vcc, 8, v40"]
    k.poll([f"buffer_load_dwordx4 v[40:43], {vPA}, {WS}, s62 offen sc1"], chk)
    k.flag(None, "0", "sc1")
    k.endcond(lab)

def idle_path(k):
    p = k.p
    AC, AG, FA, FB = 64, 68, 80, 96
    R, ONE = 40, 38
    for r in range(4):
        p(f"v_bfe_u32 v{TG[r]}, {vN}, {8 * r}, 8")
    p(k.gather_pre(1344, ONE))
    k.publish(k.o_st, sU[5])
    k.stamp("opub")
    k.gather896(R, ONE, None, False)
    p(f"v_lshlrev_b32 v33, 3, {vTID}")
    p(f"v_add_u32 v33, {L_ET}, v33")
    p(f"ds_write_b64 v33, {vr(R + 16, 2)}")
    p(f"v_lshlrev_b32 v33, 2, {vTID}")
    p(f"v_add_u32 v33, {L_ET}, v33")
    p(f"ds_write_b32 v33, {vONE} offset:2048")
    p(f"ds_write_b32 v33, v{VP + 2} offset:3072")
    p("s_sub_u32 s66, s2, 224")
    p("s_min_u32 s66, s66, 27")
    p(f"v_and_b32 v32, 15, {vL}")
    p("s_lshl_b32 s62, s66, 2")
    p(f"s_add_u32 s62, s62, {sW}")
    p("s_lshl_b32 s63, s62, 5")
    p("v_lshl_add_u32 v33, v32, 1, s63")
    b1 = p("global_load_ushort v34, v33, s[36:37]")
    p("s_lshl_b32 s63, s66, 7")
    p(f"s_add_u32 s67, s63, {WS_FE}")
    p("s_lshr_b32 s63, s62, 1")
    p("s_lshl_b32 s63, s63, 10")
    p("s_and_b32 s62, s62, 1")
    p("s_lshl_b32 s62, s62, 8")
    p("s_add_u32 s62, s62, s63")
    p(f"s_add_u32 s68, s62, {WS_EXT}")
    p("s_lshl_b32 s62, s66, 6")
    p(f"s_add_u32 s69, s62, {WS_GRAM}")
    p("v_mov_b32 v33, 3072")
    for row, off in ((0, 896), (1, 0), (4, 2048)):
        p(f"v_cmp_eq_u32 vcc, {row}, v32")
        p(f"v_mov_b32 v35, {off}")
        p("v_cndmask_b32 v33, v33, v35, vcc")
    p(f"v_lshrrev_b32 v35, 5, {vL}")
    p("v_lshl_add_u32 v33, v35, 5, v33")
    p(f"v_bfe_u32 v35, {vL}, 4, 1")
    p("v_lshl_add_u32 v33, v35, 3, v33")
    p(f"v_add_u32 v33, {L_ET}, v33")
    p(f"s_lshl_b32 s62, {sW}, 5")
    p(f"v_xor_b32 v35, s62, v{vT16[0]}")
    p(f"v_add_u32 v35, {L_WO}, v35")
    p.waitall(vm=False, lk=True)
    p("s_barrier")
    rd = {}
    def read(s):
        for e in range(2):
            p(f"ds_read_b64 {vr(FA + 4 * (s % 3) + 2 * e, 2)}, v33 offset:{s * 64 + e * 16}")
            rd[s] = p(f"ds_read_b64_tr_b16 {vr(FB + 4 * (s % 3) + 2 * e, 2)}, v35 offset:{s * 4096 + e * 1024}")
    read(0); read(1)
    for s in range(14):
        if s + 2 < 14: read(s + 2)
        p.wait(rd[s])
        a = vr(FA + 4 * (s % 3), 4)
        p(f"v_mfma_f32_16x16x32_bf16 {vr(AC, 4)}, {a}, {vr(FB + 4 * (s % 3), 4)}, {'0' if s == 0 else vr(AC, 4)}")
        p(f"v_mfma_f32_16x16x32_bf16 {vr(AG, 4)}, {a}, {a}, {'0' if s == 0 else vr(AG, 4)}")
    p(f"v_cvt_pk_bf16_f32 v41, v{AC}, v{AC + 1}")
    p("v_lshlrev_b32 v44, 16, v41")
    p("v_and_b32 v45, 0xffff0000, v41")
    p(f"v_sub_f32 v46, v{AC}, v44")
    p(f"v_sub_f32 v47, v{AC + 1}, v45")
    p("v_cvt_pk_bf16_f32 v40, v44, v46")
    p("v_cvt_pk_bf16_f32 v42, v47, v45")
    p(f"v_cmp_gt_u32 vcc, 16, {vL}")
    p.wait(b1)
    p("v_lshl_or_b32 v43, v34, 16, v34")
    p("v_cndmask_b32 v43, 0, v43, vcc")
    p(f"v_lshlrev_b32 v33, 3, {vL}")
    lab = k.cond("s_cmp_lt_u32 s2, 252", 0)
    p("s_mov_b32 exec_hi, 0")
    st = [p(f"buffer_store_dwordx4 v[40:43], {vF16}, {WS}, s68 offen sc1")]
    p("s_mov_b32 exec_lo, 0xff")
    st.append(p(f"buffer_store_dwordx2 {vr(AG, 2)}, v33, {WS}, s69 offen sc1"))
    p("s_mov_b64 exec, -1")
    p.wait(st)
    p("s_barrier")
    l2 = k.cond(f"s_cmp_eq_u32 {sW}, 0", 0)
    k.flag(None, "s67", "sc1")
    k.endcond(l2)
    k.endcond(lab)
    k.stamp("ext")
    nonce_duty(k)
    p(f"v_lshlrev_b32 v32, 7, {vL}")
    p(f"s_and_b32 s62, {sJ}, 1")
    p("s_mul_i32 s62, s62, 40960")
    p(f"s_add_u32 s62, s62, {sQ}")
    p(f"s_add_u32 s62, s62, 32768")
    p(f"s_lshr_b32 s63, {sRB}, 3")
    p("s_lshl_b32 s63, s63, 1")
    p(f"s_and_b32 s64, {sJ}, 1")
    p("s_add_u32 s63, s63, s64")
    p(f"s_mul_i32 s64, {sW}, 49")
    p("s_add_u32 s63, s63, s64")
    p("s_lshl_b32 s63, s63, 13")
    for n in range(13):
        if n < k.o("nw2t", 6):
            p(f"buffer_load_dword v33, v32, {W2}, s63 offen")
            p(f"s_add_u32 s63, s63, {4 * 8192}")
        if n < 5 and 'hsc1' not in k.opt:
            p(f"buffer_load_dword v33, v32, {WS}, s62 offen sc1")
            p("s_add_u32 s62, s62, 8192")
    k.finish()


def phase2(k):
    p = k.p
    OF, AC, XV, GA, SB, SS, GB, B2, T, PK, S = 32, 96, 112, 128, 144, 160, 176, 208, 224, 240, 32
    TB = [248, 249, 250, 251]
    sW1B, sW1A, sO, sA, sST, sFA = sU[0], sU[1], sU[2], sU[3], sU[6], sU[7]
    a, b = 252, 253
    p(f"s_lshl_b32 {sW1A}, {sJ2}, 8")
    p(f"s_mul_i32 s62, {sW}, {112 * 3584}")
    p(f"s_add_u32 {sW1A}, {sW1A}, s62")
    p(f"s_add_u32 {sW1B}, {sW1A}, 128")
    for nt in range(4):
        p(f"v_add_u32 v{TB[nt]}, {L_WO}, v{vT16[nt]}")
    p("s_waitcnt vmcnt(2)")
    p("s_barrier")
    p(f"s_cmp_lt_u32 {sJ}, 14")
    p("s_cbranch_scc0 L_IDLE")
    w1b = k.strip_dma(W1, vSB, sW1B, 32 * 3584, sW14, L_W1B)
    rd = [I(f"ds_read_b64_tr_b16 {ar(16 * h + 4 * nt + 2 * e, 2)}, v{TB[nt ^ (h & 1)]} offset:{28 * h * 128 + e * 1024}")
          for h in range(16) for nt in range(4) for e in range(2)]
    rdl = list(rd)
    pre = Is(f"v_lshrrev_b32 v{a}, 4, {vL}", f"v_and_b32 v{b}, 15, {vL}",
             f"s_lshl_b32 s63, {sMH}, 1", f"s_lshr_b32 s64, {sW}, 1", "s_add_u32 s63, s63, s64", "s_lshl_b32 s63, s63, 7",
             f"s_lshl_b32 s64, {sRB}, 9", "s_add_u32 s63, s63, s64",
             f"s_add_u32 s64, s63, {WS_FO}", f"v_lshl_add_u32 {vPA}, v{b}, 2, s64",
             f"s_and_b32 s65, {sW}, 1", "s_lshl_b32 s64, s65, 3", f"s_add_u32 s64, s64, {sNT}", "s_lshl_b32 s64, s64, 2", "s_add_u32 s63, s63, s64",
             f"s_add_u32 {sFA}, s63, {WS_FA}",
             "s_lshl_b32 s63, s65, 8", f"s_add_u32 {sO}, {sQ2}, s63",
             "s_mul_i32 s63, s65, 14336", f"s_add_u32 {sA}, {sQ2}, s63", f"s_lshl_b32 s63, {sNT}, 11", f"s_add_u32 {sA}, {sA}, s63",
             f"s_add_u32 {sA}, {sA}, {Q_A}",
             "s_mul_i32 s63, s65, 3584", f"s_add_u32 {sST}, {sQ2}, s63", f"s_lshl_b32 s63, {sNT}, 9", f"s_add_u32 {sST}, {sST}, s63",
             f"s_add_u32 {sST}, {sST}, {Q_ST}",
             f"v_lshlrev_b32 v{T}, 7, v{b}", f"v_lshl_add_u32 v{T}, v{a}, 3, v{T}", f"s_lshr_b32 s63, {sWB}, 1", f"s_add_u32 s63, s63, {L_XT}",
             f"v_add_u32 v{T}, s63, v{T}", f"v_lshlrev_b32 v{T + 1}, 4, v{a}", f"v_add_u32 v{T + 1}, {L_VEC}, v{T + 1}",
             f"v_lshrrev_b32 v{a}, 5, {vL}", f"v_lshlrev_b32 v{a}, 8, v{a}", f"v_lshl_add_u32 v21, v{b}, 4, v{a}")
    k.vi = k.vec_items()
    pre += k.vi
    n1, n2 = k.o("o_r1", 5), k.o("o_r2", 7)
    rounds(p, n1, w1b, rd, pre, nf=6)
    k.publish(k.o_st, sU[5])
    k.stamp("opub")
    rounds(p, n2, w1b, rd, pre, nf=6)
    p(pre)
    k.stamp("wopre")
    k.poll_flags()
    k.stamp("opoll")
    oq, old = [], []
    for h in range(16):
        x = I(f"buffer_load_dwordx4 {vr(OF + 4 * h, 4)}, {vF16}, {WS}, {sO} offen offset:{Q_O + (h & 1) * 2048} sc1")
        old.append(x)
        oq.append([x, I(f"s_add_u32 {sO}, {sO}, 4096")] if h & 1 and h < 15 else [x])
    PRE = k.o("g2pre", 6)
    xr = [I(f"ds_read_b64 {vr(PK + 2 * n, 2)}, v{T} offset:{n * 32}") for n in range(4)]
    vrd = [I(f"ds_read_b128 {vr(reg + 4 * n, 4)}, v{T + 1} offset:{vi * 256 + n * 64}") for vi, reg in ((0, GA), (2, SS), (1, SB), (3, GB), (4, B2)) for n in range(4)]
    rd += xr
    rounds(p, PRE, oq, rd, nr=6)
    p(rd)
    w1a = k.strip_dma(W1, vSB, sW1A, 32 * 3584, sW14, L_W1A)
    k.w1b_last = w1b[-1][-1] if w1b else None
    fill = [W(xr)]
    for n in range(8):
        fill += Is(f"v_lshlrev_b32 v{XV + 2 * n}, 16, v{PK + n}", f"v_and_b32 v{XV + 2 * n + 1}, 0xffff0000, v{PK + n}")
    dq = oq + w1b
    p.wait(old[0], rdl[7])
    for h in range(16):
        for nt in range(4):
            p(f"v_mfma_f32_16x16x32_bf16 {vr(AC + 4 * nt, 4)}, {ar(16 * h + 4 * nt, 4)}, {vr(OF + 4 * h, 4)}, {'0' if h == 0 else vr(AC + 4 * nt, 4)}")
            if nt == 0:
                x = dq.pop(0) if dq else w1a.pop(0)
                if x: p(x)
                elif fill: p(fill.pop(0))
            elif nt == 3:
                if h < 15: p.wait(old[h + 1], rdl[8 * h + 15])
                if h == k.o("g2bar", 4):
                    p.wait(rdl[-1], k.vi[-1]); p("s_barrier")
                    fill += vrd
            elif fill:
                p(fill.pop(0))
    p(fill)
    k.stamp("gemm2")
    p.wait(vrd)
    st = []
    for u in range(2):
        for n in range(8 * u, 8 * u + 8, 2):
            p(f"v_pk_fma_f32 {vr(AC + n, 2)}, {vr(AC + n, 2)}, {vr(GA + n, 2)}, {vr(XV + n, 2)}")
        for n in range(8 * u, 8 * u + 8, 2):
            p(f"v_pk_mul_f32 {vr(T + n, 2)}, {vr(AC + n, 2)}, {vr(SS + n, 2)}")
        for n in range(4 * u, 4 * u + 4):
            p(f"v_cvt_pk_bf16_f32 v{PK + n}, v{T + 2 * n}, v{T + 2 * n + 1}")
        st.append(p(f"buffer_store_dwordx4 {vr(PK + 4 * u, 4)}, {vL16}, {WS}, {sA} offen offset:{u * 1024}"))
    terms = [(AC, None), (AC, AC), (T, None), (T, T), (T, SS), (T, SB)]
    for n in range(0, 16, 2):
        for si, (x, y) in enumerate(terms):
            d = vr(S + 2 * si, 2)
            if y is None:
                if n == 0: continue
                p(f"v_pk_add_f32 {d}, {vr(x, 2) if n == 2 else d}, {vr(x + n, 2)}")
            elif n == 0:
                p(f"v_pk_mul_f32 {d}, {vr(x, 2)}, {vr(y, 2)}")
            else:
                p(f"v_pk_fma_f32 {d}, {vr(x + n, 2)}, {vr(y + n, 2)}, {d}")
    for si in (0, 3, 1, 4, 2, 5):
        p(f"v_add_f32 v{S + 2 * si}, v{S + 2 * si}, v{S + 2 * si + 1}")
    for n in range(3):
        p(f"v_permlane32_swap_b32 v{S + 2 * n}, v{S + 6 + 2 * n}")
    for n in range(3):
        p(f"v_add_f32 v{S + 12 + n}, v{S + 2 * n}, v{S + 6 + 2 * n}")
        p(f"v_add_f32 v{S + 16 + n}, v{S + 2 * n}, v{S + 6 + 2 * n}")
    for n in range(3):
        p(f"v_permlane16_swap_b32 v{S + 12 + n}, v{S + 16 + n}")
    for n in range(3):
        p(f"v_add_f32 v{S + 12 + n}, v{S + 12 + n}, v{S + 16 + n}")
    st.append(p(f"buffer_store_dwordx4 {vr(S + 12, 4)}, v21, {WS}, {sST} offen"))
    k.stamp("epi2")
    k.a_st, k.sFA, k.w1a = st, sFA, w1a
    keep = [I(f"v_pk_fma_f32 {vr(AC + n, 2)}, {vr(B2 + n, 2)}, {vr(GB + n, 2)}, {vr(AC + n, 2)}") for n in range(0, 16, 2)]
    for n in range(16):
        keep += Is(f"v_accvgpr_write_b32 a{224 + n}, v{AC + n}", f"v_accvgpr_write_b32 a{240 + n}, v{GB + n}")
    k.keep = keep


def w2_dma(slot, sW2):
    out = []
    for e in range(4):
        g = [I(f"s_add_u32 m0, {sWB}, {W2SLOT[slot]}"), I(f"s_add_u32 {sW2}, {sW2}, {32 * 896}")] if e == 0 else []
        out.append(g + [I(f"buffer_load_dwordx4 v{vSA[e]}, {W2}, {sW2} offen offset:{e * 1024} lds")])
    return out

def phase3(k):
    p = k.p
    AF, AC, WB, EX, AE = 32, 144, 208, 232, 248
    C1, C3, BE = 252, 253, 254
    RAW, R, G4, G2 = AF + 84, 192, 204, 30
    TA = [18, 19]
    vA3, vST, vEF = "v20", "v21", "v22"
    sA, sST, sW2, sD0, sD1, sFD = sU[0], sU[2], sU[3], sU[4], sU[5], sU[6]
    k.sW2, k.sFD = sW2, sFD
    w1a = k.w1a
    p(f"v_and_b32 v29, 1, {vL}")
    p(f"s_lshl_b32 s62, {sJ2}, 8")
    p(f"s_add_u32 s62, s62, {WS_FE}")
    p(f"v_lshl_add_u32 {vEF}, v29, 7, s62")
    efl = f"buffer_load_dword {vPD}, {vEF}, {WS}, 0 offen sc1"
    ef = p(efl)
    if k.w1b_last is not None:
        p.wait(k.w1b_last); p("s_barrier")
    rd = [I(f"ds_read_b64_tr_b16 {ar(112 * t + 4 * s + 2 * e, 2)}, v{vT32[t]} offset:{L_W1B + (kb32(s) + 16 * e) * 128}")
          for t in range(2) for s in range(28) for e in range(2)]
    rdl = list(rd)
    keep = k.keep
    rounds(p, k.o("a_r1", 5), w1a, rd, keep, nf=4)
    k.publish(k.a_st, k.sFA)
    k.stamp("apub")
    pre = keep + Is(f"v_add_u32 v{TA[0]}, {L_W1A}, v{vT32[0]}", f"v_add_u32 v{TA[1]}, {L_W1A}, v{vT32[1]}",
              f"v_bfe_u32 v25, {vL}, 4, 1", f"v_mul_u32_u24 {vA3}, 14336, v25", f"v_add_u32 {vA3}, {vA3}, {vST}",
              "v_mul_u32_u24 v25, 3584, v25", f"v_add_u32 {vST}, v25, {vST}",
              f"s_add_u32 {sA}, {sQ}, {Q_A}", f"s_add_u32 {sST}, {sQ}, {Q_ST}",
              f"v_and_b32 v29, 7, {vL}", "v_min_u32 v29, 6, v29", f"v_and_b32 {vPA}, 8, {vL}", f"v_or_b32 v29, v29, {vPA}",
              f"s_lshl_b32 s64, {sRB}, 9", f"s_lshl_b32 s65, {sW}, 7", "s_add_u32 s64, s64, s65", f"s_add_u32 s64, s64, {WS_FA}",
              f"v_lshl_add_u32 {vPA}, v29, 2, s64")
    rounds(p, len(w1a), w1a, rd, pre, nf=4)
    p(pre)
    p.wait(ef)
    p(k.recheck([efl], [f"v_cmp_eq_u32 vcc, {sN}, {vPD}"]))
    p(f"s_lshl_b32 s62, {sJ2}, 12")
    p(f"s_add_u32 s62, s62, {WS_EXT}")
    p(f"s_lshl_b32 s63, {sJ2}, 7")
    p(f"s_add_u32 s63, s63, {WS_GRAM}")
    eq = [I(f"buffer_load_dwordx4 {vr(G4, 4)}, off, {WS}, s63 sc1"), I(f"buffer_load_dwordx2 {vr(G2, 2)}, off, {WS}, s63 offset:32 sc1")]
    eq += [I(f"buffer_load_dwordx4 {vr(EX + 4 * t, 4)}, {vL16}, {WS}, s62 offen offset:{t * 1024} sc1") for t in range(4)]
    eql = list(eq)
    ne = k.o("a_ext", 2)
    rounds(p, ne, eq, rd, nr=4)
    k.stamp("w1pre")
    p(f"s_mov_b32 s66, s62")
    for x in eq: x.text = x.text.replace("s62", "s66")
    k.poll_flags()
    k.stamp("apoll")
    ald, aq = [], []
    for s in range(28):
        x = I(f"buffer_load_dwordx4 {vr(AF + 4 * s, 4)}, {vA3}, {WS}, {sA} offen offset:{(s % 8) * 512} sc1")
        ald.append(x)
        aq.append([x, I(f"s_add_u32 {sA}, {sA}, 4096")] if s % 8 == 7 else [x])
    sld = [I(f"buffer_load_dwordx4 {vr(RAW + 4 * n, 4)}, {vST}, {WS}, {sST} offen offset:{n * 512} sc1") for n in range(7)]
    wrd = {}
    def wread(s):
        wrd[s] = [I(f"ds_read_b64_tr_b16 {vr(WB + 8 * (s % 3) + 4 * t + 2 * e, 2)}, v{TA[t]} offset:{(kb32(s) + 16 * e) * 128}")
                  for t in range(2) for e in range(2)]
        return list(wrd[s])
    p(aq.pop(0)); p(aq.pop(0))
    p("s_barrier")
    rd = wread(0) + wread(1) + rd
    PRE = k.o("p1pre", 6)
    rounds(p, PRE - 2, aq, rd)
    p(rd)
    post = Is(f"s_mul_i32 {sW2}, {sW}, {448 * 896}", f"s_lshl_b32 s62, {sNT}, 7", f"s_add_u32 {sW2}, {sW2}, s62", f"s_sub_u32 {sW2}, {sW2}, {32 * 896}",
              f"s_lshl_b32 {sD0}, {sJ2}, 13", f"s_add_u32 {sD0}, {sD0}, {sQ}", f"s_add_u32 {sD1}, {sD0}, 4096",
              f"s_lshl_b32 s62, {sRB}, 8", f"s_lshl_b32 s63, {sW}, 6", "s_add_u32 s62, s62, s63", f"s_lshl_b32 s63, {sJ2}, 2",
              "s_add_u32 s62, s62, s63", f"s_add_u32 {sFD}, s62, {WS_FD}")
    D = 448.0
    A_ = -2.0 * math.sqrt(2.0 / math.pi) * math.log2(math.e)
    B_ = A_ * 0.044715
    sm = [W(sld, eql[:2])]
    def v(t): sm.append(I(t))
    for n in range(3):
        v(f"v_add_f32 v{R + n}, v{RAW + n}, v{RAW + 4 + n}")
        v(f"v_add_f32 v{R + 4 + n}, v{RAW + 8 + n}, v{RAW + 12 + n}")
        v(f"v_add_f32 v{R + 8 + n}, v{RAW + 16 + n}, v{RAW + 20 + n}")
        v(f"v_add_f32 v{R + n}, v{R + n}, v{RAW + 24 + n}")
    nraw = len(sm)
    for n in range(3):
        v(f"v_add_f32 v{R + 4 + n}, v{R + 4 + n}, v{R + 8 + n}")
    for n in range(3):
        v(f"v_add_f32 v{R + n}, v{R + n}, v{R + 4 + n}")
    for n in range(3):
        v(f"v_mov_b32 v{R + 4 + n}, v{R + n}")
    v(f"v_cmp_gt_u32 s[64:65], 32, {vL}")
    for n in range(3):
        v(f"v_permlane32_swap_b32 v{R + n}, v{R + 4 + n}")
    S1, S2, S3, S4, S5, S6 = R, R + 1, R + 2, R + 4, R + 5, R + 6
    mu, v1, sg1, gm, e2, t0, t1, rho = R, R + 1, R + 3, R + 7, R + 8, R + 9, R + 10, R + 11
    Gss, Gsb, Gbb, Gs, Gb = G4, G4 + 1, G4 + 3, G2, G2 + 1
    v(f"v_mul_f32 v{mu}, {fb(-1 / D)}, v{S1}")
    v(f"v_mul_f32 v{v1}, {fb(1 / D)}, v{S2}")
    v(f"v_fma_f32 v{v1}, -v{mu}, v{mu}, v{v1}")
    v(f"v_max_f32 v{v1}, 0, v{v1}")
    v(f"v_add_f32 v{v1}, {fb(1e-5)}, v{v1}")
    v(f"v_sqrt_f32 v{sg1}, v{v1}")
    v(f"v_fma_f32 v{gm}, v{mu}, v{Gs}, v{S3}")
    v(f"v_fma_f32 v{t0}, v{mu}, v{Gsb}, v{S6}")
    v(f"v_fma_f32 v{gm}, v{sg1}, v{Gb}, v{gm}")
    v(f"v_mul_f32 v{gm}, {fb(-1 / D)}, v{gm}")
    v(f"v_mul_f32 v{t0}, v{sg1}, v{t0}")
    v(f"v_fma_f32 v{t0}, v{mu}, v{S5}, v{t0}")
    v(f"v_mul_f32 v{t1}, v{mu}, v{mu}")
    v(f"v_fma_f32 v{e2}, v{t1}, v{Gss}, v{S4}")
    v(f"v_fma_f32 v{e2}, v{v1}, v{Gbb}, v{e2}")
    v(f"v_fma_f32 v{e2}, 2.0, v{t0}, v{e2}")
    v(f"v_mul_f32 v{e2}, {fb(1 / D)}, v{e2}")
    v(f"v_fma_f32 v{e2}, -v{gm}, v{gm}, v{e2}")
    v(f"v_max_f32 v{e2}, 0, v{e2}")
    v(f"v_fmac_f32 v{e2}, {fb(1e-5)}, v{v1}")
    v(f"v_sqrt_f32 v{BE}, v{e2}")
    v(f"v_rsq_f32 v{rho}, v{e2}")
    v(f"v_cndmask_b32 v{mu}, v{gm}, v{mu}, s[64:65]")
    v(f"v_mul_f32 v{C1}, {fb(A_)}, v{rho}")
    v(f"v_mul_f32 v{t0}, v{rho}, v{rho}")
    v(f"v_mul_f32 v{t0}, v{t0}, v{rho}")
    v(f"v_mul_f32 v{C3}, {fb(B_)}, v{t0}")
    v(f"v_cvt_pk_bf16_f32 v{AE}, v{mu}, v{mu}")
    v(f"v_cvt_pk_bf16_f32 v{t0}, v{sg1}, v{BE}")
    v(f"v_and_b32 v{t1}, 0xffff0000, v{AE}")
    v(f"v_sub_f32 v{mu}, v{mu}, v{t1}")
    v(f"v_lshlrev_b32 v{t1}, 16, v{t0}")
    v(f"v_and_b32 v{t0}, 0xffff0000, v{t0}")
    v(f"v_sub_f32 v{sg1}, v{sg1}, v{t1}")
    v(f"v_sub_f32 v{e2}, v{BE}, v{t0}")
    v(f"v_cvt_pk_bf16_f32 v{AE + 1}, v{mu}, v{t1}")
    v(f"v_cvt_pk_bf16_f32 v{AE + 2}, v{t1}, v{sg1}")
    v(f"v_cvt_pk_bf16_f32 v{AE + 3}, v{t0}, v{e2}")
    nsm = len(sm)

    def mm(t, s):
        acc = vr(AC + 16 * t, 16)
        if s == 28:
            return I(f"v_mfma_f32_32x32x16_bf16 {acc}, {vr(EX + 4 * t, 4)}, {vr(AE, 4)}, {acc}")
        a = vr(WB + 8 * (s % 3) + 4 * t, 4) if t < 2 else ar(112 * (t - 2) + 4 * s, 4)
        return I(f"v_mfma_f32_32x32x16_bf16 {acc}, {a}, {vr(AF + 4 * s, 4)}, {'0' if s == 0 else acc}")
    w2q = []
    for sg in range(10): w2q += w2_dma(sg, sW2)
    k.w2_ld = {sg: w2q[4 * sg + 3][-1] for sg in range(10)}
    xq = list(sld)
    n2 = 0
    SM0 = k.o("p1sm", 11)
    p.wait(wrd[0], ald[0], rdl[-1])
    for s in range(28):
        nxt = wread(s + 2) if s + 2 < 28 else []
        if s == 28 - PRE:
            p("s_barrier")
            aq += eq + w2q[:PRE - len(eq)]; w2q = w2q[PRE - len(eq):]
        third = s < 7 or (s >= SM0 and n2 < k.o("p1n2", 14))
        fq = post if s < SM0 else sm
        p(mm(0, s)); p(nxt[:2])
        if s + PRE == 21: assert nsm - len(sm) >= nraw, "statistics registers still live"
        p(aq.pop(0))
        p(mm(1, s)); p(nxt[2:])
        take(p, fq, (3 if third else 2) + (0 if nxt else 2))
        if third:
            p(mm(2, n2)); n2 += 1
            bud = 4
            if xq: p(xq.pop(0)); bud -= 3
            take(p, fq, bud)
        if s < 27: p.wait(wrd[s + 1], ald[s + 1])
    assert not post
    p(sm)
    p.wait(eql)
    p(mm(0, 28)); p(mm(1, 28))
    p("s_barrier")
    k.stamp("p1")
    TM, PO = WB, WB + 8
    stores = []
    hfl = "sc1" if 'hsc1' in k.opt else ""
    def gelu(t, grp, pk):
        x = AC + 16 * t + 4 * grp
        tm = TM + 4 * (grp & 1)
        f = grp >> 1
        po = PO + 4 * ((2 * t + f) % 4) + 2 * (grp & 1)
        o = []
        if pk:
            o += [f"v_pk_mul_f32 {vr(tm + n, 2)}, {vr(x + n, 2)}, {vr(x + n, 2)}" for n in (0, 2)]
            o += [f"v_pk_fma_f32 {vr(tm + n, 2)}, {vr(tm + n, 2)}, {vr(C1, 2)}, {vr(C1, 2)} op_sel:[0,1,0] op_sel_hi:[1,1,0]" for n in (0, 2)]
            o += [f"v_pk_mul_f32 {vr(tm + n, 2)}, {vr(tm + n, 2)}, {vr(x + n, 2)}" for n in (0, 2)]
        else:
            o += [f"v_mul_f32 v{tm + n}, v{x + n}, v{x + n}" for n in range(4)]
            o += [f"v_fma_f32 v{tm + n}, v{tm + n}, v{C3}, v{C1}" for n in range(4)]
            o += [f"v_mul_f32 v{tm + n}, v{tm + n}, v{x + n}" for n in range(4)]
        o += [f"v_exp_f32 v{tm + n}, v{tm + n}" for n in range(4)]
        if pk:
            o += [f"v_pk_fma_f32 {vr(tm + n, 2)}, {vr(tm + n, 2)}, {vr(BE, 2)}, {vr(BE, 2)} op_sel_hi:[1,0,0]" for n in (0, 2)]
        else:
            o += [f"v_fma_f32 v{tm + n}, v{tm + n}, v{BE}, v{BE}" for n in range(4)]
        o += [f"v_rcp_f32 v{tm + n}, v{tm + n}" for n in range(4)]
        if pk:
            o += [f"v_pk_mul_f32 {vr(tm + n, 2)}, {vr(tm + n, 2)}, {vr(x + n, 2)}" for n in (0, 2)]
        else:
            o += [f"v_mul_f32 v{tm + n}, v{tm + n}, v{x + n}" for n in range(4)]
        o += [f"v_cvt_pk_bf16_f32 v{po + n}, v{tm + 2 * n}, v{tm + 2 * n + 1}" for n in range(2)]
        o = Is(*o)
        if grp & 1:
            x = I(f"buffer_store_dwordx4 {vr(po - 2, 4)}, {vL16}, {WS}, {sD0 if t < 2 else sD1} offen offset:{((2 * t + f) % 4) * 1024} {hfl}")
            stores.append(x); o.append(x)
        return o
    mq = [mm(2, s) for s in range(n2, 29)] + [mm(3, s) for s in range(29)]
    groups = [(t, g) for t in range(4) for g in range(4)]
    gi = 0
    cur = []
    for n, m in enumerate(mq):
        p(m)
        bud = 6
        if w2q and n % 2 == 0:
            bud -= cost(w2q[0]) + 1; p(w2q.pop(0))
        if n < 2: continue
        while bud > 0:
            if not cur:
                if n >= len(mq) - 3 or gi >= 8: break
                cur = gelu(*groups[gi], False); gi += 1
            if cost(cur[0]) > bud + (1 if bud == 6 else 0): break
            bud -= cost(cur[0]); p(cur.pop(0))
    p(cur)
    while gi < 16:
        g = gelu(*groups[gi], True); gi += 1
        p(g[:10])
        if w2q and gi < 16: p(w2q.pop(0))
        p(g[10:])
        if w2q and gi < 15: p(w2q.pop(0))
    k.w2q = w2q
    k.d_st = stores
    k.stamp("gelu")


def phase4(k):
    p = k.p
    HB, AC, RD, TB = 32, 160, 192, 240
    BS, GB = 128, 144
    NR = 24
    sW2 = k.sW2
    for b in range(3):
        p(f"s_add_u32 s62, {sWB}, {65536 * b}")
        for nt in range(4):
            p(f"v_add_u32 v{TB + 4 * b + nt}, s62, v{vT16[nt]}")
    lastrd = {}
    def wread(sg):
        base = W2SLOT[sg % 10]
        o = [I(f"ds_read_b64_tr_b16 {ar(16 * sg + 4 * nt + 2 * e, 2)}, v{TB + 4 * (base >> 16) + nt} offset:{(base & 0xffff) + e * 1024}")
             for nt in range(4) for e in range(2)]
        lastrd[sg] = o[-1]
        o[0] = [W(k.w2_ld[sg]), o[0]]
        return o
    rd = []
    for sg in range(10): rd += wread(sg)
    dq = list(k.w2q)
    for sg in range(10, 14):
        d = w2_dma(sg - 10, sW2)
        k.w2_ld[sg] = d[3][-1]
        d[0] = [W(lastrd[sg - 10])] + d[0]
        dq += d
    sM = [sU[0], sU[1], sU[2], sU[7]]
    vRW, vTW, vTR = "v18", "v19", "v20"
    vRR = ["v21", "v22", "v31"]
    pre = Is(f"s_mul_i32 s64, {sW}, 7", "s_lshr_b32 s64, s64, 1", f"v_and_b32 v29, 3, {vL}", "v_add_u32 v29, s64, v29",
             f"v_and_b32 v30, 4, {vL}", "v_lshl_add_u32 v29, v30, 2, v29",
             f"s_lshl_b32 s64, {sRB}, 8", f"s_lshl_b32 s63, {sMH}, 7", "s_add_u32 s64, s64, s63", f"s_add_u32 s64, s64, {WS_FD}",
             f"v_lshl_add_u32 {vPA}, v29, 2, s64",
             f"s_mul_i32 s64, {sMH}, {2 * QS}", f"s_add_u32 s64, s64, {sCL}", f"s_mul_i32 s63, {sW}, {28 * 1024}", "s_add_u32 s64, s64, s63")
    for rho in range(4):
        pre += Is(f"s_add_u32 s65, {sW}, {rho + 1}", "s_bfe_u32 s63, s65, 0x10001", f"s_mul_i32 s63, s63, {QS}", "s_and_b32 s65, s65, 1",
                  "s_lshl_b32 s65, s65, 8", "s_add_u32 s65, s65, s63", f"s_add_u32 {sM[rho]}, s65, s64")
    for c in range(16):
        pre += Is(f"v_accvgpr_read_b32 v{BS + c}, a{224 + c}", f"v_accvgpr_read_b32 v{GB + c}, a{240 + c}")
    post = Is(f"v_add_u32 {vRW}, {sWB}, {vL16}")
    for rho in range(3):
        post += Is(f"s_sub_u32 s62, {sW}, {rho + 1}", "s_and_b32 s62, s62, 3", "s_lshl_b32 s62, s62, 12", f"s_add_u32 s62, s62, {W2SLOT[4 + rho]}",
                   f"v_add_u32 {vRR[rho]}, s62, {vL16}")
    post2 = Is(f"s_add_u32 s62, {sWB}, {W2SLOT[7]}",
               f"v_and_b32 v29, 15, {vL}", "v_mul_u32_u24 v29, 144, v29", f"v_lshrrev_b32 v30, 4, {vL}", "v_lshl_add_u32 v29, v30, 3, v29", f"v_add_u32 {vTW}, s62, v29",
               f"v_lshrrev_b32 v29, 3, {vL}", "v_mul_u32_u24 v29, 144, v29", f"v_and_b32 v30, 7, {vL}", "v_lshl_add_u32 v29, v30, 4, v29", f"v_add_u32 {vTR}, s62, v29",
               f"s_add_u32 {sU[4]}, {sXROW}, 14336")
    p(rd[:8]); rd = rd[8:]
    rounds(p, k.o("d_r1", 5), dq, rd, pre, nr=5, nf=5)
    k.publish(k.d_st, k.sFD)
    k.stamp("dpub")
    rounds(p, len(dq), dq, rd, pre, nr=5, nf=5)
    p(rd); p(pre)
    k.stamp("w2pre")
    k.poll_flags()
    k.stamp("dpoll")
    hl, hq = [], []
    for rho in range(4):
        for sg in range(14):
            n = 14 * rho + sg
            x = I(f"buffer_load_dwordx4 {vr(HB + 4 * (n % NR), 4)}, {vF16}, {WS}, {sM[rho]} offen offset:{(sg & 1) * 2048} sc1")
            hl.append(x)
            hq.append([x, I(f"s_add_u32 {sM[rho]}, {sM[rho]}, 4096")] if sg & 1 and sg < 13 else [x])
    PRE = k.o("g4pre", 7)
    late = []
    for sg in range(10, 14): late += wread(sg)
    pq = hq[:PRE]
    rounds(p, PRE, pq, late, nr=5)
    p(late)
    fill = post
    p.wait(hl[0], lastrd[9])
    for n in range(56):
        rho, sg = divmod(n, 14)
        acc = AC + 16 * (rho & 1)
        if 'p4pass' in k.opt and sg == 0: k.stamp(f"pass{rho}")
        if sg == 2 and rho >= 1:
            pa = AC + 16 * ((rho - 1) & 1)
            fill.append(I(f"v_add_u32 v25, {W2SLOT[4 + rho - 1]}, {vRW}"))
            w_ = [I(f"ds_write_b128 v25, {vr(pa + 4 * c, 4)} offset:{c * 1024}") for c in range(4)]
            for x in w_: fill += [x, None]
            if rho == 1: fill += post2
            if rho >= 2:
                qs = (0, 1) if rho == 2 else (2,)
                fill.append([W(w_), I("s_barrier")])
                r_ = [I(f"ds_read_b128 {vr(RD + 16 * q + 4 * c, 4)}, {vRR[q]} offset:{c * 1024}") for q in qs for c in range(4)]
                fill += r_ + [None, None, W(r_)]
                for q in qs:
                    for c in range(0, 16, 2):
                        fill.append(Is(f"v_fmac_f32 v{BS + c}, v{RD + 16 * q + c}, v{GB + c}", f"v_fmac_f32 v{BS + c + 1}, v{RD + 16 * q + c + 1}, v{GB + c + 1}"))
        extra = None
        for nt in range(4):
            p(f"v_mfma_f32_16x16x32_bf16 {vr(acc + 4 * nt, 4)}, {ar(16 * sg + 4 * nt, 4)}, {vr(HB + 4 * (n % NR), 4)}, {'0' if sg == 0 else vr(acc + 4 * nt, 4)}")
            if nt == 0 and n + PRE < 56:
                p(hq[n + PRE][0]); extra = hq[n + PRE][1:]
            elif nt == 3:
                if n < 55: p.wait(hl[n + 1], lastrd[13] if n == 9 else None)
                if fill and not (isinstance(fill[0], Ent) and fill[0].kind == 'i' and fill[0].text.startswith("ds_write")): p(fill.pop(0))
            else:
                if extra: p(extra); extra = None
                if fill: p(fill.pop(0))
    p(fill)
    k.stamp("gemm4")
    acc = AC + 16
    wr = []
    for c in range(4):
        for n in (0, 2):
            p(f"v_pk_fma_f32 {vr(BS + 4 * c + n, 2)}, {vr(acc + 4 * c + n, 2)}, {vr(GB + 4 * c + n, 2)}, {vr(BS + 4 * c + n, 2)}")
        for n in range(2):
            p(f"v_cvt_pk_bf16_f32 v{RD + 2 * c + n}, v{BS + 4 * c + 2 * n}, v{BS + 4 * c + 2 * n + 1}")
        wr.append(p(f"ds_write_b64 {vTW}, {vr(RD + 2 * c, 2)} offset:{c * 32}"))
    r_ = [p(f"ds_read_b128 {vr(RD + 8 + 4 * u, 4)}, {vTR} offset:{u * 8 * 144}") for u in range(2)]
    for u in range(2):
        p.wait(r_[u])
        p(f"buffer_store_dwordx4 {vr(RD + 8 + 4 * u, 4)}, {vROW}, {OUT}, {sXROW if u == 0 else sU[4]} offen {k.opt.get('ofl', '')}")


def rest(k):
    p = k.p
    mark = len(p.e)
    p.push()
    phase2(k)
    phase3(k)
    phase4(k)
    k.finish()
    p.pop()
    p("L_IDLE:")
    p.push()
    idle_path(k)
    p.pop()
```

```python
import sys, struct, math
from asmlib import Prog, I, W, Ent

NAME = "adaLN_cond__sliding_local_dilated__mixer_channel_mlp__prompt"

def fb(x):
    return "0x%08x" % struct.unpack("<I", struct.pack("<f", x))[0]

WS_XCC = 0x1000
WS_FH = 0x2000
WS_FO = 0x4000
WS_FA = 0x6000
WS_FD = 0x8000
WS_FE = 0xA000
WS_FH2 = 0xC000
WS_FW = 0x30000
WS_PK = 0xA80000
WS_MODP = 0x10000
WS_EXT = 0x20000
WS_GRAM = 0x2F000
WS_DBG = 0x40000
WS_CL = 0x100000
QS = 0x25000
CLS = 0x98000
Q_HID = 0
Q_O = 0
Q_A = 0x1C000
Q_H = 0x1C000
Q_ST = 0x23000
CL_HALO = 4 * QS
WS_SIZE = 0x1000000

L_WQ = 0
L_WO = 86016
L_MS = L_WO
L_XS = L_WO + 16384
L_SC = L_WO + 32768
L_MT = L_WO + 33280
L_SP = 143872
L_VEC = L_SP
L_XT = L_SP + 2048
L_ET = L_SP + 10240
L_HP = 0
L_KX = 16384
L_VX = 28672
L_W1B = 0
L_W1A = 57344
W2SLOT = [0, 16384, 32768, 114688, 131072, 147456, 49152, 65536, 81920, 98304]

X, WQ, WO, W1, W2, WM, OUT, WS = ("s[4:7]", "s[8:11]", "s[12:15]", "s[16:19]", "s[20:23]", "s[24:27]", "s[28:31]", "s[32:35]")
sXW, sFH = "s40", "s41"
sRB, sJ, sW, sH, sN, sFAST, sCL, sHD, sXCC, sMH, sNT = ("s42", "s43", "s44", "s45", "s46", "s47", "s48", "s49", "s50", "s51", "s52")
sCNT = "s53"
sWB = "s54"
sJ2 = "s55"
STR = "s[56:59]"
sPIT = "s60"
sMO = "s61"
sHOFF = ["s%d" % i for i in range(70, 77)]
sWOFF = ["s%d" % i for i in range(77, 84)]
sQ = "s84"
sQ2 = "s85"
sXROW = "s86"
sSTR = "s87"
sWL = "s88"
sW14 = "s89"
sU = ["s%d" % i for i in range(90, 98)]
STAMP0 = 100

vL, vTID, vL16, vN = "v0", "v1", "v2", "v3"
vSA = [4, 5, 6, 7]
vSB = [8, 9, 10, 11]
vT16 = [12, 13, 14, 15]
vT32 = [16, 17]
vFW = "v18"
vTq = [21, 22]
vPA, vPD, vPX, vDUM = "v23", "v24", "v25", "v26"
vF16 = "v27"
vROW = "v28"
vt = [29, 30, 31]
AQ, AK, AV, AH, WB1, HB1, SC, SP = 32, 48, 64, 80, 96, 132, 164, 180
QF, KF, VF, KP, VP, PF, PP = 196, 204, 212, 220, 228, 232, 240
vH, vHH, vTH, vTH2, vHX, vMK, vKA, vVA, vONE, vHW, vHR = ["v%d" % i for i in range(244, 255)]
TG = [SP, SP + 1, SP + 2, SP + 3]
vPH, vB2A, vTO = ["v%d" % (SP + 4 + i) for i in range(3)]
VG, vVG = 148, "v31"

POLL_LIMIT = 40000

def vr(b, n=1):
    return f"v{b}" if n == 1 else f"v[{b}:{b + n - 1}]"
def ar(b, n=1):
    return f"a{b}" if n == 1 else f"a[{b}:{b + n - 1}]"
def Is(*ts):
    return [I(t) for t in ts]

def cost(e):
    if isinstance(e, (list, tuple)): return sum(cost(x) for x in e)
    if e is None: return 1
    if e.kind == 'w': return 1
    if e.kind != 'i': return 0
    op = e.text.split()[0]
    if op.startswith(("buffer_", "global_")): return 3
    if op == "ds_write_b128": return 6
    if op.startswith("ds_write"): return 3
    if op.startswith(("v_exp", "v_rcp", "v_rsq", "v_sqrt")): return 2
    if op.startswith("s_cbranch"): return 3
    if op == "s_barrier": return 2
    return 1

def take(p, q, budget, force=False):
    while q and (cost(q[0]) <= budget or force):
        e = q.pop(0)
        budget -= cost(e)
        force = False
        p(e)
    return budget


class K:
    def __init__(self, stop=99, stamps=False, force_slow=False, opt=()):
        self.opt = {}
        for o in opt:
            k, _, v = o.partition("=")
            self.opt[k] = v
        self.p = Prog()
        self.ool = []
        self.stop = stop
        self.stamps = stamps
        self.stamp_names = []
        self.force_slow = force_slow

    def o(self, name, default):
        return int(self.opt[name]) if name in self.opt else default

    def stamp(self, name):
        p = self.p
        if ("sc_" + name) in self.opt:
            p.wait(p("s_memrealtime s[98:99]"))
        if not self.stamps: return
        if name not in self.stamp_names: self.stamp_names.append(name)
        p.wait(p(f"s_memtime s[{STAMP0}:{STAMP0 + 1}]"))
        p(f"v_writelane_b32 v255, s{STAMP0}, {self.stamp_names.index(name)}")

    def cond(self, cmp_text, skip_if_scc):
        p = self.p
        lab = p.label("SK")
        p(cmp_text)
        p(f"s_cbranch_scc{skip_if_scc} {lab}")
        p.push()
        return lab
    def endcond(self, lab):
        self.p.pop()
        self.p(lab + ":")

    def poll(self, loads, check):
        p = self.p
        lab = p.label("PL")
        p(f"s_mov_b32 {sCNT}, {POLL_LIMIT}")
        p(lab + ":")
        for l in loads: p(l)
        p(f"s_sub_u32 {sCNT}, {sCNT}, 1")
        p("s_cbranch_scc1 L_END")
        p.waitall(vm=True, lk=False)
        for c in check: p(c)
        p("s_cmp_eq_u64 vcc, -1")
        p(f"s_cbranch_scc0 {lab}")

    def recheck(self, loads, check):
        p = self.p
        a, b = p.label("RC"), p.label("RB")
        body = "".join("    " + l + "\n" for l in loads) + "    s_waitcnt vmcnt(0)\n" + "".join("    " + c + "\n" for c in check)
        self.ool.append(f"{a}:\n    s_mov_b32 {sCNT}, {POLL_LIMIT}\n{a}_l:\n{body}    s_nop 1\n    s_cmp_eq_u64 vcc, -1\n    s_cbranch_scc1 {b}\n"
                        f"    s_sub_u32 {sCNT}, {sCNT}, 1\n    s_cbranch_scc0 {a}_l\n    s_endpgm\n")
        return Is(*check[:-1]) + [[I(check[-1]), I("s_cmp_eq_u64 vcc, -1"), I(f"s_cbranch_scc0 {a}"), Ent('l', b + ":")]]

    def slow_poll(self, name, addr, soff, done):
        return f"""    s_mov_b32 {sCNT}, {POLL_LIMIT}
{name}_l:
    buffer_load_dword {vPD}, {addr}, {WS}, {soff} offen sc1
    s_sub_u32 {sCNT}, {sCNT}, 1
    s_cbranch_scc1 L_END
    s_waitcnt vmcnt(0)
    v_cmp_eq_u32 vcc, {sN}, {vPD}
    s_nop 1
    s_cmp_eq_u32 vcc_lo, -1
    s_cbranch_scc0 {name}_l
    buffer_inv sc1
    s_waitcnt vmcnt(0)
    s_branch {done}
"""

    def poll_flags(self):
        p = self.p
        slow, done = p.label("SP"), p.label("PD")
        p(f"s_cmp_eq_u32 {sFAST}, 0")
        p(f"s_cbranch_scc1 {slow}")
        self.poll([f"buffer_load_dword {vPD}, {vPA}, {WS}, 0 offen sc1"], [f"v_cmp_eq_u32 vcc, {sN}, {vPD}"])
        p(done + ":")
        self.ool.append(f"{slow}:\n" + self.slow_poll(slow, vPA, "0", done))

    def poll_h(self):
        p = self.p
        lab, done, again, nop, slow = p.label("PL"), p.label("PD"), p.label("PA"), p.label("HN"), p.label("HS")
        p(f"s_mov_b32 {sCNT}, {POLL_LIMIT}")
        p(f"s_mov_b32 {sFAST}, 1")
        p(f"s_branch {lab}")
        p(again + ":")
        p(f"v_xor_b32 {vPD}, {sN}, {vPD}")
        p(f"v_cmp_gt_u32 s[62:63], 8, {vPD}")
        p("s_andn2_b32 s63, s63, vcc_hi")
        p(f"s_cbranch_scc1 {slow}")
        p(lab + ":")
        p(f"buffer_load_dword {vPD}, {vPH}, {WS}, 0 offen sc1")
        p(f"s_sub_u32 {sCNT}, {sCNT}, 1")
        p("s_cbranch_scc1 L_END")
        p.waitall(vm=True, lk=False)
        p(f"v_cmp_eq_u32 vcc, {vPD}, {vPX}")
        if self.force_slow:
            p("s_nop 1"); p("s_mov_b32 vcc_hi, 0")
        p("s_cmp_eq_u64 vcc, -1")
        p(f"s_cbranch_scc0 {again}")
        p(done + ":")
        self.ool.append(f"""{slow}:
    s_mov_b32 {sFAST}, 0
    s_cmp_lt_u32 {sJ}, 9
    s_cbranch_scc0 {nop}
    buffer_wbl2 sc1
    s_add_u32 s62, {sFH}, {WS_FH2 - WS_FH}
    s_waitcnt vmcnt(0)
    s_mov_b64 exec, 1
    buffer_store_dword {vN}, off, {WS}, s62 sc1
    s_mov_b64 exec, -1
{nop}:
    s_mov_b32 s62, {WS_FH2 - WS_FH}
""" + self.slow_poll(slow, vPH, "s62", done))

    def flag(self, stores, sflag, fl="", val=vN):
        p = self.p
        p("s_mov_b64 exec, 1")
        if stores: p.wait(stores)
        e = p(f"buffer_store_dword {val}, off, {WS}, {sflag} {fl}")
        p("s_mov_b64 exec, -1")
        return e

    def publish(self, stores, sflag):
        p = self.p
        a, b = p.label("PS"), p.label("PR")
        p(f"s_cmp_eq_u32 {sFAST}, 0")
        p(f"s_cbranch_scc1 {a}")
        e = self.flag(stores, sflag)
        p(b + ":")
        self.ool.append(f"{a}:\n    s_waitcnt vmcnt(0)\n    buffer_wbl2 sc1\n    s_waitcnt vmcnt(0)\n"
                        f"    s_mov_b64 exec, 1\n    buffer_store_dword {vN}, off, {WS}, {sflag} sc1\n    s_mov_b64 exec, -1\n    s_branch {b}\n")
        return e

    def strip_voff(self, dst, pitch, sw):
        o = [f"v_lshrrev_b32 v{dst[1]}, 3, {vL}"]
        if isinstance(pitch, int):
            o += [f"v_mul_u32_u24 v{dst[0]}, {pitch}, v{dst[1]}", f"v_add_u32 v{dst[0]}, v{dst[0]}, v{sw}"]
            o += [f"v_add_u32 v{dst[e]}, {e * (8 * pitch - 1024)}, v{dst[0]}" for e in (1, 2, 3)]
        else:
            o += [f"v_mad_u32_u24 v{dst[0]}, v{dst[1]}, {pitch}, v{sw}", f"s_lshl_b32 s62, {pitch}, 3", "s_sub_u32 s62, s62, 1024"]
            o += [f"v_add_u32 v{dst[e]}, s62, v{dst[e - 1]}" for e in (1, 2, 3)]
        return o

    def wq_group(self, G):
        out = []
        for e in range(3):
            x = I(f"buffer_load_dwordx4 {vL16}, {WS}, {sWOFF[G]} offen offset:{e * 1024} sc1 lds")
            out.append([I(f"s_add_u32 m0, {sWL}, {L_WQ + G * 12288}"), x] if e == 0 else [x])
        return out

    def strip_dma(self, srd, voff, soff, pitch, ldsbase_s, ldsimm):
        out = []
        for n in range(14):
            g = []
            if n % 4 == 0:
                if n: g.append(I(f"s_add_u32 {soff}, {soff}, {pitch}"))
                g.insert(0, I(f"s_add_u32 m0, {ldsbase_s}, {ldsimm + (n // 4) * 4096}"))
            g.append(I(f"buffer_load_dwordx4 v{voff[n % 4]}, {srd}, {soff} offen offset:{(n % 4) * 1024} lds"))
            out.append(g)
        return out

    def tagcheck(self, regs, t):
        out = []
        if len(regs) == 1:
            r = regs[0]
            out += [f"v_xor_b32 v{t + n}, v{r + n}, v{TG[n]}" for n in range(4)]
            out += [f"v_or3_b32 v{t}, v{t}, v{t + 1}, v{t + 2}", f"v_or_b32 v{t}, v{t}, v{t + 3}"]
        else:
            for n in range(4):
                out.append(f"v_bitop3_b32 v{t + n}, v{regs[0] + n}, v{regs[1] + n}, v{TG[n]} bitop3:0x7e")
                out.append(f"v_bitop3_b32 v{t + 4 + n}, v{regs[2] + n}, v{regs[3] + n}, v{TG[n]} bitop3:0x7e")
            out += [f"v_or3_b32 v{t}, v{t}, v{t + 1}, v{t + 2}", f"v_or3_b32 v{t + 3}, v{t + 3}, v{t + 4}, v{t + 5}",
                    f"v_or3_b32 v{t}, v{t}, v{t + 6}, v{t + 7}", f"v_or_b32 v{t}, v{t}, v{t + 3}"]
        out += [f"v_and_b32 v{t}, 0xff, v{t}", f"v_cmp_eq_u32 vcc, 0, v{t}"]
        return out

    def round4(self, r, t, unpack=True):
        o = [f"v_cvt_pk_bf16_f32 v{t}, v{r}, v{r + 1}", f"v_cvt_pk_bf16_f32 v{t + 1}, v{r + 2}, v{r + 3}"]
        if unpack:
            o += [f"v_lshlrev_b32 v{r}, 16, v{t}", f"v_and_b32 v{r + 1}, 0xffff0000, v{t}",
                  f"v_lshlrev_b32 v{r + 2}, 16, v{t + 1}", f"v_and_b32 v{r + 3}, 0xffff0000, v{t + 1}"]
        return o

    def gather_pre(self, col0, one):
        o = [f"v_min_u32 {vPA}, 223, {vTID}", f"v_lshlrev_b32 {vPA}, 4, {vPA}", f"v_cmp_le_u32 vcc, 112, {vTID}"]
        o += [f"s_mov_b32 s{66 + kq}, {WS_MODP + kq * 10752 + col0 * 4}" for kq in range(4)]
        o += [f"v_cndmask_b32 v{one}, 0, 1.0, vcc"]
        return o

    def gather896(self, R, one, extra, unpack):
        p = self.p
        loads = [f"buffer_load_dwordx4 {vr(R + 4 * kq, 4)}, {vPA}, {WS}, s{66 + kq} offen sc1" for kq in range(4)]
        self.poll(loads, self.tagcheck([R + 4 * kq for kq in range(4)], R + 16))
        if unpack: self.stamp("modpoll")
        if extra: p(extra.pop(0))
        for n in range(16):
            p(f"v_and_b32 v{R + n}, 0xffffff00, v{R + n}")
        if extra: p(extra.pop(0))
        for n in range(0, 8, 2):
            p(f"v_pk_add_f32 {vr(R + n, 2)}, {vr(R + n, 2)}, {vr(R + 8 + n, 2)}")
        for n in range(0, 4, 2):
            p(f"v_pk_add_f32 {vr(R + n, 2)}, {vr(R + n, 2)}, {vr(R + 4 + n, 2)}")
        p(self.round4(R, R + 16))
        for n in (0, 2):
            p(f"v_pk_add_f32 {vr(R + n, 2)}, {vr(R + n, 2)}, {vr(one, 2)} op_sel_hi:[1,0]")
        p(self.round4(R, R + 16, unpack))

    def head(self):
        p = self.p
        ld = [p("s_load_dwordx16 s[72:87], s[0:1], 0"),
              p("s_load_dwordx8 s[88:95], s[0:1], 64"),
              p("s_load_dwordx2 s[32:33], s[0:1], 96")]
        if self.stamps:
            p("v_mov_b32 v255, 0")
            ld.append(p("s_memrealtime s[98:99]"))
            ld.append(p("s_memtime s[100:101]"))
        if any(o.startswith("sc_") for o in self.opt):
            ld.append(p("s_memrealtime s[98:99]"))
        p("s_cmp_ge_u32 s2, 256")
        p("s_cbranch_scc1 L_END")
        p("s_getpc_b64 s[62:63]")
        p("L_PC:")
        p(f"v_and_b32 v{vt[1]}, 15, v0")
        p("s_lshr_b32 s64, s2, 3")
        p(f"v_lshl_add_u32 v{vt[1]}, s64, 4, v{vt[1]}")
        p(f"v_lshlrev_b32 v{vt[1]}, 7, v{vt[1]}")
        p(f"v_min_u32 v{vt[1]}, L_END-L_PC, v{vt[1]}")
        p("s_mov_b64 exec, 0xffff")
        p(f"global_load_dword {vDUM}, v{vt[1]}, s[62:63]")
        p("s_mov_b64 exec, -1")
        p(f"v_mov_b32 {vTID}, v0")
        p(f"v_lshrrev_b32 v{vt[0]}, 6, v0")
        p(f"v_and_b32 {vL}, 63, v0")
        p(f"v_readfirstlane_b32 {sW}, v{vt[0]}")
        for reg, size in ((4, 1835008), (8, 1204224), (12, 401408), (16, 1605632), (20, 1605632), (24, 2408448), (28, 1835008), (32, WS_SIZE)):
            p(f"s_mov_b32 s{reg + 2}, {size}")
            p(f"s_mov_b32 s{reg + 3}, 0x20000")
        p(f"s_and_b32 {sRB}, s2, 15")
        p(f"s_lshr_b32 {sJ}, s2, 4")
        p(f"s_mul_i32 {sCL}, {sRB}, {CLS}")
        p(f"s_add_u32 {sCL}, {sCL}, {WS_CL}")
        p(f"s_lshl_b32 {sWB}, {sW}, 12")
        p(f"v_lshlrev_b32 {vL16}, 4, {vL}")
        a, b, c = vt
        p(f"v_lshrrev_b32 v{a}, 3, {vL}")
        p(f"v_and_b32 v{b}, 2, v{a}")
        p(f"v_lshrrev_b32 v{a}, 2, v{a}")
        p(f"v_or_b32 v{b}, v{b}, v{a}")
        p(f"v_and_b32 v{a}, 7, {vL}")
        p(f"v_lshlrev_b32 v{b}, 1, v{b}")
        p(f"v_xor_b32 v{b}, v{b}, v{a}")
        p(f"v_lshlrev_b32 v{c}, 4, v{b}")
        p(self.strip_voff(vSB, 5376, c))
        p("s_and_b32 s62, s2, 3")
        p("s_lshr_b32 s63, s2, 2")
        p("s_mul_i32 s64, s62, 112")
        p(f"s_lshl_b32 s65, {sW}, 5")
        p("s_add_u32 s65, s65, s64")
        p("s_mul_i32 s65, s65, 5376")
        p("s_lshl_b32 s66, s63, 7")
        p("s_add_u32 s65, s65, s66")
        p(f"v_min_u32 v{a}, 55, {vL}")
        p("s_lshl_b32 s64, s64, 1")
        p(f"v_lshl_add_u32 v{a}, v{a}, 2, s64")
        p(f"s_mul_i32 s66, {sW}, {CLS - 4}")
        p(f"s_add_u32 s66, s66, {sCL}")
        p(f"s_cmp_eq_u32 {sW}, 2")
        p(f"s_cselect_b32 s66, {WS_PK - 4}, s66")
        p(f"s_cmp_eq_u32 {sW}, 3")
        p("s_cselect_b32 s66, 0, s66")
        p(f"v_mov_b32 v{b}, 0")
        p(f"s_lshl_b32 m0, {sW}, 1")
        p.wait(ld)
        p("s_movrels_b64 s[62:63], s[88:89]")
        p("s_movrels_b64 s[68:69], s[72:73]")
        p("s_movrels_b64 s[70:71], s[80:81]")
        p("s_mov_b64 s[24:25], s[90:91]")
        p("s_mov_b64 exec, 1")
        p(f"buffer_load_dword {vDUM}, off, {WM}, s65")
        p(f"global_load_dword {vDUM}, v{b}, s[68:69]")
        p(f"buffer_load_dword {vDUM}, off, {WS}, s66 sc1")
        p(f"global_load_dword {vDUM}, v{b}, s[62:63]")
        p(f"global_load_dword {vDUM}, v{b}, s[70:71]")
        p("s_mov_b64 exec, -1")
        self.nonce = p(f"s_load_dword {sN}, s[32:33], 0")
        if self.stamps:
            p("v_writelane_b32 v255, s98, 60")
            p("v_writelane_b32 v255, s100, 61")

    def set_ptrs(self):
        return [f"s_mov_b64 s[{d}:{d + 1}], s[{r}:{r + 1}]" for d, r in ((4, 72), (8, 74), (12, 76), (16, 80), (36, 82), (20, 84), (38, 86), (28, 92))]

    def job_issue(self):
        p = self.p
        self.c_ld = p(f"global_load_dword v32, v{vt[0]}, s[88:89]")
        p(f"s_add_u32 m0, {sWB}, {L_MS}")
        self.ms_ld = [p(f"buffer_load_dwordx4 v{vSB[e]}, {WM}, s65 offen offset:{e * 1024} lds") for e in range(4)]

    def x_issue(self):
        p = self.p
        p([f"s_lshr_b32 s66, {sJ}, 2", "s_lshl_b32 s66, s66, 6", f"s_bfe_u32 s67, {sJ}, 0x10001", "s_add_u32 s66, s66, s67",
           f"s_and_b32 s67, {sJ}, 1", "s_lshl_b32 s67, s67, 5", "s_add_u32 s66, s66, s67", f"s_lshl_b32 s67, {sW}, 3", "s_add_u32 s66, s66, s67",
           f"s_and_b32 s67, {sW}, 1", "s_lshl_b32 s67, s67, 3", f"s_lshr_b32 s68, {sW}, 1", "s_add_u32 s67, s67, s68",
           f"s_cmp_eq_u32 {sRB}, 0", "s_cselect_b32 s68, 0, 16", "s_sub_u32 s67, s67, s68",
           f"s_cmp_eq_u32 {sJ}, 8", "s_cselect_b32 s66, s67, s66", f"s_lshl_b32 s67, {sRB}, 7", "s_add_u32 s66, s66, s67",
           "s_mul_i32 s66, s66, 896", f"s_add_u32 m0, {sWB}, {L_XS}", "s_mov_b32 exec_hi, 0x00ffffff"])
        self.xs_ld = []
        for r in range(4):
            self.xs_ld.append(p(f"buffer_load_dwordx4 {vL16}, {X}, s66 offen offset:{r * 1024} lds"))
            if r < 3: p("s_add_u32 s66, s66, 768")
        p("s_mov_b32 exec_hi, -1")

    def setup_w(self):
        o = [f"s_sub_u32 s62, 15, {sJ}", f"s_sub_u32 s63, {sJ}, 7", "s_cmp_lt_u32 s63, 2", "s_cselect_b32 s63, 2048, 0",
             f"s_cmp_lt_u32 {sRB}, 8", f"s_cselect_b32 {sH}, {sJ}, s62", f"s_cselect_b32 {sHOFF[0]}, 0, s63",
             f"s_mul_i32 {sWL}, {sW}, 3072", f"s_mul_i32 s62, {sH}, 86016", f"s_add_u32 s62, s62, {sWL}", f"s_add_u32 s62, s62, {WS_PK}"]
        for G in range(7):
            o += [f"s_mul_i32 {sWOFF[G]}, {sHOFF[G]}, 24", f"s_add_u32 {sWOFF[G]}, {sWOFF[G]}, s62"]
            if G < 6:
                o += [f"s_add_u32 {sHOFF[G + 1]}, {sHOFF[G]}, 512", f"s_cmp_eq_u32 {sHOFF[G + 1]}, 3584", f"s_cselect_b32 {sHOFF[G + 1]}, 0, {sHOFF[G + 1]}"]
        o += [f"v_min_u32 v33, 20, {vL}", "v_mul_u32_u24 v34, 43, v33", "v_lshrrev_b32 v34, 7, v34", "v_mad_u32_u24 v33, v34, 9, v33",
              f"s_mul_i32 s62, {sW}, 384", f"s_add_u32 s62, s62, {WS_FW}", f"v_lshl_add_u32 {vFW}, v33, 7, s62"]
        return o

    def wflag(self, R):
        return f"buffer_load_dword v{R}, {vFW}, {WS}, 0 offen sc1", [f"v_cmp_eq_u32 vcc, {sN}, v{R}"]

    def pack_issue(self):
        p = self.p
        p(["s_sub_u32 s62, s2, 168", "s_min_u32 s62, s62, 83", "s_lshl_b32 s63, s62, 2", f"s_add_u32 s63, s63, {sW}",
           "s_mul_i32 s64, s63, 3584",
           f"v_lshrrev_b32 v33, 3, {vL}", f"v_bfe_u32 v34, {vL}, 2, 1", f"v_and_b32 v35, 3, {vL}", "v_mul_u32_u24 v36, 56, v33",
           "v_mul_u32_u24 v34, 896, v34", "v_lshl_add_u32 v36, v35, 4, v36", "v_add_u32 v36, v36, v34"])
        self.pk_ld = [p(f"buffer_load_dwordx4 {vr(40 + 4 * n, 4)}, v36, {WQ}, s64 offen offset:{(n >> 1) * 1792 + (n & 1) * 448}") for n in range(4)]
        p(["s_lshl_b32 s63, s63, 8", f"s_add_u32 s68, s63, {WS_PK}", f"s_add_u32 s69, s68, {8 * 86016}",
           "s_sub_u32 s62, s2, 168", "s_lshl_b32 s62, s62, 7", f"s_add_u32 {sMO}, s62, {WS_FW}",
           "v_mul_u32_u24 v56, 86016, v33", f"v_and_b32 v35, 7, {vL}", "v_lshl_add_u32 v56, v35, 4, v56"])

    def pack_store(self):
        p = self.p
        st = []
        for n in range(4):
            p.wait(self.pk_ld[n])
            st.append(p(f"buffer_store_dwordx4 {vr(40 + 4 * n, 4)}, v56, {WS}, s{68 + (n & 1)} offen offset:{(n >> 1) * 128} sc1"))
        return st

    def setup_t16(self):
        o = [f"v_lshrrev_b32 v33, 4, {vL}", f"v_bfe_u32 v34, {vL}, 2, 2", f"v_and_b32 v35, 3, {vL}", "v_lshlrev_b32 v35, 3, v35",
             "v_lshl_add_u32 v35, v34, 7, v35",
             "v_and_b32 v34, 2, v34", "v_and_b32 v36, 1, v33", "v_lshrrev_b32 v37, 1, v33",
             "v_lshl_add_u32 v38, v37, 11, v35", "v_lshl_add_u32 v38, v36, 9, v38", "v_or_b32 v39, v34, v36",
             f"v_lshl_add_u32 v{vT16[0]}, v39, 5, v38"]
        o += [f"v_xor_b32 v{vT16[nt]}, {32 * nt}, v{vT16[0]}" for nt in (1, 2, 3)]
        o += ["v_lshl_add_u32 v38, v37, 9, v35", "v_or_b32 v39, v34, v37", "v_xor_b32 v39, v39, v36",
              f"v_lshl_add_u32 v{vT32[0]}, v39, 5, v38", f"v_xor_b32 v{vT32[1]}, 64, v{vT32[0]}"]
        return o

    def setup_job(self):
        return [f"s_lshl_b32 s62, {sW}, 5", f"v_xor_b32 v76, s62, v{vT16[0]}", f"v_add_u32 v76, {L_MS}, v76",
                f"v_lshrrev_b32 v77, 5, {vL}", f"v_bfe_u32 v78, {vL}, 4, 1", "v_lshlrev_b32 v77, 5, v77", "v_lshl_add_u32 v77, v78, 3, v77",
                f"v_add_u32 v77, {L_SC}, v77", f"v_lshlrev_b32 v78, 2, {vL}", f"v_add_u32 v79, {L_SC}, v78",
                "s_and_b32 s62, s2, 3", "s_mul_i32 s62, s62, 10752", "s_lshr_b32 s63, s2, 2", "s_lshl_b32 s63, s63, 8", "s_add_u32 s62, s62, s63",
                f"s_lshl_b32 s63, {sW}, 6", "s_add_u32 s62, s62, s63", f"s_add_u32 {sMO}, s62, {WS_MODP}"]

    def setup_h(self):
        return [f"s_lshr_b32 s62, {sJ}, 1", f"s_mul_i32 s62, s62, {QS}", f"s_and_b32 s63, {sJ}, 1", "s_lshl_b32 s63, s63, 2",
                f"s_add_u32 s63, s63, {sW}", "s_mul_i32 s63, s63, 3584", "s_add_u32 s62, s62, s63", f"s_cmp_eq_u32 {sJ}, 8",
                f"s_cselect_b32 s63, 0, {Q_H}", "s_add_u32 s62, s62, s63", f"s_add_u32 {sHD}, s62, {sCL}",
                f"s_lshl_b32 s63, {sRB}, 8", f"s_lshl_b32 s64, {sJ}, 4", "s_add_u32 s63, s63, s64", f"s_lshl_b32 s64, {sW}, 2",
                "s_add_u32 s63, s63, s64", f"s_add_u32 {sFH}, s63, {WS_FH}",
                f"v_min_u32 v163, 27, {vL}", "v_lshlrev_b32 v163, 7, v163",
                f"v_and_b32 v160, 3, {vL}", f"v_lshrrev_b32 v161, 2, {vL}", "v_lshlrev_b32 v160, 10, v160", "v_lshl_add_u32 v160, v161, 4, v160",
                f"s_add_u32 s62, {sWB}, {L_XS}", "v_add_u32 v160, s62, v160",
                "v_lshlrev_b32 v161, 5, v161", f"v_add_u32 v161, {L_MT}, v161",
                f"v_lshlrev_b32 v162, 4, {vTID}", f"v_add_u32 v162, {L_MT}, v162"]

    def setup_p1(self):
        o = [f"s_getreg_b32 {sXCC}, hwreg(HW_REG_XCC_ID, 0, 3)",
             f"s_mul_i32 {sQ}, {sW}, {QS}", f"s_add_u32 {sQ}, {sQ}, {sCL}",
             f"v_lshrrev_b32 v33, 4, {vL}", f"v_bfe_u32 v34, {vL}, 2, 2", f"v_and_b32 v35, 3, {vL}", f"v_lshrrev_b32 v36, 5, {vL}",
             f"v_and_b32 v37, 15, {vL}",
             "v_lshl_add_u32 v38, v36, 3, v34", "v_mul_u32_u24 v38, 192, v38", "v_and_b32 v39, 1, v33", "v_lshl_add_u32 v38, v39, 5, v38",
             f"v_lshl_add_u32 v{vTq[0]}, v35, 3, v38", f"v_add_u32 v{vTq[1]}, 43008, v{vTq[0]}",
             f"v_bfe_u32 v38, {vL}, 2, 3", "v_mul_u32_u24 v38, 3584, v38", "v_lshl_add_u32 v38, v36, 6, v38", "v_lshl_add_u32 v38, v35, 4, v38",
             f"s_add_u32 s62, {sQ}, {Q_H}", f"v_add_u32 {vH}, s62, v38",
             "v_mul_u32_u24 v38, 3584, v34", "v_lshl_add_u32 v38, v33, 6, v38", "v_lshl_add_u32 v38, v35, 4, v38",
             f"s_and_b32 s63, {sW}, 1", "s_lshl_b32 s64, s63, 8", f"s_add_u32 s62, {sCL}, s64", f"s_add_u32 s62, s62, {CL_HALO}",
             f"v_add_u32 {vHH}, s62, v38",
             "v_lshl_add_u32 v38, v33, 3, v34", "v_mul_u32_u24 v38, 192, v38", "v_lshl_add_u32 v38, v35, 3, v38",
             f"s_mul_i32 s62, {sW}, 6144", f"v_add_u32 {vTH}, s62, v38",
             "s_mul_i32 s62, s63, 6144", f"s_add_u32 s62, s62, {12 * 6144}", f"v_add_u32 {vTH2}, s62, v38",
             "v_lshrrev_b32 v38, 3, v37", "v_lshlrev_b32 v38, 11, v38", "v_and_b32 v34, 7, v37", "v_lshl_add_u32 v38, v34, 4, v38",
             "v_lshl_add_u32 v38, v39, 9, v38", "v_lshl_add_u32 v38, v36, 3, v38",
             "s_lshl_b32 s62, s63, 10", f"s_add_u32 s62, s62, {L_KX + 24 * 16}", "v_add_u32 v38, s62, v38",
             "v_lshlrev_b32 v34, 8, v33", "v_lshl_add_u32 v34, v37, 3, v34",
             "s_lshl_b32 s62, s63, 7", f"s_add_u32 s62, s62, {L_VX}", "v_add_u32 v34, s62, v34",
             f"s_cmp_lt_u32 {sW}, 2", "s_cselect_b64 vcc, -1, 0",
             f"s_cselect_b32 {sU[0]}, {sHOFF[0]}, {sHOFF[1]}", f"s_cselect_b32 {sU[1]}, {sHOFF[2]}, {sHOFF[3]}",
             f"s_cselect_b32 {sU[2]}, {sHOFF[4]}, {sHOFF[5]}", f"s_cselect_b32 {sU[3]}, {sHOFF[6]}, {WS_SIZE}",
             f"v_cndmask_b32 {vHX}, v34, v38, vcc",
             "v_min_u32 v38, 11, v37", f"s_lshl_b32 s62, {sW}, 3", "v_add_u32 v34, s62, v38", "v_cmp_gt_u32 vcc, 8, v38", "v_add_u32 v38, 24, v38",
             f"s_lshl_b32 s62, {sRB}, 8", f"s_add_u32 s62, s62, {WS_FH}",
             "v_cndmask_b32 v34, v38, v34, vcc", "v_lshl_add_u32 v34, v34, 2, s62", f"v_cmp_gt_u32 vcc, 32, {vL}",
             f"s_lshl_b32 s62, {sRB}, 7", f"s_add_u32 s62, s62, {WS_XCC}", "v_lshl_add_u32 v38, v37, 2, s62",
             f"v_cndmask_b32 {vPH}, v38, v34, vcc", f"v_cndmask_b32 {vMK}, 0, -1, vcc",
             f"s_lshl_b32 s64, {sJ}, 2", f"s_add_u32 {sXW}, s62, s64",
             f"s_lshr_b32 s62, {sWB}, 1", f"v_add_u32 {vKA}, s62, {vL16}", f"s_lshr_b32 s62, {sWB}, 3", f"v_lshl_add_u32 {vVA}, {vL}, 3, s62",
             f"s_lshr_b32 s62, {sWB}, 2", f"v_add_u32 {vHW}, s62, {vL16}", f"v_add_u32 {vHR}, {sWB}, {vL16}",
             f"v_mov_b32 {vONE}, 0x3f803f80", f"v_mov_b32 v{VP + 2}, 0", f"v_mov_b32 v{VP + 3}, 0", f"v_mov_b32 v{PP + 2}, 0", f"v_mov_b32 v{PP + 3}, 0",
             f"v_and_b32 v38, 31, {vL}", "v_lshlrev_b32 v34, 2, v36", "v_sub_u32 v38, v38, v34", "v_add_u32 v38, 5, v38",
             "s_mov_b64 s[62:63], 0xff", "v_lshlrev_b64 v[34:35], v38, s[62:63]", "v_not_b32 v34, v34", "v_not_b32 v35, v35",
             f"s_lshr_b32 s62, {sW}, 1", f"s_or_b32 s62, s62, {sRB}", "s_cmp_eq_u32 s62, 0", "s_cselect_b32 s62, 0xf0, 0", "v_or_b32 v34, s62, v34"]
        big = fb(-1e30)
        for n in range(16):
            bit = 8 * (n >> 2) + (n & 3) + 12
            o += [f"v_bfe_i32 v{SC + n}, v{34 + (bit >> 5)}, {bit & 31}, 1", f"v_and_b32 v{SC + n}, {big}, v{SC + n}"]
        for r in range(4):
            o += [f"v_bfe_i32 v{SP + 12 + r}, v34, {4 + r}, 1", f"v_and_b32 v{SP + 12 + r}, {big}, v{SP + 12 + r}"]
        return o

    def setup_late(self):
        a, b, c = vt
        slots = [1, 3, 5, 7, 9, 10, 11, 12, 13, 0, 2, 4, 6, 8, 0, 0]
        tab = sum(h << (4 * i) for i, h in enumerate(slots))
        o = [f"s_mov_b32 s62, 0x{tab & 0xffffffff:08x}", f"s_mov_b32 s63, 0x{tab >> 32:08x}", f"s_lshl_b32 s64, {sJ}, 2",
             "s_lshr_b64 s[62:63], s[62:63], s64", "s_and_b32 s62, s62, 15", "s_sub_u32 s63, 13, s62",
             [f"s_cmp_lt_u32 {sRB}, 8", f"s_cselect_b32 {sJ2}, s62, s63"],
             f"s_and_b32 {sMH}, {sJ2}, 1", f"s_lshr_b32 {sNT}, {sJ2}, 1",
             "s_sub_u32 s63, s2, 224", "s_min_u32 s63, s63, 27", f"s_movk_i32 {sPIT}, 896", "s_mov_b32 s59, 0x20000",
             [f"s_cmp_lt_u32 {sJ}, 14", "s_cselect_b64 s[56:57], s[12:13], s[16:17]", "s_cselect_b32 s58, s14, s18",
              f"s_cselect_b32 {sPIT}, {sPIT}, 3584", f"s_cselect_b32 s63, {sNT}, s63"],
             "s_lshl_b32 s63, s63, 7", f"s_mul_i32 s64, {sPIT}, 112", f"s_mul_i32 s64, s64, {sW}", f"s_add_u32 {sSTR}, s63, s64"]
        o += self.strip_voff(vSA, sPIT, c)
        o += [f"s_lshl_b32 {sPIT}, {sPIT}, 5", f"s_mul_i32 {sW14}, {sW}, 14336",
              f"v_lshrrev_b32 v{a}, 3, {vL}", f"v_mul_u32_u24 v{a}, 1792, v{a}", f"v_and_b32 v{b}, 7, {vL}", f"v_lshl_add_u32 {vROW}, v{b}, 4, v{a}",
              f"s_lshl_b32 s62, {sMH}, 1", f"s_lshr_b32 s63, {sW}, 1", "s_add_u32 s62, s62, s63", f"s_mul_i32 {sQ2}, s62, {QS}", f"s_add_u32 {sQ2}, {sQ2}, {sCL}",
              f"s_lshl_b32 s62, {sRB}, 7", f"s_lshl_b32 s64, {sMH}, 6", "s_add_u32 s62, s62, s64", "s_add_u32 s62, s62, s63",
              f"s_and_b32 s64, {sW}, 1", "s_lshl_b32 s64, s64, 5", "s_add_u32 s62, s62, s64", "s_mul_i32 s62, s62, 896",
              f"s_lshl_b32 s64, {sNT}, 7", f"s_add_u32 {sXROW}, s62, s64",
              f"v_lshl_add_u32 {vB2A}, {vL}, 1, s64",
              f"v_lshrrev_b32 v{a}, 4, {vL}", f"v_and_b32 v{b}, 15, {vL}", f"v_lshlrev_b32 v{b}, 4, v{b}", f"v_lshl_add_u32 {vF16}, v{a}, 9, v{b}",
              f"s_lshl_b32 {sU[4]}, {sH}, 11", f"s_add_u32 {sU[4]}, {sU[4]}, {sQ}",
              f"s_lshl_b32 s62, {sRB}, 9", f"s_lshl_b32 s63, {sW}, 7", "s_add_u32 s62, s62, s63", f"s_lshl_b32 s63, {sJ}, 2", "s_add_u32 s62, s62, s63",
              f"s_add_u32 {sU[5]}, s62, {WS_FO}"]
        o += self.strip_voff(vSB, 3584, c)
        o += [f"s_mul_i32 s62, {sW}, 1792", f"s_lshl_b32 s63, {sNT}, 8", "s_add_u32 s62, s62, s63", f"v_lshl_add_u32 {vVG}, {vL}, 2, s62"]
        o += [f"v_lshlrev_b32 v{a}, 3, {vL}", f"v_add_u32 v{a}, {L_WO + 57344}, v{a}", f"ds_write_b64 v{a}, {vr(VP + 2, 2)}"]
        o += [f"v_lshlrev_b32 {vTO}, 7, {vL}", f"s_sub_u32 s63, {sJ}, 11", "s_lshl_b32 s62, s63, 13",
              ["s_cmp_eq_u32 s63, 4", f"s_cselect_b32 s62, {Q_ST}, s62"], f"s_add_u32 s62, s62, {sQ}",
              ["s_cmp_lt_u32 s63, 5", f"s_cselect_b32 {sU[6]}, s62, {WS_SIZE}"]]
        return [Is(*x) if isinstance(x, list) else I(x) for x in o]

    def nonce_use(self):
        p = self.p
        p.wait(self.nonce)
        p(f"s_add_u32 {sN}, {sN}, 0x01010101")
        p(f"v_mov_b32 {vN}, {sN}")
        p(f"s_andn2_b32 s63, {sN}, 7")
        p(f"s_or_b32 {sXCC}, {sXCC}, s63")
        for r in range(4):
            p(f"v_bfe_u32 v{TG[r]}, {vN}, {8 * r}, 8")
        p(f"v_mov_b32 {vPD}, {sXCC}")
        p(f"v_bfi_b32 {vPX}, {vMK}, {vN}, {vPD}")

    def id_store(self):
        lab = self.cond(f"s_cmp_eq_u32 {sW}, 0", 0)
        self.flag(None, sXW, "sc1", vPD)
        self.endcond(lab)

    def mod_job(self):
        p = self.p
        p(f"v_cmp_gt_u32 vcc, 56, {vL}")
        p("s_mov_b32 s63, 0xffffff00")
        p(f"v_lshlrev_b32 v33, 3, {vL}")
        p(f"v_bfe_u32 v33, {vN}, v33, 8")
        p.wait(self.c_ld)
        p("v_lshlrev_b32 v34, 16, v32")
        p("v_and_b32 v35, 0xffff0000, v32")
        for r in (34, 35): p(f"v_mul_f32 v{r + 2}, {fb(-math.log2(math.e))}, v{r}")
        for r in (34, 35): p(f"v_exp_f32 v{r + 2}, v{r + 2}")
        for r in (34, 35): p(f"v_add_f32 v{r + 2}, 1.0, v{r + 2}")
        for r in (34, 35): p(f"v_rcp_f32 v{r + 2}, v{r + 2}")
        for r in (34, 35): p(f"v_mul_f32 v{r}, v{r}, v{r + 2}")
        p("v_cvt_pk_bf16_f32 v34, v34, v35")
        p("v_cndmask_b32 v34, 0, v34, vcc")
        p("ds_write_b32 v79, v34")
        rb = [p(f"ds_read_b64 {vr(56 + 4 * s + 2 * e, 2)}, v77 offset:{s * 64 + e * 16}") for s in range(4) for e in range(2)]
        p.wait(self.ms_ld)
        p("s_barrier")
        rd = [p(f"ds_read_b64_tr_b16 {vr(40 + 4 * s + 2 * e, 2)}, v76 offset:{s * 4096 + e * 1024}") for s in range(4) for e in range(2)]
        for s in range(4):
            p.wait(rd[2 * s + 1])
            p(f"v_mfma_f32_16x16x32_bf16 v[72:75], {vr(56 + 4 * s, 4)}, {vr(40 + 4 * s, 4)}, {'0' if s == 0 else 'v[72:75]'}")
        p("s_mov_b64 exec, 0xffff")
        p("v_and_or_b32 v72, v72, s63, v33")
        p(f"buffer_store_dword v72, v78, {WS}, {sMO} offen sc1")
        p("s_mov_b64 exec, -1")
        self.stamp("modjob")

    def red_rows4(self, r, t):
        p = self.p
        p(f"v_add_f32_dpp v{r}, v{r}, v{r} row_ror:4 row_mask:0xf bank_mask:0xf")
        p(f"v_add_f32_dpp v{r}, v{r}, v{r} row_ror:8 row_mask:0xf bank_mask:0xf")
        p(f"v_mov_b32 v{t}, v{r}")
        p(f"v_permlane16_swap_b32 v{r}, v{t}")
        p(f"v_add_f32 v{r}, v{r}, v{t}")
        p(f"v_mov_b32 v{t}, v{r}")
        p(f"v_permlane32_swap_b32 v{r}, v{t}")
        p(f"v_add_f32 v{r}, v{r}, v{t}")

    def h_job(self):
        p = self.p
        Z, RAW, S, M, ONE = 64, 40, 36, 96, 38
        wq = []
        for G in range(5): wq += self.wq_group(G)
        p(f"buffer_load_dword {vDUM}, v163, {WS}, {sHD} offen sc1")
        p(f"v_cmp_gt_u32 s[64:65], 56, {vL}")
        p.wait(self.xs_ld)
        rd = [p(f"ds_read_b128 {vr(RAW + 4 * s, 4)}, v160 offset:{s * 224}") for s in range(4)]
        for s in range(4):
            p.wait(rd[s])
            for n in range(4):
                p(f"v_lshlrev_b32 v{Z + 8 * s + 2 * n}, 16, v{RAW + 4 * s + n}")
                p(f"v_and_b32 v{Z + 8 * s + 2 * n + 1}, 0xffff0000, v{RAW + 4 * s + n}")
        p(f"v_pk_add_f32 {vr(S, 2)}, {vr(Z, 2)}, {vr(Z + 2, 2)}")
        for n in range(4, 32, 2):
            p(f"v_pk_add_f32 {vr(S, 2)}, {vr(S, 2)}, {vr(Z + n, 2)}")
        p(f"v_add_f32 v{S}, v{S}, v{S + 1}")
        p(f"v_cndmask_b32 v{S}, 0, v{S}, s[64:65]")
        self.red_rows4(S, S + 1)
        p(f"v_mul_f32 v{S}, {fb(1.0 / 448)}, v{S}")
        for n in range(0, 32, 2):
            p(f"v_pk_add_f32 {vr(Z + n, 2)}, {vr(Z + n, 2)}, {vr(S, 2)} op_sel_hi:[1,0] neg_lo:[0,1] neg_hi:[0,1]")
        p(f"v_pk_mul_f32 {vr(S, 2)}, {vr(Z, 2)}, {vr(Z, 2)}")
        for n in range(2, 32, 2):
            p(f"v_pk_fma_f32 {vr(S, 2)}, {vr(Z + n, 2)}, {vr(Z + n, 2)}, {vr(S, 2)}")
        p(f"v_add_f32 v{S}, v{S}, v{S + 1}")
        p(f"v_cndmask_b32 v{S}, 0, v{S}, s[64:65]")
        self.red_rows4(S, S + 1)
        p(f"v_mov_b32 v{S + 1}, {fb(1e-5)}")
        p(f"v_fmac_f32 v{S + 1}, {fb(1.0 / 448)}, v{S}")
        p(f"v_rsq_f32 v{S}, v{S + 1}")
        p(self.gather_pre(0, ONE))
        for n in range(0, 32, 2):
            p(f"v_pk_mul_f32 {vr(Z + n, 2)}, {vr(Z + n, 2)}, {vr(S, 2)} op_sel_hi:[1,0]")
        self.stamp("xstats")
        wfl, wfc = self.wflag(32)
        self.gather896(RAW, ONE, None, True)
        wr = p(f"ds_write_b128 v162, {vr(RAW, 4)}")
        wf = p(wfl)
        p.wait(wr)
        p("s_barrier")
        rd = []
        for s in range(4):
            for e in range(2):
                rd.append(p(f"ds_read_b128 {vr(M + 16 * s + 4 * e, 4)}, v161 offset:{s * 448 + e * 16}"))
                rd.append(p(f"ds_read_b128 {vr(M + 16 * s + 8 + 4 * e, 4)}, v161 offset:{1792 + s * 448 + e * 16}"))
        p("s_mov_b32 exec_hi, 0x00ffffff")
        st = []
        for s in range(4):
            p.wait(rd[4 * s + 3])
            for n in range(0, 8, 2):
                p(f"v_pk_fma_f32 {vr(Z + 8 * s + n, 2)}, {vr(Z + 8 * s + n, 2)}, {vr(M + 16 * s + 8 + n, 2)}, {vr(M + 16 * s + n, 2)}")
            for n in range(4):
                p(f"v_cvt_pk_bf16_f32 v{RAW + 4 * s + n}, v{Z + 8 * s + 2 * n}, v{Z + 8 * s + 2 * n + 1}")
            st.append(p(f"buffer_store_dwordx4 {vr(RAW + 4 * s, 4)}, {vL16}, {WS}, {sHD} offen offset:{s * 896}"))
        p("s_mov_b32 exec_hi, -1")
        p.wait(wf)
        p(self.recheck([wfl], wfc))
        n1 = self.o("wdrain", 5)
        late = self.setup_late()
        for n in range(n1):
            p(wq.pop(0)); p(late[:8]); late = late[8:]
        self.flag(st, sFH)
        self.stamp("hpub")
        while wq:
            p(wq.pop(0)); p(late[:8]); late = late[8:]
        p(late)

    def late_loads(self):
        wo = self.strip_dma(STR, vSA, sSTR, sPIT, sW14, L_WO)
        xt = [Is(f"s_lshr_b32 s67, {sWB}, 1", f"s_add_u32 m0, s67, {L_XT}", f"s_add_u32 s67, {sXROW}, {14336 - 1024}",
                 f"buffer_load_dwordx4 {vROW}, {X}, {sXROW} offen lds"),
              Is(f"buffer_load_dwordx4 {vROW}, {X}, s67 offen offset:1024 lds")]
        tl = [I(f"buffer_load_dword {vDUM}, {vTO}, {WS}, {sU[6]} offen sc1")]
        return wo, xt, tl

    def startup(self):
        p = self.p
        self.head()
        notp, none, join, att = p.label("RJ"), p.label("RN"), p.label("RX"), p.label("RA")
        p(f"s_cmp_lt_u32 {sJ}, 9")
        p(f"s_cbranch_scc0 {notp}")
        p.push()
        self.job_issue()
        p(self.set_ptrs())
        self.x_issue()
        p(self.setup_t16()); p(self.setup_job()); p(self.setup_w()); p(self.setup_h()); p(self.setup_p1())
        self.nonce_use()
        self.stamp("prolog")
        self.mod_job()
        self.id_store()
        self.h_job()
        wo, xt, tl = self.late_loads()
        self.phase1(True, xt + wo)
        p(f"s_branch {att}")
        p.pop()
        p(notp + ":")
        p.push()
        NWO = self.o("nwo", 8)
        p("s_cmp_lt_u32 s2, 168")
        p(f"s_cbranch_scc0 {none}")
        p.push()
        self.job_issue()
        p(self.set_ptrs())
        p(self.setup_t16()); p(self.setup_job()); p(self.setup_w()); p(self.setup_p1()); p(self.setup_late())
        self.nonce_use()
        self.stamp("prolog")
        self.mod_job()
        self.id_store()
        p("s_barrier")
        p(self.late_loads()[0][:NWO])
        p(f"s_branch {join}")
        p.pop()
        p(none + ":")
        p.push()
        p(self.set_ptrs())
        self.pack_issue()
        p(self.setup_t16()); p(self.setup_w()); p(self.setup_p1()); p(self.setup_late())
        st = self.pack_store()
        wo = self.late_loads()[0]
        p(wo[:NWO // 2])
        self.nonce_use()
        self.stamp("prolog")
        p.wait(st)
        p("s_barrier")
        lab = self.cond(f"s_cmp_eq_u32 {sW}, 1", 0)
        self.flag(None, sMO, "sc1")
        self.endcond(lab)
        self.stamp("modjob")
        self.id_store()
        p(wo[NWO // 2:NWO])
        p.pop()
        p(join + ":")
        wfl, wfc = self.wflag(32)
        self.poll([wfl], wfc)
        self.stamp("modpoll")
        for G in range(7): p(self.wq_group(G))
        wo, xt, tl = self.late_loads()
        self.phase1(False, tl + wo[NWO:] + xt)
        p.pop()
        p(att + ":")

    def vec_lds(self):
        lds = []
        for kq in range(4):
            lds += [f"s_mov_b32 s67, {WS_MODP + 896 * 4 + kq * 10752}", f"buffer_load_dword v{VG + kq}, {vVG}, {WS}, s67 offen sc1"]
        return lds

    def vec_loads(self):
        lds = self.vec_lds()
        return [Is(*lds[2 * kq:2 * kq + 2]) for kq in range(4)] + [Is(f"global_load_ushort v{VG + 4}, {vB2A}, s[38:39]")]

    def vec_items(self):
        R, T = VG, VG + 6
        lds = self.vec_lds()
        chk = [f"v_bitop3_b32 v{T + 1}, v{R}, v{R + 1}, v{T} bitop3:0x7e", f"v_bitop3_b32 v{T + 2}, v{R + 2}, v{R + 3}, v{T} bitop3:0x7e",
               f"v_or_b32 v{T + 1}, v{T + 1}, v{T + 2}", f"v_and_b32 v{T + 1}, 0xff, v{T + 1}", f"v_cmp_eq_u32 vcc, 0, v{T + 1}"]
        o = Is(f"v_and_b32 v{T}, 3, {vL}", f"v_lshlrev_b32 v{T}, 3, v{T}", f"v_lshrrev_b32 v{T}, v{T}, {vN}")
        o += self.recheck(lds, chk)
        o += Is(*[f"v_and_b32 v{R + n}, 0xffffff00, v{R + n}" for n in range(4)])
        o += Is(f"v_add_f32 v{R}, v{R}, v{R + 2}", f"v_add_f32 v{R + 1}, v{R + 1}, v{R + 3}", f"v_add_f32 v{R}, v{R}, v{R + 1}",
                f"v_cvt_pk_bf16_f32 v{R}, v{R}, v{R}")
        o.append(Is(f"s_cmp_eq_u32 {sW}, 2", "s_cselect_b32 s62, 1.0, 0"))
        o += Is(f"v_and_b32 v{R}, 0xffff0000, v{R}", f"v_add_f32 v{R}, s62, v{R}", f"v_cvt_pk_bf16_f32 v{R}, v{R}, v{R}",
                f"v_lshlrev_b32 v{T}, 2, {vL}", f"v_add_u32 v{T}, {L_VEC}, v{T}", f"s_lshl_b32 s62, {sW}, 8",
                f"v_and_b32 v{R}, 0xffff0000, v{R}", f"v_add_u32 v{T + 1}, s62, v{T}", f"v_lshlrev_b32 v{R + 4}, 16, v{R + 4}",
                f"ds_write_b32 v{T + 1}, v{R}", f"ds_write_b32 v{T}, v{R + 4} offset:1024")
        return o

    def phase1(self, prod, late):
        p = self.p
        self.stamp("prepoll")
        self.poll_h()
        self.stamp("hpoll")
        hld = [I(f"buffer_load_dwordx4 {ar(4 * s, 4)}, {vH}, {WS}, {sHOFF[s >> 2]} offen offset:{(s & 3) * 128} sc1") for s in range(28)]
        hh = [I(f"buffer_load_dwordx4 {ar(112 + 4 * s, 4)}, {vHH}, {WS}, {sU[s]} offen sc1") for s in range(4)]
        w56 = self.wq_group(5) + self.wq_group(6)
        vl = self.vec_loads()

        def wread(s):
            base = vTq[0] if s < 14 else vTq[1]
            return [I(f"ds_read_b64_tr_b16 {vr(WB1 + 12 * (s % 3) + 4 * S + 2 * e, 2)}, v{base} offset:{(s % 14) * 3072 + e * 768 + S * 64}")
                    for S in range(3) for e in range(2)]
        def hread(sg, c0):
            base, off = (vTH, sg * 24576) if sg < 3 else (vTH2, 0)
            return [I(f"ds_read_b64_tr_b16 {vr(HB1 + 4 * c + 2 * e, 2)}, {base} offset:{off + e * 768 + 64 + c * 32}")
                    for c in (c0, c0 + 1) for e in range(2)]
        def hmfma(sg, c):
            w_, h_ = vr(HB1 + 4 * c, 4), ar(112 + 4 * sg, 4)
            a_, b_ = (w_, h_) if c < 2 else (h_, w_)
            return I(f"v_mfma_f32_16x16x32_bf16 {vr(AH + 4 * c, 4)}, {a_}, {b_}, {'0' if sg == 0 else vr(AH + 4 * c, 4)}")

        PRE = self.o("g1pre", 6)
        B1 = self.o("g1b1", 17)
        p(hld[:3])
        p("s_barrier")
        wrd = {0: wread(0), 1: wread(1)}
        p(wrd[0]); p(hld[3:4]); p(wrd[1]); p(hld[4:PRE])
        hstep = {8: (0, 0), 9: (0, 2), 12: (1, 0), 13: (1, 2), B1 + 1: (2, 0), B1 + 2: (2, 2), B1 + 3: (3, 0), B1 + 4: (3, 2)}
        xq = {1: [hh[0]], 5: [hh[1]], 11: [hh[2]], 12: [hh[3]], 3: [vl[0]], 7: [vl[1]], 13: [vl[2]], 14: [vl[3]], 15: [vl[4]]}
        if prod:
            for n in range(6): xq[2 * n] = [w56[n]] + xq.get(2 * n, [])
        fill = []
        hw = [I(f"ds_write_b128 {vHW}, {vr(AH + 4 * c, 4)} offset:{L_HP + c * 4096}") for c in range(4)]
        hr = [I(f"ds_read_b128 {vr(AH + 4 * c, 4)}, {vHR} offset:{L_HP + c * 1024}") for c in range(4)]
        hs = hw + [[W(hw), I("s_barrier")]] + hr + [None, None, W(hr)]
        hs += [I(f"v_add_f32 v{AH + n}, v{AH + n}, v{AH + 8 + n}") for n in range(8)]
        hs += [I(f"v_add_f32 v{AH + n}, v{AH + n}, v{AH + 4 + n}") for n in range(4)]
        hs += Is(f"v_cvt_pk_bf16_f32 v{AH + 4}, v{AH}, v{AH + 1}", f"v_cvt_pk_bf16_f32 v{AH + 5}, v{AH + 2}, v{AH + 3}")
        hx = I(f"ds_write_b64 {vHX}, {vr(AH + 4, 2)}")
        hs.append(hx)
        hrd = {}
        for s in range(28):
            if 'g1steps' in self.opt and s % 4 == 0: self.stamp(f"g1s{s}")
            if s == B1:
                if prod: p.wait(w56[-1][-1])
                p("s_barrier")
            rq = []
            if s + 1 in hstep:
                hrd[s + 1] = hread(*hstep[s + 1]); rq += hrd[s + 1]
            if s + 2 < 28:
                wrd[s + 2] = wread(s + 2); rq += wrd[s + 2]
            b = WB1 + 12 * (s % 3)
            h = ar(4 * s, 4)
            mm = Is(f"v_mfma_f32_32x32x16_bf16 {vr(AK, 16)}, {vr(b + 4, 4)}, {h}, {'0' if s == 0 else vr(AK, 16)}",
                    f"v_mfma_f32_32x32x16_bf16 {vr(AQ, 16)}, {vr(b, 4)}, {h}, {'0' if s == 0 else vr(AQ, 16)}",
                    f"v_mfma_f32_32x32x16_bf16 {vr(AV, 16)}, {h}, {vr(b + 8, 4)}, {'0' if s == 0 else vr(AV, 16)}")
            p.wait(wrd[s], hld[s], hrd.get(s), hh[hstep[s][0]] if s in hstep else None)
            vm = [hld[s + PRE]] if s + PRE < 28 else []
            vm += xq.get(s, [])
            if s + PRE >= 28:
                vm += late[:2 - (s & 1)]; late = late[2 - (s & 1):]
            nper = -(-max(0, len(rq) - (2 if s in hstep else 0)) // 3)
            for g in range(3):
                p(mm[g])
                k = min(nper, len(rq))
                p(rq[:k]); rq = rq[k:]
                bud = 5 - k - (1 if g == 2 else 0)
                if g < 2 and vm:
                    bud -= cost(vm[0]); p(vm.pop(0))
                if s >= B1 + 5: bud = take(p, hs, bud, force=(bud >= 2))
                take(p, fill, bud)
                if s in hstep and g > 0:
                    p(hmfma(hstep[s][0], hstep[s][1] + g - 1))
                    p(rq[:1]); rq = rq[1:]
            assert not rq and not vm
        p(hs); p(fill)
        self.stamp("gemm1")
        def dma():
            if late: p(late.pop(0))
        p(f"v_and_b32 v{vt[0]}, 31, {vL}")
        p(f"v_cmp_eq_u32 s[64:65], 28, v{vt[0]}")
        for n in range(8): p(f"v_cvt_pk_bf16_f32 v{KF + n}, v{AK + 2 * n}, v{AK + 2 * n + 1}")
        wr = [p(f"ds_write_b128 {vKA}, {vr(KF + 4 * f, 4)} offset:{L_KX + 4096 + f * 1024}") for f in range(2)]
        for n in (6, 7): p(f"v_cvt_pk_bf16_f32 v{VF + n}, v{AV + 2 * n}, v{AV + 2 * n + 1}")
        wr.append(p(f"ds_write_b64 {vVA}, {vr(VF + 6, 2)} offset:{L_VX + 1024}"))
        for n in range(8): p(f"v_cvt_pk_bf16_f32 v{QF + n}, v{AQ + 2 * n}, v{AQ + 2 * n + 1}")
        for n in (6, 7): p(f"v_and_b32 v{QF + n}, {vMK}, v{QF + n}")
        p.wait(wr)
        p("s_barrier")
        rk = [p(f"ds_read_b128 {vr(KP + 4 * f, 4)}, {vKA} offset:{L_KX + f * 1024}") for f in range(2)]
        rv = p(f"ds_read_b64 {vr(VP, 2)}, {vVA} offset:{L_VX}")
        p(f"v_mfma_f32_32x32x16_bf16 {vr(SC, 16)}, {vr(KF, 4)}, {vr(QF, 4)}, {vr(SC, 16)}")
        dma()
        p(f"v_mfma_f32_32x32x16_bf16 {vr(SC, 16)}, {vr(KF + 4, 4)}, {vr(QF + 4, 4)}, {vr(SC, 16)}")
        for n in range(5): p(f"v_cvt_pk_bf16_f32 v{VF + n}, v{AV + 2 * n}, v{AV + 2 * n + 1}")
        p.wait(rk)
        p(f"v_mfma_f32_32x32x16_bf16 {vr(SP, 16)}, {vr(KP, 4)}, {vr(QF, 4)}, {vr(SP, 16)}")
        dma()
        p(f"v_cvt_pk_bf16_f32 v{VF + 5}, v{AV + 10}, v{AV + 11}")
        p(f"v_mfma_f32_32x32x16_bf16 {vr(SP, 16)}, {vr(KP + 4, 4)}, {vr(QF + 4, 4)}, {vr(SP, 16)}")
        m, t = AH, AH + 1
        cs = 28 ** -0.5 * math.log2(math.e)
        for n in range(4): p(f"v_cndmask_b32 v{VF + n}, v{VF + n}, {vONE}, s[64:65]")
        p(f"v_max3_f32 v{m}, v{SC}, v{SC + 1}, v{SC + 2}")
        for n in range(3, 15, 2): p(f"v_max3_f32 v{m}, v{m}, v{SC + n}, v{SC + n + 1}")
        for n in range(4, 6): p(f"v_cndmask_b32 v{VF + n}, v{VF + n}, {vONE}, s[64:65]")
        p(f"v_max3_f32 v{m}, v{m}, v{SC + 15}, v{SP + 12}")
        p(f"v_max3_f32 v{m}, v{m}, v{SP + 13}, v{SP + 14}")
        p(f"v_max_f32 v{m}, v{m}, v{SP + 15}")
        p(f"v_mov_b32 v{t}, v{m}")
        p(f"s_mov_b32 s62, {fb(cs)}")
        p(f"s_mov_b32 s63, {fb(cs)}")
        p(f"v_permlane32_swap_b32 v{m}, v{t}")
        p(f"v_max_f32 v{m}, v{m}, v{t}")
        p(f"v_mul_f32 v{m}, {fb(-cs)}, v{m}")
        dma()
        rs = [SC + n for n in range(0, 16, 2)] + [SP + 12, SP + 14]
        for r in rs: p(f"v_pk_fma_f32 {vr(r, 2)}, {vr(r, 2)}, s[62:63], {vr(m, 2)} op_sel_hi:[1,1,0]")
        for n, r in enumerate(rs):
            p(f"v_exp_f32 v{r}, v{r}")
            p(f"v_exp_f32 v{r + 1}, v{r + 1}")
            if n > 0: p(f"v_cvt_pk_bf16_f32 v{PF + n - 1}, v{rs[n - 1]}, v{rs[n - 1] + 1}")
            if n in (2, 6): dma()
            if n == 5: p(f"v_mfma_f32_32x32x16_bf16 {vr(AQ, 16)}, {vr(VF, 4)}, {vr(PF, 4)}, 0")
            if n == 7:
                for q in (6, 7): p(f"v_cndmask_b32 v{VF + q}, v{VF + q}, {vONE}, s[64:65]")
        p(f"v_cvt_pk_bf16_f32 v{PF + 9}, v{rs[9]}, v{rs[9] + 1}")
        p(f"v_mfma_f32_32x32x16_bf16 {vr(AQ, 16)}, {vr(VF + 4, 4)}, {vr(PF + 4, 4)}, {vr(AQ, 16)}")
        p.wait(rv)
        for n in range(2): p(f"v_cndmask_b32 v{VP + n}, v{VP + n}, {vONE}, s[64:65]")
        p(f"v_mfma_f32_32x32x16_bf16 {vr(AQ, 16)}, {vr(VP, 4)}, {vr(PP, 4)}, {vr(AQ, 16)}")
        dma(); dma()
        p(late); late = []

    def attn_tail(self):
        p = self.p
        m = AH
        p(f"v_mov_b32 v{m}, v{AQ + 12}")
        p(f"v_permlane32_swap_b32 v{AQ + 12}, v{m}")
        p(f"v_rcp_f32 v{m}, v{m}")
        st = []
        for f in range(2):
            for n in range(0, 8, 2):
                p(f"v_pk_mul_f32 {vr(AQ + 8 * f + n, 2)}, {vr(AQ + 8 * f + n, 2)}, {vr(m, 2)} op_sel_hi:[1,0]")
            for n in range(4):
                p(f"v_cvt_pk_bf16_f32 v{QF + 4 * f + n}, v{AQ + 8 * f + 2 * n}, v{AQ + 8 * f + 2 * n + 1}")
            if f == 1:
                for n in (6, 7): p(f"v_and_b32 v{QF + n}, {vMK}, v{QF + n}")
            st.append(p(f"buffer_store_dwordx4 {vr(QF + 4 * f, 4)}, {vL16}, {WS}, {sU[4]} offen offset:{Q_O + f * 1024}"))
        self.o_st = st
        self.stamp("attn")

    def finish(self):
        p = self.p
        if any(o.startswith("sc_") for o in self.opt):
            self.stamp("end")
            lab = p.label("SPIN")
            if "scx" in self.opt:
                p("s_and_b32 s62, s2, 7")
                p(f"s_cmp_eq_u32 s62, {self.opt['scx']}")
                p("s_cbranch_scc0 L_END")
            p("s_add_u32 s98, s98, 6000")
            p(lab + ":")
            p.wait(p("s_memrealtime s[100:101]"))
            p("s_sub_u32 s100, s100, s98")
            p("s_cmp_lt_i32 s100, 0")
            p(f"s_cbranch_scc1 {lab}")
        if self.stamps:
            p.wait(p(f"s_memrealtime s[{STAMP0}:{STAMP0 + 1}]"))
            p(f"v_writelane_b32 v255, s{STAMP0}, 62")
            p.wait(p(f"s_memtime s[{STAMP0}:{STAMP0 + 1}]"))
            p(f"v_writelane_b32 v255, s{STAMP0}, 63")
            p("s_lshl_b32 s62, s2, 10")
            p(f"s_add_u32 s62, s62, {WS_DBG}")
            p(f"v_lshlrev_b32 v254, 2, {vTID}")
            p(f"buffer_store_dword v255, v254, {WS}, s62 offen")
        p("s_endpgm")

    def build(self):
        p = self.p
        self.startup()
        self.attn_tail()
        import phases2
        phases2.rest(self)
        body = p.text()
        hdr = open("cdna_kernels/%s.s.ref" % NAME).read().split("; Override launch")[0]
        s = hdr + "; @launch grid=(256,1,1) block=(256,1,1) lds=163840\n"
        s += f'.amdgcn_target "amdgcn-amd-amdhsa--gfx950"\n.text\n.globl {NAME}_kernel\n.p2align 12\n.p2align 8\n.type {NAME}_kernel,@function\n{NAME}_kernel:\n'
        s += body + "".join(self.ool) + "L_END:\n    s_endpgm\n"
        s += f""".section .rodata,"a"
.p2align 6
.amdhsa_kernel {NAME}_kernel
  .amdhsa_next_free_vgpr 512
  .amdhsa_next_free_sgpr 102
  .amdhsa_accum_offset 256
  .amdhsa_group_segment_fixed_size 0
  .amdhsa_kernarg_size 104
  .amdhsa_user_sgpr_count 2
  .amdhsa_user_sgpr_kernarg_segment_ptr 1
  .amdhsa_system_sgpr_workgroup_id_x 1
  .amdhsa_float_denorm_mode_32 3
.end_amdhsa_kernel
"""
        return s


if __name__ == "__main__":
    import argparse
    ap = argparse.ArgumentParser()
    ap.add_argument("-o", default="cdna_kernels/%s.s" % NAME)
    ap.add_argument("--stop", type=int, default=99)
    ap.add_argument("--stamps", action="store_true")
    ap.add_argument("--slow", action="store_true")
    ap.add_argument("--opt", default="")
    a = ap.parse_args()
    sys.modules["kern"] = sys.modules["__main__"]
    k = K(a.stop, a.stamps, a.slow, [o for o in a.opt.split(",") if o])
    s = k.build()
    open(a.o, "w").write(s)
    if a.stamps:
        open(a.o + ".stamps", "w").write("\n".join(k.stamp_names))
    print("lines", s.count("\n"), "nops", k.p.nnop)
```

```python
import re

class Tok:
    __slots__ = ("cls", "ent")
    def __init__(self, cls):
        self.cls = cls
        self.ent = None

class Ent:
    __slots__ = ("kind", "text", "tok", "waits", "scope", "smem")
    def __init__(self, kind, text=None, tok=None, waits=None):
        self.kind = kind
        self.text = text
        self.tok = tok
        self.waits = waits
        self.scope = ()
        self.smem = False

def I(text):
    op = text.split()[0]
    e = Ent('i', text)
    if op.startswith(("buffer_", "global_")):
        e.tok = Tok('vm'); e.tok.ent = e
    elif op.startswith("ds_"):
        e.tok = Tok('lk'); e.tok.ent = e
    elif op.startswith(("s_load", "s_memtime", "s_memrealtime", "s_buffer_load")):
        e.tok = Tok('lk'); e.tok.ent = e; e.smem = True
    return e

def W(*ents):
    fl = []
    for x in ents:
        if x is None: continue
        if isinstance(x, (list, tuple)):
            fl.extend(y for y in x if y is not None and y.tok is not None)
        else:
            fl.append(x)
    return Ent('w', waits=fl)

_reg_re = re.compile(r'\b([vas])(?:\[(\d+):(\d+)\]|(\d+)\b)')
def regs_of(opnd):
    out = []
    for m in _reg_re.finditer(opnd):
        c = m.group(1)
        if m.group(2) is not None:
            out += [(c, i) for i in range(int(m.group(2)), int(m.group(3)) + 1)]
        else:
            out.append((c, int(m.group(4))))
    if re.search(r'\bvcc\b', opnd): out += [('s', 106), ('s', 107)]
    if re.search(r'\bvcc_lo\b', opnd): out.append(('s', 106))
    if re.search(r'\bvcc_hi\b', opnd): out.append(('s', 107))
    if re.search(r'\bm0\b', opnd): out.append(('s', 124))
    if re.search(r'\bexec\b', opnd): out += [('s', 126), ('s', 127)]
    return out

TRANS = ("v_exp_f32", "v_log_f32", "v_rcp_f32", "v_rsq_f32", "v_sqrt_f32", "v_sin_f32", "v_cos_f32")

class Info:
    pass

def analyze(text):
    t = text.split(';')[0].strip()
    parts = t.split(None, 1)
    op = parts[0]
    ops = [o.strip() for o in parts[1].split(',')] if len(parts) > 1 else []
    merged = []
    depth = 0
    for o in ops:
        if depth > 0:
            merged[-1] += ',' + o
        else:
            merged.append(o)
        depth += o.count('[') - o.count(']')
    ops = merged
    inf = Info()
    inf.op = op
    inf.mfma = op.startswith("v_mfma")
    inf.valu = op.startswith("v_") and not inf.mfma
    inf.salu = op.startswith("s_")
    inf.vmem = op.startswith(("buffer_", "global_"))
    inf.ds = op.startswith("ds_")
    inf.trans = op.startswith(TRANS)
    inf.dpp = "_dpp" in op or " row_" in t or "quad_perm" in t
    inf.perml = op.startswith("v_permlane")
    inf.rdlane = op.startswith(("v_readlane", "v_readfirstlane"))
    inf.dma = inf.vmem and re.search(r'\blds\b', t) is not None
    inf.passes = 0
    R = [regs_of(o) for o in ops]
    d, s = [], []
    inf.A = inf.B = inf.C = []
    inf.stdata = []
    if inf.mfma:
        d = R[0]; inf.A, inf.B, inf.C = R[1], R[2], R[3]
        s = R[1] + R[2] + R[3]
        inf.passes = 8 if "32x32" in op else 4
    elif inf.vmem:
        if op.startswith(("buffer_wbl2", "buffer_inv")):
            pass
        elif inf.dma:
            for r in R: s += r
            s.append(('s', 124))
        elif "_store" in op:
            for r in R: s += r
            if op.endswith(("x3", "x4")):
                inf.stdata = R[0] if op.startswith("buffer_") else R[1]
        elif "_atomic" in op:
            for r in R: s += r
            if "sc0" in t: d = R[0]
        else:
            d = R[0]
            for r in R[1:]: s += r
    elif inf.ds:
        if op.startswith(("ds_read", "ds_bpermute", "ds_permute", "ds_swizzle")):
            d = R[0]
            for r in R[1:]: s += r
        else:
            for r in R: s += r
    elif inf.valu:
        if op == "v_nop":
            pass
        elif inf.perml:
            d = R[0] + R[1]; s = R[0] + R[1]
        else:
            d = list(R[0])
            rest = R[1:]
            if op.startswith(("v_add_co", "v_sub_co", "v_addc_co", "v_subb_co", "v_div_scale", "v_mad_u64")):
                d += R[1]; rest = R[2:]
            for r in rest: s += r
            if op.startswith(("v_fmac", "v_dot2c", "v_pk_fmac", "v_writelane")) or inf.dpp or "sdwa" in op:
                s += R[0]
    elif inf.salu:
        if op.startswith(("s_cmp", "s_cbranch", "s_branch", "s_waitcnt", "s_nop", "s_barrier", "s_endpgm", "s_setprio", "s_sleep", "s_bitcmp")):
            for r in R: s += r
        else:
            if R: d = list(R[0])
            for r in R[1:]: s += r
            if "saveexec" in op: d += [('s', 126), ('s', 127)]
    inf.d = set(d); inf.s = set(s)
    return inf

def need(p, c):
    n = 0
    pv = {r for r in p.d if r[0] in 'va'}
    ps = {r for r in p.d if r[0] == 's'}
    if p.valu:
        if c.mfma and (pv & c.s): n = max(n, 2)
        if p.trans and c.valu and (pv & c.s): n = max(n, 1)
        if (c.perml or c.dpp) and (pv & c.s): n = max(n, 2)
        if c.rdlane and (pv & c.s): n = max(n, 1)
        if ps:
            if c.valu and (ps & c.s): n = max(n, 4 if c.op.startswith(("v_readlane", "v_writelane")) else 2)
            if c.vmem and (ps & c.s): n = max(n, 5)
            if c.salu and (ps & c.s): n = max(n, 1)
        if ("sdwa" in p.op or "op_sel:" in p.op) and c.valu and (pv & (c.s | c.d)): n = max(n, 1)
    if p.mfma:
        big = 12 if p.passes == 8 else 8
        if c.mfma:
            if pv & (set(c.A) | set(c.B)): n = max(n, big)
            if pv & set(c.C):
                if not (set(c.C) == pv and c.passes == p.passes): n = max(n, big - 2)
            elif pv & c.d:
                n = max(n, big)
        elif (c.valu or c.vmem or c.ds) and (pv & (c.s | c.d)):
            n = max(n, big)
        if c.valu and (set(p.C) & c.d): n = max(n, 7 if p.passes == 8 else 3)
    if p.salu and ('s', 124) in p.d and c.dma: n = max(n, 1)
    if p.stdata and (set(p.stdata) & c.d): n = max(n, 2)
    return n

class Prog:
    def __init__(self):
        self.e = []
        self.scope = ()
        self.nscope = 0
        self.nlab = 0
    def add(self, *xs):
        last = None
        for x in xs:
            if x is None: continue
            if isinstance(x, (list, tuple)):
                last = self.add(*x)
                continue
            if isinstance(x, str):
                lines = [l.strip() for l in x.split('\n') if l.strip()]
                for l in lines:
                    if l.startswith(';'):
                        ent = Ent('c', l)
                    elif l.endswith(':'):
                        ent = Ent('l', l)
                    else:
                        ent = I(l)
                    ent.scope = self.scope
                    self.e.append(ent); last = ent
                continue
            x.scope = self.scope
            self.e.append(x); last = x
        return last
    __call__ = add
    def wait(self, *ents):
        self.add(W(*ents))
    def waitall(self, vm=True, lk=True):
        e = Ent('w', waits=[]); e.text = ('vm' if vm else '') + ('lk' if lk else '')
        self.add(e)
    def push(self, sid=None):
        if sid is None:
            self.nscope += 1
            sid = self.nscope
        self.scope = self.scope + (sid,)
        return sid
    def pop(self):
        self.scope = self.scope[:-1]
    def label(self, base="L"):
        self.nlab += 1
        return f"{base}_{self.nlab}"

    @staticmethod
    def _encl(a, b):
        return b[:len(a)] == a

    def resolve(self):
        E = self.e
        pos = {id(x): i for i, x in enumerate(E)}
        out = []
        done = {'vm': [], 'lk': []}
        def known(cls, sc):
            k = -1
            for (s_, ix) in done[cls]:
                if self._encl(s_, sc): k = max(k, ix)
            return k
        for i, x in enumerate(E):
            if x.kind != 'w':
                out.append(x)
                continue
            cnt = {}
            if x.text:
                if 'vm' in x.text: cnt['vm'] = (0, i)
                if 'lk' in x.text: cnt['lk'] = (0, i)
            for cls in ('vm', 'lk'):
                tg = [pos[id(w)] for w in x.waits if w.tok.cls == cls]
                if not tg or cls in cnt: continue
                t = max(tg)
                assert t < i, "wait on later op: %s" % E[t].text
                k = known(cls, x.scope)
                if t <= k: continue
                n = 0
                sm = False
                for jx in range(k + 1, i):
                    y = E[jx]
                    if y.kind == 'i' and y.tok is not None and y.tok.cls == cls:
                        if y.smem: sm = True
                        if jx > t and self._encl(y.scope, x.scope): n += 1
                if sm:
                    cnt[cls] = (0, i)
                else:
                    mx = 63 if cls == 'vm' else 15
                    cnt[cls] = (min(n, mx), t if n > 0 else i)
            if not cnt: continue
            s = "s_waitcnt"
            if 'vm' in cnt: s += f" vmcnt({cnt['vm'][0]})"; done['vm'].append((x.scope, cnt['vm'][1]))
            if 'lk' in cnt: s += f" lgkmcnt({cnt['lk'][0]})"; done['lk'].append((x.scope, cnt['lk'][1]))
            y = Ent('i', s); y.scope = x.scope
            out.append(y)
        return out

    def hazards(self, L):
        out = []
        infos = []
        nnop = 0
        def states(ent, inf):
            return int(ent.text.split()[1]) + 1 if inf.op == "s_nop" else 1
        for x in L:
            if x.kind != 'i':
                out.append(x); infos.append(None); continue
            c = analyze(x.text)
            distx = 0
            req = 0
            seen = []
            for jx in range(len(out) - 1, -1, -1):
                p = infos[jx]
                if p is None: continue
                n = need(p, c)
                if n > distx:
                    d = sum(st for (sc, st) in seen if self._encl(sc, x.scope) or self._encl(sc, out[jx].scope))
                    if n > d: req = max(req, n - d)
                st = states(out[jx], p)
                seen.append((out[jx].scope, st))
                if self._encl(out[jx].scope, x.scope): distx += st
                if distx >= 12: break
            if req > 0:
                y = Ent('i', f"s_nop {req - 1}"); y.scope = x.scope
                out.append(y); infos.append(analyze(y.text)); nnop += req
            out.append(x); infos.append(c)
        self.nnop = nnop
        return out

    def text(self):
        L = self.hazards(self.resolve())
        s = []
        for x in L:
            if x.kind == 'l': s.append(x.text)
            else: s.append("    " + x.text)
        return "\n".join(s) + "\n"

def weave(main, fill, per=None, start=0):
    out = []
    n = len(main) - start
    if per is None: per = len(fill) / max(1, n)
    acc = 0.0
    k = 0
    for gi, g in enumerate(main):
        out.append(g)
        if gi < start: continue
        acc += per
        while k < len(fill) and acc >= 1.0 - 1e-9:
            out.append(fill[k]); k += 1; acc -= 1.0
    out.extend(fill[k:])
    return out
```

```python
from kern import *

def kb32(s):
    return 32 * (s >> 1) + 8 * (s & 1)

def rounds(p, n, dq, rq, fq=None, nr=8, nf=0):
    for _ in range(n):
        if dq: p(dq.pop(0))
        for i in range(nr):
            if rq: p(rq.pop(0))
            if fq and i < nf: p(fq.pop(0))

def nonce_duty(k):
    p = k.p
    p(f"s_lshl_b32 s62, {sW}, 8")
    p("s_add_u32 s62, s62, s2")
    lab = k.cond(f"s_cmp_eq_u32 s62, {3 * 256 + 255}", 0)
    p(f"v_lshlrev_b32 {vPA}, 9, {vL}")
    p(f"s_mov_b32 s62, {WS_XCC}")
    chk = [f"v_xor_b32 v{40 + n}, {sN}, v{40 + n}" for n in range(4)]
    chk += ["v_or3_b32 v40, v40, v41, v42", "v_or_b32 v40, v40, v43", "v_cmp_gt_u32 vcc, 8, v40"]
    k.poll([f"buffer_load_dword v{40 + n}, {vPA}, {WS}, s62 offen offset:{128 * n} sc1" for n in range(4)], chk)
    k.flag(None, "0", "sc1")
    k.endcond(lab)

def idle_path(k):
    p = k.p
    AC, AG, FA, FB = 64, 68, 80, 96
    R, ONE = 40, 38
    p(k.gather_pre(1344, ONE))
    k.publish(k.o_st, sU[5])
    k.stamp("opub")
    k.gather896(R, ONE, None, False)
    p(f"v_lshlrev_b32 v33, 3, {vTID}")
    p(f"v_add_u32 v33, {L_ET}, v33")
    p(f"ds_write_b64 v33, {vr(R + 16, 2)}")
    p(f"v_lshlrev_b32 v33, 2, {vTID}")
    p(f"v_add_u32 v33, {L_ET}, v33")
    p(f"ds_write_b32 v33, {vONE} offset:2048")
    p(f"ds_write_b32 v33, v{VP + 2} offset:3072")
    p("s_sub_u32 s66, s2, 224")
    p("s_min_u32 s66, s66, 27")
    p(f"v_and_b32 v32, 15, {vL}")
    p("s_lshl_b32 s62, s66, 2")
    p(f"s_add_u32 s62, s62, {sW}")
    p("s_lshl_b32 s63, s62, 5")
    p("v_lshl_add_u32 v33, v32, 1, s63")
    b1 = p("global_load_ushort v34, v33, s[36:37]")
    p("s_lshl_b32 s63, s66, 7")
    p(f"s_add_u32 s67, s63, {WS_FE}")
    p("s_lshr_b32 s63, s62, 1")
    p("s_lshl_b32 s63, s63, 10")
    p("s_and_b32 s62, s62, 1")
    p("s_lshl_b32 s62, s62, 8")
    p("s_add_u32 s62, s62, s63")
    p(f"s_add_u32 s68, s62, {WS_EXT}")
    p("s_lshl_b32 s62, s66, 6")
    p(f"s_add_u32 s69, s62, {WS_GRAM}")
    p("v_mov_b32 v33, 3072")
    for row, off in ((0, 896), (1, 0), (4, 2048)):
        p(f"v_cmp_eq_u32 vcc, {row}, v32")
        p(f"v_mov_b32 v35, {off}")
        p("v_cndmask_b32 v33, v33, v35, vcc")
    p(f"v_lshrrev_b32 v35, 5, {vL}")
    p("v_lshl_add_u32 v33, v35, 5, v33")
    p(f"v_bfe_u32 v35, {vL}, 4, 1")
    p("v_lshl_add_u32 v33, v35, 3, v33")
    p(f"v_add_u32 v33, {L_ET}, v33")
    p(f"s_lshl_b32 s62, {sW}, 5")
    p(f"v_xor_b32 v35, s62, v{vT16[0]}")
    p(f"v_add_u32 v35, {L_WO}, v35")
    p.waitall(vm=False, lk=True)
    p("s_barrier")
    rd = {}
    def read(s):
        for e in range(2):
            p(f"ds_read_b64 {vr(FA + 4 * (s % 3) + 2 * e, 2)}, v33 offset:{s * 64 + e * 16}")
            rd[s] = p(f"ds_read_b64_tr_b16 {vr(FB + 4 * (s % 3) + 2 * e, 2)}, v35 offset:{s * 4096 + e * 1024}")
    read(0); read(1)
    for s in range(14):
        if s + 2 < 14: read(s + 2)
        p.wait(rd[s])
        a = vr(FA + 4 * (s % 3), 4)
        p(f"v_mfma_f32_16x16x32_bf16 {vr(AC, 4)}, {a}, {vr(FB + 4 * (s % 3), 4)}, {'0' if s == 0 else vr(AC, 4)}")
        p(f"v_mfma_f32_16x16x32_bf16 {vr(AG, 4)}, {a}, {a}, {'0' if s == 0 else vr(AG, 4)}")
    p(f"v_cvt_pk_bf16_f32 v41, v{AC}, v{AC + 1}")
    p("v_lshlrev_b32 v44, 16, v41")
    p("v_and_b32 v45, 0xffff0000, v41")
    p(f"v_sub_f32 v46, v{AC}, v44")
    p(f"v_sub_f32 v47, v{AC + 1}, v45")
    p("v_cvt_pk_bf16_f32 v40, v44, v46")
    p("v_cvt_pk_bf16_f32 v42, v47, v45")
    p(f"v_cmp_gt_u32 vcc, 16, {vL}")
    p.wait(b1)
    p("v_lshl_or_b32 v43, v34, 16, v34")
    p("v_cndmask_b32 v43, 0, v43, vcc")
    p(f"v_lshlrev_b32 v33, 3, {vL}")
    lab = k.cond("s_cmp_lt_u32 s2, 252", 0)
    p("s_mov_b32 exec_hi, 0")
    st = [p(f"buffer_store_dwordx4 v[40:43], {vF16}, {WS}, s68 offen sc1")]
    p("s_mov_b32 exec_lo, 0xff")
    st.append(p(f"buffer_store_dwordx2 {vr(AG, 2)}, v33, {WS}, s69 offen sc1"))
    p("s_mov_b64 exec, -1")
    p.wait(st)
    p("s_barrier")
    l2 = k.cond(f"s_cmp_eq_u32 {sW}, 0", 0)
    k.flag(None, "s67", "sc1")
    k.endcond(l2)
    k.endcond(lab)
    k.stamp("ext")
    nonce_duty(k)
    p(f"v_lshlrev_b32 v32, 7, {vL}")
    p(f"s_and_b32 s62, {sJ}, 1")
    p("s_mul_i32 s62, s62, 40960")
    p(f"s_add_u32 s62, s62, {sQ}")
    p(f"s_add_u32 s62, s62, 32768")
    p(f"s_lshr_b32 s63, {sRB}, 3")
    p("s_lshl_b32 s63, s63, 1")
    p(f"s_and_b32 s64, {sJ}, 1")
    p("s_add_u32 s63, s63, s64")
    p(f"s_mul_i32 s64, {sW}, 49")
    p("s_add_u32 s63, s63, s64")
    p("s_lshl_b32 s63, s63, 13")
    for n in range(13):
        if n < k.o("nw2t", 6):
            p(f"buffer_load_dword v33, v32, {W2}, s63 offen")
            p(f"s_add_u32 s63, s63, {4 * 8192}")
        if n < 5 and 'hsc1' not in k.opt:
            p(f"buffer_load_dword v33, v32, {WS}, s62 offen sc1")
            p("s_add_u32 s62, s62, 8192")
    k.finish()


def phase2(k):
    p = k.p
    OF, AC, XV, GA, SB, SS, GB, B2, T, PK, S = 32, 96, 112, 128, 144, 160, 176, 208, 224, 240, 32
    TB = [248, 249, 250, 251]
    sW1B, sW1A, sO, sA, sST, sFA = sU[0], sU[1], sU[2], sU[3], sU[6], sU[7]
    a, b = 252, 253
    p(f"s_lshl_b32 {sW1A}, {sJ2}, 8")
    p(f"s_mul_i32 s62, {sW}, {112 * 3584}")
    p(f"s_add_u32 {sW1A}, {sW1A}, s62")
    p(f"s_add_u32 {sW1B}, {sW1A}, 128")
    for nt in range(4):
        p(f"v_add_u32 v{TB[nt]}, {L_WO}, v{vT16[nt]}")
    p("s_waitcnt vmcnt(2)")
    p("s_barrier")
    p(f"s_cmp_lt_u32 {sJ}, 14")
    p("s_cbranch_scc0 L_IDLE")
    w1b = k.strip_dma(W1, vSB, sW1B, 32 * 3584, sW14, L_W1B)
    rd = [I(f"ds_read_b64_tr_b16 {ar(16 * h + 4 * nt + 2 * e, 2)}, v{TB[nt ^ (h & 1)]} offset:{28 * h * 128 + e * 1024}")
          for h in range(16) for nt in range(4) for e in range(2)]
    rdl = list(rd)
    pre = Is(f"v_lshrrev_b32 v{a}, 4, {vL}", f"v_and_b32 v{b}, 15, {vL}",
             f"s_lshl_b32 s63, {sMH}, 1", f"s_lshr_b32 s64, {sW}, 1", "s_add_u32 s63, s63, s64", "s_lshl_b32 s63, s63, 7",
             f"s_lshl_b32 s64, {sRB}, 9", "s_add_u32 s63, s63, s64",
             f"s_add_u32 s64, s63, {WS_FO}", f"v_lshl_add_u32 {vPA}, v{b}, 2, s64",
             f"s_and_b32 s65, {sW}, 1", "s_lshl_b32 s64, s65, 3", f"s_add_u32 s64, s64, {sNT}", "s_lshl_b32 s64, s64, 2", "s_add_u32 s63, s63, s64",
             f"s_add_u32 {sFA}, s63, {WS_FA}",
             "s_lshl_b32 s63, s65, 8", f"s_add_u32 {sO}, {sQ2}, s63",
             "s_mul_i32 s63, s65, 14336", f"s_add_u32 {sA}, {sQ2}, s63", f"s_lshl_b32 s63, {sNT}, 11", f"s_add_u32 {sA}, {sA}, s63",
             f"s_add_u32 {sA}, {sA}, {Q_A}",
             "s_mul_i32 s63, s65, 3584", f"s_add_u32 {sST}, {sQ2}, s63", f"s_lshl_b32 s63, {sNT}, 9", f"s_add_u32 {sST}, {sST}, s63",
             f"s_add_u32 {sST}, {sST}, {Q_ST}",
             f"v_lshlrev_b32 v{T}, 7, v{b}", f"v_lshl_add_u32 v{T}, v{a}, 3, v{T}", f"s_lshr_b32 s63, {sWB}, 1", f"s_add_u32 s63, s63, {L_XT}",
             f"v_add_u32 v{T}, s63, v{T}", f"v_lshlrev_b32 v{T + 1}, 4, v{a}", f"v_add_u32 v{T + 1}, {L_VEC}, v{T + 1}",
             f"v_lshrrev_b32 v{a}, 5, {vL}", f"v_lshlrev_b32 v{a}, 8, v{a}", f"v_lshl_add_u32 v21, v{b}, 4, v{a}")
    vl = k.vec_loads()
    k.vi = k.vec_items(vl[-1])
    n1, n2 = k.o("o_r1", 5), k.o("o_r2", 7)
    rounds(p, n1, w1b, rd, pre, nf=6)
    k.publish(k.o_st, sU[5])
    k.stamp("opub")
    p(vl)
    rounds(p, n2, w1b, rd, pre, nf=6)
    p(pre)
    k.stamp("wopre")
    k.poll_flags()
    k.stamp("opoll")
    oq, old = [], []
    for h in range(16):
        x = I(f"buffer_load_dwordx4 {vr(OF + 4 * h, 4)}, {vF16}, {WS}, {sO} offen offset:{Q_O + (h & 1) * 2048} sc1")
        old.append(x)
        oq.append([x, I(f"s_add_u32 {sO}, {sO}, 4096")] if h & 1 and h < 15 else [x])
    PRE = k.o("g2pre", 6)
    xr = [I(f"ds_read_b64 {vr(PK + 2 * n, 2)}, v{T} offset:{n * 32}") for n in range(4)]
    vrd = [I(f"ds_read_b128 {vr(reg + 4 * n, 4)}, v{T + 1} offset:{vi * 256 + n * 64}") for vi, reg in ((0, GA), (2, SS), (1, SB), (3, GB), (4, B2)) for n in range(4)]
    rd += xr
    vi = list(k.vi)
    rounds(p, PRE, oq, rd, vi, nr=6, nf=6)
    p(rd); p(vi)
    w1a = k.strip_dma(W1, vSB, sW1A, 32 * 3584, sW14, L_W1A)
    k.w1b_last = w1b[-1][-1] if w1b else None
    fill = [W(xr)]
    for n in range(8):
        fill += Is(f"v_lshlrev_b32 v{XV + 2 * n}, 16, v{PK + n}", f"v_and_b32 v{XV + 2 * n + 1}, 0xffff0000, v{PK + n}")
    dq = oq + w1b
    p.wait(old[0], rdl[7])
    for h in range(16):
        for nt in range(4):
            p(f"v_mfma_f32_16x16x32_bf16 {vr(AC + 4 * nt, 4)}, {ar(16 * h + 4 * nt, 4)}, {vr(OF + 4 * h, 4)}, {'0' if h == 0 else vr(AC + 4 * nt, 4)}")
            if nt == 0:
                x = dq.pop(0) if dq else w1a.pop(0)
                if x: p(x)
                elif fill: p(fill.pop(0))
            elif nt == 3:
                if h < 15: p.wait(old[h + 1], rdl[8 * h + 15])
                if h == k.o("g2bar", 4):
                    p.wait(rdl[-1], k.vi[-1]); p("s_barrier")
                    fill += vrd
            elif fill:
                p(fill.pop(0))
    p(fill)
    k.stamp("gemm2")
    p.wait(vrd)
    st = []
    for u in range(2):
        for n in range(8 * u, 8 * u + 8, 2):
            p(f"v_pk_fma_f32 {vr(AC + n, 2)}, {vr(AC + n, 2)}, {vr(GA + n, 2)}, {vr(XV + n, 2)}")
        for n in range(8 * u, 8 * u + 8, 2):
            p(f"v_pk_mul_f32 {vr(T + n, 2)}, {vr(AC + n, 2)}, {vr(SS + n, 2)}")
        for n in range(4 * u, 4 * u + 4):
            p(f"v_cvt_pk_bf16_f32 v{PK + n}, v{T + 2 * n}, v{T + 2 * n + 1}")
        st.append(p(f"buffer_store_dwordx4 {vr(PK + 4 * u, 4)}, {vL16}, {WS}, {sA} offen offset:{u * 1024}"))
    terms = [(AC, None), (AC, AC), (T, None), (T, T), (T, SS), (T, SB)]
    for n in range(0, 16, 2):
        for si, (x, y) in enumerate(terms):
            d = vr(S + 2 * si, 2)
            if y is None:
                if n == 0: continue
                p(f"v_pk_add_f32 {d}, {vr(x, 2) if n == 2 else d}, {vr(x + n, 2)}")
            elif n == 0:
                p(f"v_pk_mul_f32 {d}, {vr(x, 2)}, {vr(y, 2)}")
            else:
                p(f"v_pk_fma_f32 {d}, {vr(x + n, 2)}, {vr(y + n, 2)}, {d}")
    for si in (0, 3, 1, 4, 2, 5):
        p(f"v_add_f32 v{S + 2 * si}, v{S + 2 * si}, v{S + 2 * si + 1}")
    for n in range(3):
        p(f"v_permlane32_swap_b32 v{S + 2 * n}, v{S + 6 + 2 * n}")
    for n in range(3):
        p(f"v_add_f32 v{S + 12 + n}, v{S + 2 * n}, v{S + 6 + 2 * n}")
        p(f"v_add_f32 v{S + 16 + n}, v{S + 2 * n}, v{S + 6 + 2 * n}")
    for n in range(3):
        p(f"v_permlane16_swap_b32 v{S + 12 + n}, v{S + 16 + n}")
    for n in range(3):
        p(f"v_add_f32 v{S + 12 + n}, v{S + 12 + n}, v{S + 16 + n}")
    st.append(p(f"buffer_store_dwordx4 {vr(S + 12, 4)}, v21, {WS}, {sST} offen"))
    k.stamp("epi2")
    k.a_st, k.sFA, k.w1a = st, sFA, w1a
    keep = [I(f"v_pk_fma_f32 {vr(AC + n, 2)}, {vr(B2 + n, 2)}, {vr(GB + n, 2)}, {vr(AC + n, 2)}") for n in range(0, 16, 2)]
    for n in range(16):
        keep += Is(f"v_accvgpr_write_b32 a{224 + n}, v{AC + n}", f"v_accvgpr_write_b32 a{240 + n}, v{GB + n}")
    k.keep = keep


def w2_dma(slot, sW2):
    out = []
    for e in range(4):
        g = [I(f"s_add_u32 m0, {sWB}, {W2SLOT[slot]}"), I(f"s_add_u32 {sW2}, {sW2}, {32 * 896}")] if e == 0 else []
        out.append(g + [I(f"buffer_load_dwordx4 v{vSA[e]}, {W2}, {sW2} offen offset:{e * 1024} lds")])
    return out

def phase3(k):
    p = k.p
    AF, AC, WB, EX, AE = 32, 144, 208, 232, 248
    C1, C3, BE = 252, 253, 254
    RAW, R, G4, G2 = AF + 84, 192, 204, 30
    TA = [18, 19]
    vA3, vST, vEF = "v20", "v21", "v22"
    sA, sST, sW2, sD0, sD1, sFD = sU[0], sU[2], sU[3], sU[4], sU[5], sU[6]
    k.sW2, k.sFD = sW2, sFD
    w1a = k.w1a
    p(f"v_and_b32 v29, 1, {vL}")
    p(f"s_lshl_b32 s62, {sJ2}, 8")
    p(f"s_add_u32 s62, s62, {WS_FE}")
    p(f"v_lshl_add_u32 {vEF}, v29, 7, s62")
    efl = f"buffer_load_dword {vPD}, {vEF}, {WS}, 0 offen sc1"
    ef = p(efl)
    if k.w1b_last is not None:
        p.wait(k.w1b_last); p("s_barrier")
    rd = [I(f"ds_read_b64_tr_b16 {ar(112 * t + 4 * s + 2 * e, 2)}, v{vT32[t]} offset:{L_W1B + (kb32(s) + 16 * e) * 128}")
          for t in range(2) for s in range(28) for e in range(2)]
    rdl = list(rd)
    keep = k.keep
    rounds(p, k.o("a_r1", 5), w1a, rd, keep, nf=4)
    k.publish(k.a_st, k.sFA)
    k.stamp("apub")
    pre = keep + Is(f"v_add_u32 v{TA[0]}, {L_W1A}, v{vT32[0]}", f"v_add_u32 v{TA[1]}, {L_W1A}, v{vT32[1]}",
              f"v_bfe_u32 v25, {vL}, 4, 1", f"v_mul_u32_u24 {vA3}, 14336, v25", f"v_add_u32 {vA3}, {vA3}, {vST}",
              "v_mul_u32_u24 v25, 3584, v25", f"v_add_u32 {vST}, v25, {vST}",
              f"s_add_u32 {sA}, {sQ}, {Q_A}", f"s_add_u32 {sST}, {sQ}, {Q_ST}",
              f"v_and_b32 v29, 7, {vL}", "v_min_u32 v29, 6, v29", f"v_and_b32 {vPA}, 8, {vL}", f"v_or_b32 v29, v29, {vPA}",
              f"s_lshl_b32 s64, {sRB}, 9", f"s_lshl_b32 s65, {sW}, 7", "s_add_u32 s64, s64, s65", f"s_add_u32 s64, s64, {WS_FA}",
              f"v_lshl_add_u32 {vPA}, v29, 2, s64")
    rounds(p, len(w1a), w1a, rd, pre, nf=4)
    p(pre)
    p.wait(ef)
    p(k.recheck([efl], [f"v_cmp_eq_u32 vcc, {sN}, {vPD}"]))
    p(f"s_lshl_b32 s62, {sJ2}, 12")
    p(f"s_add_u32 s62, s62, {WS_EXT}")
    p(f"s_lshl_b32 s63, {sJ2}, 7")
    p(f"s_add_u32 s63, s63, {WS_GRAM}")
    eq = [I(f"buffer_load_dwordx4 {vr(G4, 4)}, off, {WS}, s63 sc1"), I(f"buffer_load_dwordx2 {vr(G2, 2)}, off, {WS}, s63 offset:32 sc1")]
    eq += [I(f"buffer_load_dwordx4 {vr(EX + 4 * t, 4)}, {vL16}, {WS}, s62 offen offset:{t * 1024} sc1") for t in range(4)]
    eql = list(eq)
    ne = k.o("a_ext", 2)
    rounds(p, ne, eq, rd, nr=4)
    k.stamp("w1pre")
    p(f"s_mov_b32 s66, s62")
    for x in eq: x.text = x.text.replace("s62", "s66")
    k.poll_flags()
    k.stamp("apoll")
    ald, aq = [], []
    for s in range(28):
        x = I(f"buffer_load_dwordx4 {vr(AF + 4 * s, 4)}, {vA3}, {WS}, {sA} offen offset:{(s % 8) * 512} sc1")
        ald.append(x)
        aq.append([x, I(f"s_add_u32 {sA}, {sA}, 4096")] if s % 8 == 7 else [x])
    sld = [I(f"buffer_load_dwordx4 {vr(RAW + 4 * n, 4)}, {vST}, {WS}, {sST} offen offset:{n * 512} sc1") for n in range(7)]
    wrd = {}
    def wread(s):
        wrd[s] = [I(f"ds_read_b64_tr_b16 {vr(WB + 8 * (s % 3) + 4 * t + 2 * e, 2)}, v{TA[t]} offset:{(kb32(s) + 16 * e) * 128}")
                  for t in range(2) for e in range(2)]
        return list(wrd[s])
    p(aq.pop(0)); p(aq.pop(0))
    p("s_barrier")
    rd = wread(0) + wread(1) + rd
    PRE = k.o("p1pre", 6)
    rounds(p, PRE - 2, aq, rd)
    p(rd)
    post = Is(f"s_mul_i32 {sW2}, {sW}, {448 * 896}", f"s_lshl_b32 s62, {sNT}, 7", f"s_add_u32 {sW2}, {sW2}, s62", f"s_sub_u32 {sW2}, {sW2}, {32 * 896}",
              f"s_lshl_b32 {sD0}, {sJ2}, 13", f"s_add_u32 {sD0}, {sD0}, {sQ}", f"s_add_u32 {sD1}, {sD0}, 4096",
              f"s_lshl_b32 s62, {sRB}, 8", f"s_lshl_b32 s63, {sW}, 6", "s_add_u32 s62, s62, s63", f"s_lshl_b32 s63, {sJ2}, 2",
              "s_add_u32 s62, s62, s63", f"s_add_u32 {sFD}, s62, {WS_FD}")
    D = 448.0
    A_ = -2.0 * math.sqrt(2.0 / math.pi) * math.log2(math.e)
    B_ = A_ * 0.044715
    sm = [W(sld, eql[:2])]
    def v(t): sm.append(I(t))
    for n in range(3):
        v(f"v_add_f32 v{R + n}, v{RAW + n}, v{RAW + 4 + n}")
        v(f"v_add_f32 v{R + 4 + n}, v{RAW + 8 + n}, v{RAW + 12 + n}")
        v(f"v_add_f32 v{R + 8 + n}, v{RAW + 16 + n}, v{RAW + 20 + n}")
        v(f"v_add_f32 v{R + n}, v{R + n}, v{RAW + 24 + n}")
    nraw = len(sm)
    for n in range(3):
        v(f"v_add_f32 v{R + 4 + n}, v{R + 4 + n}, v{R + 8 + n}")
    for n in range(3):
        v(f"v_add_f32 v{R + n}, v{R + n}, v{R + 4 + n}")
    for n in range(3):
        v(f"v_mov_b32 v{R + 4 + n}, v{R + n}")
    v(f"v_cmp_gt_u32 s[64:65], 32, {vL}")
    for n in range(3):
        v(f"v_permlane32_swap_b32 v{R + n}, v{R + 4 + n}")
    S1, S2, S3, S4, S5, S6 = R, R + 1, R + 2, R + 4, R + 5, R + 6
    mu, v1, sg1, gm, e2, t0, t1, rho = R, R + 1, R + 3, R + 7, R + 8, R + 9, R + 10, R + 11
    Gss, Gsb, Gbb, Gs, Gb = G4, G4 + 1, G4 + 3, G2, G2 + 1
    v(f"v_mul_f32 v{mu}, {fb(-1 / D)}, v{S1}")
    v(f"v_mul_f32 v{v1}, {fb(1 / D)}, v{S2}")
    v(f"v_fma_f32 v{v1}, -v{mu}, v{mu}, v{v1}")
    v(f"v_max_f32 v{v1}, 0, v{v1}")
    v(f"v_add_f32 v{v1}, {fb(1e-5)}, v{v1}")
    v(f"v_sqrt_f32 v{sg1}, v{v1}")
    v(f"v_fma_f32 v{gm}, v{mu}, v{Gs}, v{S3}")
    v(f"v_fma_f32 v{t0}, v{mu}, v{Gsb}, v{S6}")
    v(f"v_fma_f32 v{gm}, v{sg1}, v{Gb}, v{gm}")
    v(f"v_mul_f32 v{gm}, {fb(-1 / D)}, v{gm}")
    v(f"v_mul_f32 v{t0}, v{sg1}, v{t0}")
    v(f"v_fma_f32 v{t0}, v{mu}, v{S5}, v{t0}")
    v(f"v_mul_f32 v{t1}, v{mu}, v{mu}")
    v(f"v_fma_f32 v{e2}, v{t1}, v{Gss}, v{S4}")
    v(f"v_fma_f32 v{e2}, v{v1}, v{Gbb}, v{e2}")
    v(f"v_fma_f32 v{e2}, 2.0, v{t0}, v{e2}")
    v(f"v_mul_f32 v{e2}, {fb(1 / D)}, v{e2}")
    v(f"v_fma_f32 v{e2}, -v{gm}, v{gm}, v{e2}")
    v(f"v_max_f32 v{e2}, 0, v{e2}")
    v(f"v_fmac_f32 v{e2}, {fb(1e-5)}, v{v1}")
    v(f"v_sqrt_f32 v{BE}, v{e2}")
    v(f"v_rsq_f32 v{rho}, v{e2}")
    v(f"v_cndmask_b32 v{mu}, v{gm}, v{mu}, s[64:65]")
    v(f"v_mul_f32 v{C1}, {fb(A_)}, v{rho}")
    v(f"v_mul_f32 v{t0}, v{rho}, v{rho}")
    v(f"v_mul_f32 v{t0}, v{t0}, v{rho}")
    v(f"v_mul_f32 v{C3}, {fb(B_)}, v{t0}")
    v(f"v_cvt_pk_bf16_f32 v{AE}, v{mu}, v{mu}")
    v(f"v_cvt_pk_bf16_f32 v{t0}, v{sg1}, v{BE}")
    v(f"v_and_b32 v{t1}, 0xffff0000, v{AE}")
    v(f"v_sub_f32 v{mu}, v{mu}, v{t1}")
    v(f"v_lshlrev_b32 v{t1}, 16, v{t0}")
    v(f"v_and_b32 v{t0}, 0xffff0000, v{t0}")
    v(f"v_sub_f32 v{sg1}, v{sg1}, v{t1}")
    v(f"v_sub_f32 v{e2}, v{BE}, v{t0}")
    v(f"v_cvt_pk_bf16_f32 v{AE + 1}, v{mu}, v{t1}")
    v(f"v_cvt_pk_bf16_f32 v{AE + 2}, v{t1}, v{sg1}")
    v(f"v_cvt_pk_bf16_f32 v{AE + 3}, v{t0}, v{e2}")
    nsm = len(sm)

    def mm(t, s):
        acc = vr(AC + 16 * t, 16)
        if s == 28:
            return I(f"v_mfma_f32_32x32x16_bf16 {acc}, {vr(EX + 4 * t, 4)}, {vr(AE, 4)}, {acc}")
        a = vr(WB + 8 * (s % 3) + 4 * t, 4) if t < 2 else ar(112 * (t - 2) + 4 * s, 4)
        return I(f"v_mfma_f32_32x32x16_bf16 {acc}, {a}, {vr(AF + 4 * s, 4)}, {'0' if s == 0 else acc}")
    w2q = []
    for sg in range(10): w2q += w2_dma(sg, sW2)
    k.w2_ld = {sg: w2q[4 * sg + 3][-1] for sg in range(10)}
    xq = list(sld)
    n2 = 0
    SM0 = k.o("p1sm", 11)
    p.wait(wrd[0], ald[0], rdl[-1])
    for s in range(28):
        nxt = wread(s + 2) if s + 2 < 28 else []
        if s == 28 - PRE:
            p("s_barrier")
            aq += eq + w2q[:PRE - len(eq)]; w2q = w2q[PRE - len(eq):]
        third = s < 7 or (s >= SM0 and n2 < k.o("p1n2", 14))
        fq = post if s < SM0 else sm
        p(mm(0, s)); p(nxt[:2])
        if s + PRE == 21: assert nsm - len(sm) >= nraw, "statistics registers still live"
        p(aq.pop(0))
        p(mm(1, s)); p(nxt[2:])
        take(p, fq, (3 if third else 2) + (0 if nxt else 2))
        if third:
            p(mm(2, n2)); n2 += 1
            bud = 4
            if xq: p(xq.pop(0)); bud -= 3
            take(p, fq, bud)
        if s < 27: p.wait(wrd[s + 1], ald[s + 1])
    assert not post
    p(sm)
    p.wait(eql)
    p(mm(0, 28)); p(mm(1, 28))
    p("s_barrier")
    k.stamp("p1")
    TM, PO = WB, WB + 8
    stores = []
    hfl = "sc1" if 'hsc1' in k.opt else ""
    def gelu(t, grp, pk):
        x = AC + 16 * t + 4 * grp
        tm = TM + 4 * (grp & 1)
        f = grp >> 1
        po = PO + 4 * ((2 * t + f) % 4) + 2 * (grp & 1)
        o = []
        if pk:
            o += [f"v_pk_mul_f32 {vr(tm + n, 2)}, {vr(x + n, 2)}, {vr(x + n, 2)}" for n in (0, 2)]
            o += [f"v_pk_fma_f32 {vr(tm + n, 2)}, {vr(tm + n, 2)}, {vr(C1, 2)}, {vr(C1, 2)} op_sel:[0,1,0] op_sel_hi:[1,1,0]" for n in (0, 2)]
            o += [f"v_pk_mul_f32 {vr(tm + n, 2)}, {vr(tm + n, 2)}, {vr(x + n, 2)}" for n in (0, 2)]
        else:
            o += [f"v_mul_f32 v{tm + n}, v{x + n}, v{x + n}" for n in range(4)]
            o += [f"v_fma_f32 v{tm + n}, v{tm + n}, v{C3}, v{C1}" for n in range(4)]
            o += [f"v_mul_f32 v{tm + n}, v{tm + n}, v{x + n}" for n in range(4)]
        o += [f"v_exp_f32 v{tm + n}, v{tm + n}" for n in range(4)]
        if pk:
            o += [f"v_pk_fma_f32 {vr(tm + n, 2)}, {vr(tm + n, 2)}, {vr(BE, 2)}, {vr(BE, 2)} op_sel_hi:[1,0,0]" for n in (0, 2)]
        else:
            o += [f"v_fma_f32 v{tm + n}, v{tm + n}, v{BE}, v{BE}" for n in range(4)]
        o += [f"v_rcp_f32 v{tm + n}, v{tm + n}" for n in range(4)]
        if pk:
            o += [f"v_pk_mul_f32 {vr(tm + n, 2)}, {vr(tm + n, 2)}, {vr(x + n, 2)}" for n in (0, 2)]
        else:
            o += [f"v_mul_f32 v{tm + n}, v{tm + n}, v{x + n}" for n in range(4)]
        o += [f"v_cvt_pk_bf16_f32 v{po + n}, v{tm + 2 * n}, v{tm + 2 * n + 1}" for n in range(2)]
        o = Is(*o)
        if grp & 1:
            x = I(f"buffer_store_dwordx4 {vr(po - 2, 4)}, {vL16}, {WS}, {sD0 if t < 2 else sD1} offen offset:{((2 * t + f) % 4) * 1024} {hfl}")
            stores.append(x); o.append(x)
        return o
    mq = [mm(2, s) for s in range(n2, 29)] + [mm(3, s) for s in range(29)]
    groups = [(t, g) for t in range(4) for g in range(4)]
    gi = 0
    cur = []
    for n, m in enumerate(mq):
        p(m)
        bud = 6
        if w2q and n % 2 == 0:
            bud -= cost(w2q[0]) + 1; p(w2q.pop(0))
        if n < 2: continue
        while bud > 0:
            if not cur:
                if n >= len(mq) - 3 or gi >= 8: break
                cur = gelu(*groups[gi], False); gi += 1
            if cost(cur[0]) > bud + (1 if bud == 6 else 0): break
            bud -= cost(cur[0]); p(cur.pop(0))
    p(cur)
    while gi < 16:
        g = gelu(*groups[gi], True); gi += 1
        p(g[:10])
        if w2q and gi < 16: p(w2q.pop(0))
        p(g[10:])
        if w2q and gi < 15: p(w2q.pop(0))
    k.w2q = w2q
    k.d_st = stores
    k.stamp("gelu")


def phase4(k):
    p = k.p
    HB, AC, RD, TB = 32, 160, 192, 240
    BS, GB = 128, 144
    NR = 24
    sW2 = k.sW2
    for b in range(3):
        p(f"s_add_u32 s62, {sWB}, {65536 * b}")
        for nt in range(4):
            p(f"v_add_u32 v{TB + 4 * b + nt}, s62, v{vT16[nt]}")
    lastrd = {}
    def wread(sg):
        base = W2SLOT[sg % 10]
        o = [I(f"ds_read_b64_tr_b16 {ar(16 * sg + 4 * nt + 2 * e, 2)}, v{TB + 4 * (base >> 16) + nt} offset:{(base & 0xffff) + e * 1024}")
             for nt in range(4) for e in range(2)]
        lastrd[sg] = o[-1]
        o[0] = [W(k.w2_ld[sg]), o[0]]
        return o
    rd = []
    for sg in range(10): rd += wread(sg)
    dq = list(k.w2q)
    for sg in range(10, 14):
        d = w2_dma(sg - 10, sW2)
        k.w2_ld[sg] = d[3][-1]
        d[0] = [W(lastrd[sg - 10])] + d[0]
        dq += d
    sM = [sU[0], sU[1], sU[2], sU[7]]
    vRW, vTW, vTR = "v18", "v19", "v20"
    vRR = ["v21", "v22", "v31"]
    pre = Is(f"s_mul_i32 s64, {sW}, 7", "s_lshr_b32 s64, s64, 1", f"v_and_b32 v29, 3, {vL}", "v_add_u32 v29, s64, v29",
             f"v_and_b32 v30, 4, {vL}", "v_lshl_add_u32 v29, v30, 2, v29",
             f"s_lshl_b32 s64, {sRB}, 8", f"s_lshl_b32 s63, {sMH}, 7", "s_add_u32 s64, s64, s63", f"s_add_u32 s64, s64, {WS_FD}",
             f"v_lshl_add_u32 {vPA}, v29, 2, s64",
             f"s_mul_i32 s64, {sMH}, {2 * QS}", f"s_add_u32 s64, s64, {sCL}", f"s_mul_i32 s63, {sW}, {28 * 1024}", "s_add_u32 s64, s64, s63")
    for rho in range(4):
        pre += Is(f"s_add_u32 s65, {sW}, {rho + 1}", "s_bfe_u32 s63, s65, 0x10001", f"s_mul_i32 s63, s63, {QS}", "s_and_b32 s65, s65, 1",
                  "s_lshl_b32 s65, s65, 8", "s_add_u32 s65, s65, s63", f"s_add_u32 {sM[rho]}, s65, s64")
    for c in range(16):
        pre += Is(f"v_accvgpr_read_b32 v{BS + c}, a{224 + c}", f"v_accvgpr_read_b32 v{GB + c}, a{240 + c}")
    post = Is(f"v_add_u32 {vRW}, {sWB}, {vL16}")
    for rho in range(3):
        post += Is(f"s_sub_u32 s62, {sW}, {rho + 1}", "s_and_b32 s62, s62, 3", "s_lshl_b32 s62, s62, 12", f"s_add_u32 s62, s62, {W2SLOT[4 + rho]}",
                   f"v_add_u32 {vRR[rho]}, s62, {vL16}")
    post2 = Is(f"s_add_u32 s62, {sWB}, {W2SLOT[7]}",
               f"v_and_b32 v29, 15, {vL}", "v_mul_u32_u24 v29, 144, v29", f"v_lshrrev_b32 v30, 4, {vL}", "v_lshl_add_u32 v29, v30, 3, v29", f"v_add_u32 {vTW}, s62, v29",
               f"v_lshrrev_b32 v29, 3, {vL}", "v_mul_u32_u24 v29, 144, v29", f"v_and_b32 v30, 7, {vL}", "v_lshl_add_u32 v29, v30, 4, v29", f"v_add_u32 {vTR}, s62, v29",
               f"s_add_u32 {sU[4]}, {sXROW}, 14336")
    p(rd[:8]); rd = rd[8:]
    rounds(p, k.o("d_r1", 5), dq, rd, pre, nr=5, nf=5)
    k.publish(k.d_st, k.sFD)
    k.stamp("dpub")
    rounds(p, len(dq), dq, rd, pre, nr=5, nf=5)
    p(rd); p(pre)
    k.stamp("w2pre")
    k.poll_flags()
    k.stamp("dpoll")
    hl, hq = [], []
    for rho in range(4):
        for sg in range(14):
            n = 14 * rho + sg
            x = I(f"buffer_load_dwordx4 {vr(HB + 4 * (n % NR), 4)}, {vF16}, {WS}, {sM[rho]} offen offset:{(sg & 1) * 2048} sc1")
            hl.append(x)
            hq.append([x, I(f"s_add_u32 {sM[rho]}, {sM[rho]}, 4096")] if sg & 1 and sg < 13 else [x])
    PRE = k.o("g4pre", 7)
    late = []
    for sg in range(10, 14): late += wread(sg)
    pq = hq[:PRE]
    rounds(p, PRE, pq, late, nr=5)
    p(late)
    fill = post
    p.wait(hl[0], lastrd[9])
    for n in range(56):
        rho, sg = divmod(n, 14)
        acc = AC + 16 * (rho & 1)
        if 'p4pass' in k.opt and sg == 0: k.stamp(f"pass{rho}")
        if sg == 2 and rho >= 1:
            pa = AC + 16 * ((rho - 1) & 1)
            fill.append(I(f"v_add_u32 v25, {W2SLOT[4 + rho - 1]}, {vRW}"))
            w_ = [I(f"ds_write_b128 v25, {vr(pa + 4 * c, 4)} offset:{c * 1024}") for c in range(4)]
            for x in w_: fill += [x, None]
            if rho == 1: fill += post2
            if rho >= 2:
                qs = (0, 1) if rho == 2 else (2,)
                fill.append([W(w_), I("s_barrier")])
                r_ = [I(f"ds_read_b128 {vr(RD + 16 * q + 4 * c, 4)}, {vRR[q]} offset:{c * 1024}") for q in qs for c in range(4)]
                fill += r_ + [None, None, W(r_)]
                for q in qs:
                    for c in range(0, 16, 2):
                        fill.append(Is(f"v_fmac_f32 v{BS + c}, v{RD + 16 * q + c}, v{GB + c}", f"v_fmac_f32 v{BS + c + 1}, v{RD + 16 * q + c + 1}, v{GB + c + 1}"))
        extra = None
        for nt in range(4):
            p(f"v_mfma_f32_16x16x32_bf16 {vr(acc + 4 * nt, 4)}, {ar(16 * sg + 4 * nt, 4)}, {vr(HB + 4 * (n % NR), 4)}, {'0' if sg == 0 else vr(acc + 4 * nt, 4)}")
            if nt == 0 and n + PRE < 56:
                p(hq[n + PRE][0]); extra = hq[n + PRE][1:]
            elif nt == 3:
                if n < 55: p.wait(hl[n + 1], lastrd[13] if n == 9 else None)
                if fill and not (isinstance(fill[0], Ent) and fill[0].kind == 'i' and fill[0].text.startswith("ds_write")): p(fill.pop(0))
            else:
                if extra: p(extra); extra = None
                if fill: p(fill.pop(0))
    p(fill)
    k.stamp("gemm4")
    acc = AC + 16
    wr = []
    for c in range(4):
        for n in (0, 2):
            p(f"v_pk_fma_f32 {vr(BS + 4 * c + n, 2)}, {vr(acc + 4 * c + n, 2)}, {vr(GB + 4 * c + n, 2)}, {vr(BS + 4 * c + n, 2)}")
        for n in range(2):
            p(f"v_cvt_pk_bf16_f32 v{RD + 2 * c + n}, v{BS + 4 * c + 2 * n}, v{BS + 4 * c + 2 * n + 1}")
        wr.append(p(f"ds_write_b64 {vTW}, {vr(RD + 2 * c, 2)} offset:{c * 32}"))
    r_ = [p(f"ds_read_b128 {vr(RD + 8 + 4 * u, 4)}, {vTR} offset:{u * 8 * 144}") for u in range(2)]
    for u in range(2):
        p.wait(r_[u])
        p(f"buffer_store_dwordx4 {vr(RD + 8 + 4 * u, 4)}, {vROW}, {OUT}, {sXROW if u == 0 else sU[4]} offen {k.opt.get('ofl', '')}")


def rest(k):
    p = k.p
    mark = len(p.e)
    p.push()
    phase2(k)
    phase3(k)
    phase4(k)
    k.finish()
    p.pop()
    p("L_IDLE:")
    p(";STUB")
    p.push()
    idle_path(k)
    p.pop()
```

```python
import sys, struct, math
from asmlib import Prog, I, W, Ent

NAME = "adaLN_cond__sliding_local_dilated__mixer_channel_mlp__prompt"

def fb(x):
    return "0x%08x" % struct.unpack("<I", struct.pack("<f", x))[0]

WS_XCC = 0x38000
WS_FH = 0x2000
WS_FO = 0x4000
WS_FA = 0x6000
WS_FD = 0x8000
WS_FE = 0xA000
WS_FH2 = 0xC000
WS_FW = 0x30000
WS_PK = 0xA80000
WS_MODP = 0x10000
WS_EXT = 0x20000
WS_GRAM = 0x2F000
WS_DBG = 0x40000
WS_CL = 0x100000
QS = 0x25000
CLS = 0x98000
Q_HID = 0
Q_O = 0
Q_A = 0x1C000
Q_H = 0x1C000
Q_ST = 0x23000
CL_HALO = 4 * QS
WS_SIZE = 0x1000000

L_WQ = 0
L_WO = 86016
L_MS = L_WO
L_MS2 = 5 * 12288
L_XS = L_WO + 16384
L_SC = L_WO + 32768
L_MT = L_WO + 33280
L_SP = 143872
L_VEC = L_SP
L_XT = L_SP + 2048
L_ET = L_SP + 10240
L_HP = 0
L_KX = 16384
L_VX = 28672
L_W1B = 0
L_W1A = 57344
W2SLOT = [0, 16384, 32768, 114688, 131072, 147456, 49152, 65536, 81920, 98304]

X, WQ, WO, W1, W2, WM, OUT, WS = ("s[4:7]", "s[8:11]", "s[12:15]", "s[16:19]", "s[20:23]", "s[24:27]", "s[28:31]", "s[32:35]")
sTAG, sFH = "s40", "s41"
sRB, sJ, sW, sH, sN, sFAST, sCL, sHD, sXCC, sMH, sNT = ("s42", "s43", "s44", "s45", "s46", "s47", "s48", "s49", "s50", "s51", "s52")
sCNT = "s53"
sWB = "s54"
sJ2 = "s55"
STR = "s[56:59]"
sPIT = "s60"
sMO = "s61"
sHOFF = ["s%d" % i for i in range(70, 77)]
sWOFF = ["s%d" % i for i in range(77, 84)]
sQ = "s84"
sQ2 = "s85"
sXROW = "s86"
sSTR = "s87"
sWL = "s88"
sW14 = "s89"
sU = ["s%d" % i for i in range(90, 98)]
STAMP0 = 100

vL, vTID, vL16, vN = "v0", "v1", "v2", "v3"
vSA = [4, 5, 6, 7]
vSB = [8, 9, 10, 11]
vT16 = [12, 13, 14, 15]
vT32 = [16, 17]
vFW, vWT = "v18", "v19"
vTq = [21, 22]
vPA, vPD, vPX, vDUM = "v23", "v24", "v25", "v26"
vF16 = "v27"
vROW = "v28"
vt = [29, 30, 31]
AQ, AK, AV, AH, WB1, HB1, SC, SP = 32, 48, 64, 80, 96, 132, 164, 180
QF, KF, VF, KP, VP, PF, PP = 196, 204, 212, 220, 228, 232, 240
vH, vHH, vTH, vTH2, vHX, vMK, vKA, vVA, vONE, vHW, vHR = ["v%d" % i for i in range(244, 255)]
TG = [SP, SP + 1, SP + 2, SP + 3]
vPH, vTO = ["v%d" % (SP + 4 + i) for i in range(2)]
vB2A = "v20"
VG, vVG = 148, "v31"

POLL_LIMIT = 40000

def vr(b, n=1):
    return f"v{b}" if n == 1 else f"v[{b}:{b + n - 1}]"
def ar(b, n=1):
    return f"a{b}" if n == 1 else f"a[{b}:{b + n - 1}]"
def Is(*ts):
    return [I(t) for t in ts]

def cost(e):
    if isinstance(e, (list, tuple)): return sum(cost(x) for x in e)
    if e is None: return 1
    if e.kind == 'w': return 1
    if e.kind != 'i': return 0
    op = e.text.split()[0]
    if op.startswith(("buffer_", "global_")): return 3
    if op == "ds_write_b128": return 6
    if op.startswith("ds_write"): return 3
    if op.startswith(("v_exp", "v_rcp", "v_rsq", "v_sqrt")): return 2
    if op.startswith("s_cbranch"): return 3
    if op == "s_barrier": return 2
    return 1

def take(p, q, budget, force=False):
    while q and (cost(q[0]) <= budget or force):
        e = q.pop(0)
        budget -= cost(e)
        force = False
        p(e)
    return budget


class K:
    def __init__(self, stop=99, stamps=False, force_slow=False, opt=()):
        self.opt = {}
        for o in opt:
            k, _, v = o.partition("=")
            self.opt[k] = v
        self.p = Prog()
        self.ool = []
        self.stop = stop
        self.stamps = stamps
        self.stamp_names = []
        self.force_slow = force_slow

    def o(self, name, default):
        return int(self.opt[name]) if name in self.opt else default

    def stamp(self, name):
        p = self.p
        if ("sc_" + name) in self.opt:
            p.wait(p("s_memrealtime s[98:99]"))
        if not self.stamps: return
        if "only" in self.opt and name not in self.opt["only"].split("+"): return
        if name.startswith("x_") and "only" not in self.opt: return
        if name not in self.stamp_names: self.stamp_names.append(name)
        p.wait(p(f"s_memtime s[{STAMP0}:{STAMP0 + 1}]"))
        p(f"v_writelane_b32 v255, s{STAMP0}, {self.stamp_names.index(name)}")

    def cond(self, cmp_text, skip_if_scc):
        p = self.p
        lab = p.label("SK")
        p(cmp_text)
        p(f"s_cbranch_scc{skip_if_scc} {lab}")
        p.push()
        return lab
    def endcond(self, lab):
        self.p.pop()
        self.p(lab + ":")

    def poll(self, loads, check):
        p = self.p
        lab = p.label("PL")
        p(f"s_mov_b32 {sCNT}, {POLL_LIMIT}")
        p(lab + ":")
        for l in loads: p(l)
        p(f"s_sub_u32 {sCNT}, {sCNT}, 1")
        p("s_cbranch_scc1 L_END")
        p.waitall(vm=True, lk=False)
        for c in check: p(c)
        p("s_cmp_eq_u64 vcc, -1")
        p(f"s_cbranch_scc0 {lab}")

    def recheck(self, loads, check):
        p = self.p
        a, b = p.label("RC"), p.label("RB")
        body = "".join("    " + l + "\n" for l in loads) + "    s_waitcnt vmcnt(0)\n" + "".join("    " + c + "\n" for c in check)
        self.ool.append(f"{a}:\n    s_mov_b32 {sCNT}, {POLL_LIMIT}\n{a}_l:\n{body}    s_nop 1\n    s_cmp_eq_u64 vcc, -1\n    s_cbranch_scc1 {b}\n"
                        f"    s_sub_u32 {sCNT}, {sCNT}, 1\n    s_cbranch_scc0 {a}_l\n    s_endpgm\n")
        return Is(*check[:-1]) + [[I(check[-1]), I("s_cmp_eq_u64 vcc, -1"), I(f"s_cbranch_scc0 {a}"), Ent('l', b + ":")]]

    def slow_poll(self, name, addr, soff, done):
        return f"""    s_mov_b32 {sCNT}, {POLL_LIMIT}
{name}_l:
    buffer_load_dword {vPD}, {addr}, {WS}, {soff} offen sc1
    s_sub_u32 {sCNT}, {sCNT}, 1
    s_cbranch_scc1 L_END
    s_waitcnt vmcnt(0)
    v_cmp_eq_u32 vcc, {sN}, {vPD}
    s_nop 1
    s_cmp_eq_u32 vcc_lo, -1
    s_cbranch_scc0 {name}_l
    buffer_inv sc1
    s_waitcnt vmcnt(0)
    s_branch {done}
"""

    def poll_flags(self):
        p = self.p
        slow, done = p.label("SP"), p.label("PD")
        p(f"s_cmp_eq_u32 {sFAST}, 0")
        p(f"s_cbranch_scc1 {slow}")
        self.poll([f"buffer_load_dword {vPD}, {vPA}, {WS}, 0 offen sc1"], [f"v_cmp_eq_u32 vcc, {sN}, {vPD}"])
        p(done + ":")
        self.ool.append(f"{slow}:\n" + self.slow_poll(slow, vPA, "0", done))

    def poll_h(self):
        p = self.p
        lab, done, again, nop, slow = p.label("PL"), p.label("PD"), p.label("PA"), p.label("HN"), p.label("HS")
        p(f"s_mov_b32 {sCNT}, {POLL_LIMIT}")
        p(f"s_mov_b32 {sFAST}, 1")
        p(f"s_branch {lab}")
        p(again + ":")
        p(f"v_xor_b32 {vPD}, {sN}, {vPD}")
        p(f"v_cmp_gt_u32 s[62:63], 8, {vPD}")
        p("s_andn2_b32 s63, s63, vcc_hi")
        p(f"s_cbranch_scc1 {slow}")
        p(lab + ":")
        p(f"buffer_load_dword {vPD}, {vPH}, {WS}, 0 offen sc1")
        p(f"s_sub_u32 {sCNT}, {sCNT}, 1")
        p("s_cbranch_scc1 L_END")
        p.waitall(vm=True, lk=False)
        p(f"v_cmp_eq_u32 vcc, {vPD}, {vPX}")
        if self.force_slow:
            p("s_nop 1"); p("s_mov_b32 vcc_hi, 0")
        p("s_cmp_eq_u64 vcc, -1")
        p(f"s_cbranch_scc0 {again}")
        p(done + ":")
        self.ool.append(f"""{slow}:
    s_mov_b32 {sFAST}, 0
    s_cmp_lt_u32 {sJ}, 9
    s_cbranch_scc0 {nop}
    buffer_wbl2 sc1
    s_add_u32 s62, {sFH}, {WS_FH2 - WS_FH}
    s_waitcnt vmcnt(0)
    s_mov_b64 exec, 1
    buffer_store_dword {vN}, off, {WS}, s62 sc1
    s_mov_b64 exec, -1
{nop}:
    s_mov_b32 s62, {WS_FH2 - WS_FH}
""" + self.slow_poll(slow, vPH, "s62", done))

    def flag(self, stores, sflag, fl="", val=vN):
        p = self.p
        p("s_mov_b64 exec, 1")
        if stores: p.wait(stores)
        e = p(f"buffer_store_dword {val}, off, {WS}, {sflag} {fl}")
        p("s_mov_b64 exec, -1")
        return e

    def publish(self, stores, sflag):
        p = self.p
        a, b = p.label("PS"), p.label("PR")
        p(f"s_cmp_eq_u32 {sFAST}, 0")
        p(f"s_cbranch_scc1 {a}")
        e = self.flag(stores, sflag)
        p(b + ":")
        self.ool.append(f"{a}:\n    s_waitcnt vmcnt(0)\n    buffer_wbl2 sc1\n    s_waitcnt vmcnt(0)\n"
                        f"    s_mov_b64 exec, 1\n    buffer_store_dword {vN}, off, {WS}, {sflag} sc1\n    s_mov_b64 exec, -1\n    s_branch {b}\n")
        return e

    def strip_voff(self, dst, pitch, sw):
        o = [f"v_lshrrev_b32 v{dst[1]}, 3, {vL}"]
        if isinstance(pitch, int):
            o += [f"v_mul_u32_u24 v{dst[0]}, {pitch}, v{dst[1]}", f"v_add_u32 v{dst[0]}, v{dst[0]}, v{sw}"]
            o += [f"v_add_u32 v{dst[e]}, {e * (8 * pitch - 1024)}, v{dst[0]}" for e in (1, 2, 3)]
        else:
            o += [f"v_mad_u32_u24 v{dst[0]}, v{dst[1]}, {pitch}, v{sw}", f"s_lshl_b32 s62, {pitch}, 3", "s_sub_u32 s62, s62, 1024"]
            o += [f"v_add_u32 v{dst[e]}, s62, v{dst[e - 1]}" for e in (1, 2, 3)]
        return o

    def wq_group(self, G):
        out = []
        for e in range(3):
            x = I(f"buffer_load_dwordx4 {vL16}, {WS}, {sWOFF[G]} offen offset:{e * 1024} sc1 lds")
            out.append([I(f"s_add_u32 m0, {sWL}, {L_WQ + G * 12288}"), x] if e == 0 else [x])
        return out

    def strip_dma(self, srd, voff, soff, pitch, ldsbase_s, ldsimm):
        out = []
        for n in range(14):
            g = []
            if n % 4 == 0:
                if n: g.append(I(f"s_add_u32 {soff}, {soff}, {pitch}"))
                g.insert(0, I(f"s_add_u32 m0, {ldsbase_s}, {ldsimm + (n // 4) * 4096}"))
            g.append(I(f"buffer_load_dwordx4 v{voff[n % 4]}, {srd}, {soff} offen offset:{(n % 4) * 1024} lds"))
            out.append(g)
        return out

    def tagcheck(self, regs, t):
        out = []
        if len(regs) == 1:
            r = regs[0]
            out += [f"v_xor_b32 v{t + n}, v{r + n}, v{TG[n]}" for n in range(4)]
            out += [f"v_or3_b32 v{t}, v{t}, v{t + 1}, v{t + 2}", f"v_or_b32 v{t}, v{t}, v{t + 3}"]
        else:
            for n in range(4):
                out.append(f"v_bitop3_b32 v{t + n}, v{regs[0] + n}, v{regs[1] + n}, v{TG[n]} bitop3:0x7e")
                out.append(f"v_bitop3_b32 v{t + 4 + n}, v{regs[2] + n}, v{regs[3] + n}, v{TG[n]} bitop3:0x7e")
            out += [f"v_or3_b32 v{t}, v{t}, v{t + 1}, v{t + 2}", f"v_or3_b32 v{t + 3}, v{t + 3}, v{t + 4}, v{t + 5}",
                    f"v_or3_b32 v{t}, v{t}, v{t + 6}, v{t + 7}", f"v_or_b32 v{t}, v{t}, v{t + 3}"]
        out += [f"v_and_b32 v{t}, 0xff, v{t}", f"v_cmp_eq_u32 vcc, 0, v{t}"]
        return out

    def round4(self, r, t, unpack=True):
        o = [f"v_cvt_pk_bf16_f32 v{t}, v{r}, v{r + 1}", f"v_cvt_pk_bf16_f32 v{t + 1}, v{r + 2}, v{r + 3}"]
        if unpack:
            o += [f"v_lshlrev_b32 v{r}, 16, v{t}", f"v_and_b32 v{r + 1}, 0xffff0000, v{t}",
                  f"v_lshlrev_b32 v{r + 2}, 16, v{t + 1}", f"v_and_b32 v{r + 3}, 0xffff0000, v{t + 1}"]
        return o

    def gather_pre(self, col0, one):
        o = [f"v_min_u32 {vPA}, 223, {vTID}", f"v_lshlrev_b32 {vPA}, 4, {vPA}", f"v_cmp_le_u32 vcc, 112, {vTID}"]
        o += [f"s_mov_b32 s{66 + kq}, {WS_MODP + kq * 10752 + col0 * 4}" for kq in range(4)]
        o += [f"v_cndmask_b32 v{one}, 0, 1.0, vcc"]
        o += [f"v_bfe_u32 v{TG[r]}, {vN}, {8 * r}, 8" for r in range(4)]
        return o

    def gather896(self, R, one, extra, unpack):
        p = self.p
        loads = [f"buffer_load_dwordx4 {vr(R + 4 * kq, 4)}, {vPA}, {WS}, s{66 + kq} offen sc1" for kq in range(4)]
        self.poll(loads, self.tagcheck([R + 4 * kq for kq in range(4)], R + 16))
        if unpack: self.stamp("modpoll")
        if extra: p(extra.pop(0))
        for n in range(16):
            p(f"v_and_b32 v{R + n}, 0xffffff00, v{R + n}")
        if extra: p(extra.pop(0))
        for n in range(0, 8, 2):
            p(f"v_pk_add_f32 {vr(R + n, 2)}, {vr(R + n, 2)}, {vr(R + 8 + n, 2)}")
        for n in range(0, 4, 2):
            p(f"v_pk_add_f32 {vr(R + n, 2)}, {vr(R + n, 2)}, {vr(R + 4 + n, 2)}")
        p(self.round4(R, R + 16))
        for n in (0, 2):
            p(f"v_pk_add_f32 {vr(R + n, 2)}, {vr(R + n, 2)}, {vr(one, 2)} op_sel_hi:[1,0]")
        p(self.round4(R, R + 16, unpack))

    def head(self):
        p = self.p
        ld = [p("s_load_dwordx16 s[72:87], s[0:1], 0"),
              p("s_load_dwordx8 s[88:95], s[0:1], 64"),
              p("s_load_dwordx2 s[32:33], s[0:1], 96")]
        if self.stamps:
            p("v_mov_b32 v255, 0")
            ld.append(p("s_memrealtime s[98:99]"))
            ld.append(p("s_memtime s[100:101]"))
        if any(o.startswith("sc_") for o in self.opt):
            ld.append(p("s_memrealtime s[98:99]"))
        p("s_cmp_ge_u32 s2, 256")
        p("s_cbranch_scc1 L_END")
        p("s_getpc_b64 s[62:63]")
        p("L_PC:")
        p(f"v_and_b32 v{vt[1]}, 15, v0")
        p("s_lshr_b32 s64, s2, 3")
        p(f"v_lshl_add_u32 v{vt[1]}, s64, 4, v{vt[1]}")
        p(f"v_lshlrev_b32 v{vt[1]}, 7, v{vt[1]}")
        p(f"v_min_u32 v{vt[1]}, L_END-L_PC, v{vt[1]}")
        p("s_mov_b64 exec, 0xffff")
        p(f"global_load_dword {vDUM}, v{vt[1]}, s[62:63]")
        p("s_mov_b64 exec, -1")
        p(f"v_mov_b32 {vTID}, v0")
        p(f"v_lshrrev_b32 v{vt[0]}, 6, v0")
        p(f"v_and_b32 {vL}, 63, v0")
        p(f"v_readfirstlane_b32 {sW}, v{vt[0]}")
        for reg, size in ((4, 1835008), (8, 1204224), (12, 401408), (16, 1605632), (20, 1605632), (24, 2408448), (28, 1835008), (32, WS_SIZE)):
            p(f"s_mov_b32 s{reg + 2}, {size}")
            p(f"s_mov_b32 s{reg + 3}, 0x20000")
        p(f"s_and_b32 {sRB}, s2, 15")
        p(f"s_lshr_b32 {sJ}, s2, 4")
        p(f"s_mul_i32 {sCL}, {sRB}, {CLS}")
        p(f"s_add_u32 {sCL}, {sCL}, {WS_CL}")
        p(f"s_lshl_b32 {sWB}, {sW}, 12")
        p(f"v_lshlrev_b32 {vL16}, 4, {vL}")
        a, b, c = vt
        p(f"v_lshrrev_b32 v{a}, 3, {vL}")
        p(f"v_and_b32 v{b}, 2, v{a}")
        p(f"v_lshrrev_b32 v{a}, 2, v{a}")
        p(f"v_or_b32 v{b}, v{b}, v{a}")
        p(f"v_and_b32 v{a}, 7, {vL}")
        p(f"v_lshlrev_b32 v{b}, 1, v{b}")
        p(f"v_xor_b32 v{b}, v{b}, v{a}")
        p(f"v_lshlrev_b32 v{c}, 4, v{b}")
        p(self.strip_voff(vSB, 5376, c))
        p("s_sub_u32 s3, s2, 144")
        p("s_and_b32 s62, s3, 3")
        p("s_lshr_b32 s63, s3, 2")
        p("s_mul_i32 s64, s62, 112")
        p(f"s_lshl_b32 s65, {sW}, 5")
        p("s_add_u32 s65, s65, s64")
        p("s_mul_i32 s65, s65, 5376")
        p("s_lshl_b32 s66, s63, 7")
        p("s_add_u32 s65, s65, s66")
        p(f"v_min_u32 v{a}, 55, {vL}")
        p("s_lshl_b32 s64, s64, 1")
        p(f"v_lshl_add_u32 v{a}, v{a}, 2, s64")
        p(f"s_mul_i32 s66, {sW}, {CLS - QS}")
        p(f"s_add_u32 s66, s66, {sCL}")
        p(f"s_add_u32 s66, s66, {QS - 4}")
        p(f"s_cmp_ge_u32 {sW}, 2")
        p(f"s_cselect_b32 s66, {WS_PK - 4}, s66")
        p(f"v_mov_b32 v{b}, 0")
        p(f"s_lshl_b32 m0, {sW}, 1")
        p.wait(ld)
        p("s_movrels_b64 s[62:63], s[88:89]")
        p("s_movrels_b64 s[68:69], s[72:73]")
        p("s_movrels_b64 s[70:71], s[80:81]")
        p("s_mov_b64 s[24:25], s[90:91]")
        p("s_mov_b64 exec, 1")
        tm = self.o("tmask", 1)
        order = self.opt.get("torder", "01234")
        tt = [f"buffer_load_dword {vN}, off, {WS}, 0", f"global_load_dword {vDUM}, v{b}, s[68:69]", f"buffer_load_dword {vDUM}, off, {WS}, s66",
              f"global_load_dword {vDUM}, v{b}, s[62:63]", f"global_load_dword {vDUM}, v{b}, s[70:71]"]
        for c_ in order:
            n = int(c_)
            if tm >> n & 1:
                e = p(tt[n])
                if n == 0: self.nonce = e
        p("s_mov_b64 exec, -1")
        if self.stamps:
            p("v_writelane_b32 v255, s98, 60")
            p("v_writelane_b32 v255, s100, 61")
        self.stamp("x_touch")
        if "tlbtest" in self.opt:
            for n in range(6, -1, -1):
                p(f"s_waitcnt vmcnt({n})"); self.stamp(f"x_t{n}")


    def set_ptrs(self):
        return [f"s_mov_b64 s[{d}:{d + 1}], s[{r}:{r + 1}]" for d, r in ((4, 72), (8, 74), (12, 76), (16, 80), (36, 82), (20, 84), (38, 86), (28, 92))]

    def c_issue(self):
        self.c_ld = self.p(f"global_load_dword v32, v{vt[0]}, s[88:89]")

    def job_issue(self, second):
        p = self.p
        p(f"s_add_u32 m0, {sWB}, {L_MS2 if second else L_MS}")
        if second: p(f"s_add_u32 s65, s65, {14 * 128}")
        return [p(f"buffer_load_dwordx4 v{vSB[e]}, {WM}, s65 offen offset:{e * 1024} lds") for e in range(4)]

    def x_issue(self):
        p = self.p
        p([f"s_lshr_b32 s66, {sJ}, 2", "s_lshl_b32 s66, s66, 6", f"s_bfe_u32 s67, {sJ}, 0x10001", "s_add_u32 s66, s66, s67",
           f"s_and_b32 s67, {sJ}, 1", "s_lshl_b32 s67, s67, 5", "s_add_u32 s66, s66, s67", f"s_lshl_b32 s67, {sW}, 3", "s_add_u32 s66, s66, s67",
           f"s_and_b32 s67, {sW}, 1", "s_lshl_b32 s67, s67, 3", f"s_lshr_b32 s68, {sW}, 1", "s_add_u32 s67, s67, s68",
           f"s_cmp_eq_u32 {sRB}, 0", "s_cselect_b32 s68, 0, 16", "s_sub_u32 s67, s67, s68",
           f"s_cmp_eq_u32 {sJ}, 8", "s_cselect_b32 s66, s67, s66", f"s_lshl_b32 s67, {sRB}, 7", "s_add_u32 s66, s66, s67",
           "s_mul_i32 s66, s66, 896", f"s_add_u32 m0, {sWB}, {L_XS}", "s_mov_b32 exec_hi, 0x00ffffff"])
        self.xs_ld = []
        for r in range(4):
            self.xs_ld.append(p(f"buffer_load_dwordx4 {vL16}, {X}, s66 offen offset:{r * 1024} lds"))
            if r < 3: p("s_add_u32 s66, s66, 768")
        p("s_mov_b32 exec_hi, -1")

    def setup_w(self):
        o = [f"s_sub_u32 s62, 15, {sJ}", f"s_sub_u32 s63, {sJ}, 7", "s_cmp_lt_u32 s63, 2", "s_cselect_b32 s63, 2048, 0",
             f"s_cmp_lt_u32 {sRB}, 8", f"s_cselect_b32 {sH}, {sJ}, s62", f"s_cselect_b32 {sHOFF[0]}, 0, s63",
             f"s_mul_i32 {sWL}, {sW}, 3072", f"s_mul_i32 s62, {sH}, 86016", f"s_add_u32 s62, s62, {sWL}", f"s_add_u32 s62, s62, {WS_PK}"]
        for G in range(7):
            o += [f"s_mul_i32 {sWOFF[G]}, {sHOFF[G]}, 24", f"s_add_u32 {sWOFF[G]}, {sWOFF[G]}, s62"]
            if G < 6:
                o += [f"s_add_u32 {sHOFF[G + 1]}, {sHOFF[G]}, 512", f"s_cmp_eq_u32 {sHOFF[G + 1]}, 3584", f"s_cselect_b32 {sHOFF[G + 1]}, 0, {sHOFF[G + 1]}"]
        o += [f"v_min_u32 v33, 13, {vL}", "v_lshrrev_b32 v34, 1, v33", "v_mad_u32_u24 v33, v34, 6, v33", "v_mul_u32_u24 v33, 1536, v33",
              f"s_add_u32 s62, s62, {23 * 64 + 60}", f"v_add_u32 {vFW}, s62, v33",
              f"v_min_u32 v33, 47, {vL}", f"s_add_u32 s62, {sWL}, 60", f"v_lshl_add_u32 {vWT}, v33, 6, s62"]
        return o

    def wflag(self, R):
        return f"buffer_load_dword v{R}, {vFW}, {WS}, 0 offen sc1", [f"v_cmp_eq_u32 vcc, {sTAG}, v{R}"]

    def wverify(self, groups, R):
        p = self.p
        base = vWT
        pre = []
        if groups[-1] * 12288 > 65535:
            pre = [f"v_add_u32 v{R + 7}, {groups[0] * 12288}, {vWT}"]; base = f"v{R + 7}"
        rds = [f"ds_read_b32 v{R + n}, {base} offset:{(G - (groups[0] if pre else 0)) * 12288}" for n, G in enumerate(groups)]
        chk = []
        for n in range(0, len(groups) - 1, 2):
            chk.append(f"v_bitop3_b32 v{R + n}, v{R + n}, v{R + n + 1}, {sTAG} bitop3:0x7e")
        if len(groups) == 5:
            chk += [f"v_xor_b32 v{R + 4}, {sTAG}, v{R + 4}", f"v_or3_b32 v{R}, v{R}, v{R + 2}, v{R + 4}"]
        chk.append(f"v_cmp_eq_u32 vcc, 0, v{R}")
        again = []
        for G in groups:
            for it in self.wq_group(G):
                for x in it: again += [x.text] + (["s_nop 0"] if "m0" in x.text else [])
        r = Is(*rds)
        a, b = p.label("WV"), p.label("WR")
        body = "".join("    " + l + "\n" for l in again + ["s_waitcnt vmcnt(0)"] + rds + ["s_waitcnt lgkmcnt(0)"] + chk)
        self.ool.append(f"{a}:\n    s_mov_b32 {sCNT}, {POLL_LIMIT}\n{a}_l:\n{body}    s_nop 1\n    s_cmp_eq_u64 vcc, -1\n    s_cbranch_scc1 {b}\n"
                        f"    s_sub_u32 {sCNT}, {sCNT}, 1\n    s_cbranch_scc0 {a}_l\n    s_endpgm\n")
        return Is(*pre) + r, [W(r)] + Is(*chk) + [I("s_cmp_eq_u64 vcc, -1"), I(f"s_cbranch_scc0 {a}"), Ent('l', b + ":")]

    def pack_issue(self):
        p = self.p
        p(["s_sub_u32 s62, s2, 200", "s_lshl_b32 s63, s62, 2", f"s_add_u32 s63, s63, {sW}", "s_mul_i32 s64, s63, 5376",
           f"v_lshrrev_b32 v33, 3, {vL}", f"v_bfe_u32 v34, {vL}, 2, 1", f"v_and_b32 v35, 3, {vL}", "v_mul_u32_u24 v36, 56, v33",
           "v_mul_u32_u24 v34, 896, v34", "v_lshl_add_u32 v36, v35, 4, v36", "v_add_u32 v36, v36, v34"])
        self.pk_ld = [p(f"buffer_load_dwordx4 {vr(40 + 4 * n, 4)}, v36, {WQ}, s64 offen offset:{(n >> 1) * 1792 + (n & 1) * 448}") for n in range(6)]
        p(["s_mul_i32 s63, s63, 384", f"s_add_u32 s68, s63, {WS_PK}", f"s_add_u32 s69, s68, {8 * 86016}"])

    def pack_store(self):
        p = self.p
        p([f"v_lshrrev_b32 v33, 3, {vL}", "v_mul_u32_u24 v64, 86016, v33", f"v_and_b32 v35, 7, {vL}", "v_lshl_add_u32 v64, v35, 4, v64"])
        p([f"v_and_b32 v35, 3, {vL}", "v_cmp_eq_u32 vcc, 3, v35"])
        self.nonce_use()
        p(f"v_mov_b32 v65, {sTAG}")
        st = []
        for n in range(6):
            p.wait(self.pk_ld[n])
            p(f"v_cndmask_b32 v{43 + 4 * n}, v{43 + 4 * n}, v65, vcc")
            st.append(p(f"buffer_store_dwordx4 {vr(40 + 4 * n, 4)}, v64, {WS}, s{68 + (n & 1)} offen offset:{(n >> 1) * 128} sc1"))
        return st

    def setup_t16(self):
        o = [f"v_lshrrev_b32 v33, 4, {vL}", f"v_bfe_u32 v34, {vL}, 2, 2", f"v_and_b32 v35, 3, {vL}", "v_lshlrev_b32 v35, 3, v35",
             "v_lshl_add_u32 v35, v34, 7, v35",
             "v_and_b32 v34, 2, v34", "v_and_b32 v36, 1, v33", "v_lshrrev_b32 v37, 1, v33",
             "v_lshl_add_u32 v38, v37, 11, v35", "v_lshl_add_u32 v38, v36, 9, v38", "v_or_b32 v39, v34, v36",
             f"v_lshl_add_u32 v{vT16[0]}, v39, 5, v38"]
        o += [f"v_xor_b32 v{vT16[nt]}, {32 * nt}, v{vT16[0]}" for nt in (1, 2, 3)]
        o += ["v_lshl_add_u32 v38, v37, 9, v35", "v_or_b32 v39, v34, v37", "v_xor_b32 v39, v39, v36",
              f"v_lshl_add_u32 v{vT32[0]}, v39, 5, v38", f"v_xor_b32 v{vT32[1]}, 64, v{vT32[0]}"]
        return o

    def setup_job(self):
        return [f"s_lshl_b32 s62, {sW}, 5", f"v_xor_b32 v140, s62, v{vT16[0]}", f"v_add_u32 v140, {L_MS2}, v140",
                f"v_lshrrev_b32 v141, 5, {vL}", f"v_bfe_u32 v142, {vL}, 4, 1", "v_lshlrev_b32 v141, 5, v141", "v_lshl_add_u32 v141, v142, 3, v141",
                f"v_add_u32 v141, {L_SC}, v141", f"v_lshlrev_b32 v142, 2, {vL}", f"v_add_u32 v143, {L_SC}, v142",
                "s_and_b32 s62, s3, 3", "s_mul_i32 s62, s62, 10752", "s_lshr_b32 s63, s3, 2", "s_lshl_b32 s63, s63, 8", "s_add_u32 s62, s62, s63",
                f"s_lshl_b32 s63, {sW}, 6", "s_add_u32 s62, s62, s63", f"s_add_u32 {sMO}, s62, {WS_MODP}"]

    def setup_h(self):
        return [f"s_lshr_b32 s62, {sJ}, 1", f"s_mul_i32 s62, s62, {QS}", f"s_and_b32 s63, {sJ}, 1", "s_lshl_b32 s63, s63, 2",
                f"s_add_u32 s63, s63, {sW}", "s_mul_i32 s63, s63, 3584", "s_add_u32 s62, s62, s63", f"s_cmp_eq_u32 {sJ}, 8",
                f"s_cselect_b32 s63, 0, {Q_H}", "s_add_u32 s62, s62, s63", f"s_add_u32 {sHD}, s62, {sCL}",
                f"s_lshl_b32 s63, {sRB}, 8", f"s_lshl_b32 s64, {sJ}, 4", "s_add_u32 s63, s63, s64", f"s_lshl_b32 s64, {sW}, 2",
                "s_add_u32 s63, s63, s64", f"s_add_u32 {sFH}, s63, {WS_FH}",
                f"v_min_u32 v163, 27, {vL}", "v_lshlrev_b32 v163, 7, v163",
                f"v_and_b32 v160, 3, {vL}", f"v_lshrrev_b32 v161, 2, {vL}", "v_lshlrev_b32 v160, 10, v160", "v_lshl_add_u32 v160, v161, 4, v160",
                f"s_add_u32 s62, {sWB}, {L_XS}", "v_add_u32 v160, s62, v160",
                "v_lshlrev_b32 v161, 5, v161", f"v_add_u32 v161, {L_MT}, v161",
                f"v_lshlrev_b32 v162, 4, {vTID}", f"v_add_u32 v162, {L_MT}, v162"]

    def setup_p1(self):
        o = [f"s_mul_i32 {sQ}, {sW}, {QS}", f"s_add_u32 {sQ}, {sQ}, {sCL}",
             f"v_lshrrev_b32 v33, 4, {vL}", f"v_bfe_u32 v34, {vL}, 2, 2", f"v_and_b32 v35, 3, {vL}", f"v_lshrrev_b32 v36, 5, {vL}",
             f"v_and_b32 v37, 15, {vL}",
             "v_lshl_add_u32 v38, v36, 3, v34", "v_mul_u32_u24 v38, 192, v38", "v_and_b32 v39, 1, v33", "v_lshl_add_u32 v38, v39, 5, v38",
             f"v_lshl_add_u32 v{vTq[0]}, v35, 3, v38", f"v_add_u32 v{vTq[1]}, 43008, v{vTq[0]}",
             f"v_bfe_u32 v38, {vL}, 2, 3", "v_mul_u32_u24 v38, 3584, v38", "v_lshl_add_u32 v38, v36, 6, v38", "v_lshl_add_u32 v38, v35, 4, v38",
             f"s_add_u32 s62, {sQ}, {Q_H}", f"v_add_u32 {vH}, s62, v38",
             "v_mul_u32_u24 v38, 3584, v34", "v_lshl_add_u32 v38, v33, 6, v38", "v_lshl_add_u32 v38, v35, 4, v38",
             f"s_and_b32 s63, {sW}, 1", "s_lshl_b32 s64, s63, 8", f"s_add_u32 s62, {sCL}, s64", f"s_add_u32 s62, s62, {CL_HALO}",
             f"v_add_u32 {vHH}, s62, v38",
             "v_lshl_add_u32 v38, v33, 3, v34", "v_mul_u32_u24 v38, 192, v38", "v_lshl_add_u32 v38, v35, 3, v38",
             f"s_mul_i32 s62, {sW}, 6144", f"v_add_u32 {vTH}, s62, v38",
             "s_mul_i32 s62, s63, 6144", f"s_add_u32 s62, s62, {12 * 6144}", f"v_add_u32 {vTH2}, s62, v38",
             "v_lshrrev_b32 v38, 3, v37", "v_lshlrev_b32 v38, 11, v38", "v_and_b32 v34, 7, v37", "v_lshl_add_u32 v38, v34, 4, v38",
             "v_lshl_add_u32 v38, v39, 9, v38", "v_lshl_add_u32 v38, v36, 3, v38",
             "s_lshl_b32 s62, s63, 10", f"s_add_u32 s62, s62, {L_KX + 24 * 16}", "v_add_u32 v38, s62, v38",
             "v_lshlrev_b32 v34, 8, v33", "v_lshl_add_u32 v34, v37, 3, v34",
             "s_lshl_b32 s62, s63, 7", f"s_add_u32 s62, s62, {L_VX}", "v_add_u32 v34, s62, v34",
             f"s_cmp_lt_u32 {sW}, 2", "s_cselect_b64 vcc, -1, 0",
             f"s_cselect_b32 {sU[0]}, {sHOFF[0]}, {sHOFF[1]}", f"s_cselect_b32 {sU[1]}, {sHOFF[2]}, {sHOFF[3]}",
             f"s_cselect_b32 {sU[2]}, {sHOFF[4]}, {sHOFF[5]}", f"s_cselect_b32 {sU[3]}, {sHOFF[6]}, {WS_SIZE}",
             f"v_cndmask_b32 {vHX}, v34, v38, vcc",
             "v_min_u32 v38, 11, v37", f"s_lshl_b32 s62, {sW}, 3", "v_add_u32 v34, s62, v38", "v_cmp_gt_u32 vcc, 8, v38", "v_add_u32 v38, 24, v38",
             f"s_lshl_b32 s62, {sRB}, 8", f"s_add_u32 s62, s62, {WS_FH}",
             "v_cndmask_b32 v34, v38, v34, vcc", "v_lshl_add_u32 v34, v34, 2, s62", f"v_cmp_gt_u32 vcc, 32, {vL}",
             f"s_lshl_b32 s62, {sRB}, 11", f"s_add_u32 s62, s62, {WS_XCC}", "v_lshl_add_u32 v38, v37, 7, s62",
             f"v_cndmask_b32 {vPH}, v38, v34, vcc", f"v_cndmask_b32 {vMK}, 0, -1, vcc",
             f"v_cndmask_b32 {vPX}, {vPD}, {vN}, vcc",
             f"s_lshr_b32 s62, {sWB}, 1", f"v_add_u32 {vKA}, s62, {vL16}", f"s_lshr_b32 s62, {sWB}, 3", f"v_lshl_add_u32 {vVA}, {vL}, 3, s62",
             f"s_lshr_b32 s62, {sWB}, 2", f"v_add_u32 {vHW}, s62, {vL16}", f"v_add_u32 {vHR}, {sWB}, {vL16}",
             f"v_mov_b32 {vONE}, 0x3f803f80", f"v_mov_b32 v{VP + 2}, 0", f"v_mov_b32 v{VP + 3}, 0", f"v_mov_b32 v{PP + 2}, 0", f"v_mov_b32 v{PP + 3}, 0",
             f"v_and_b32 v38, 31, {vL}", "v_lshlrev_b32 v34, 2, v36", "v_sub_u32 v38, v38, v34", "v_add_u32 v38, 5, v38",
             "s_mov_b64 s[62:63], 0xff", "v_lshlrev_b64 v[34:35], v38, s[62:63]", "v_not_b32 v34, v34", "v_not_b32 v35, v35",
             f"s_lshr_b32 s62, {sW}, 1", f"s_or_b32 s62, s62, {sRB}", "s_cmp_eq_u32 s62, 0", "s_cselect_b32 s62, 0xf0, 0", "v_or_b32 v34, s62, v34"]
        big = fb(-1e30)
        for n in range(16):
            bit = 8 * (n >> 2) + (n & 3) + 12
            o += [f"v_bfe_i32 v{SC + n}, v{34 + (bit >> 5)}, {bit & 31}, 1", f"v_and_b32 v{SC + n}, {big}, v{SC + n}"]
        for r in range(4):
            o += [f"v_bfe_i32 v{SP + 12 + r}, v34, {4 + r}, 1", f"v_and_b32 v{SP + 12 + r}, {big}, v{SP + 12 + r}"]
        return o

    def setup_late(self):
        a, b, c = vt
        slots = [1, 3, 5, 7, 9, 10, 11, 12, 13, 0, 2, 4, 6, 8, 0, 0]
        tab = sum(h << (4 * i) for i, h in enumerate(slots))
        o = [f"s_mov_b32 s62, 0x{tab & 0xffffffff:08x}", f"s_mov_b32 s63, 0x{tab >> 32:08x}", f"s_lshl_b32 s64, {sJ}, 2",
             "s_lshr_b64 s[62:63], s[62:63], s64", "s_and_b32 s62, s62, 15", "s_sub_u32 s63, 13, s62",
             [f"s_cmp_lt_u32 {sRB}, 8", f"s_cselect_b32 {sJ2}, s62, s63"],
             f"s_and_b32 {sMH}, {sJ2}, 1", f"s_lshr_b32 {sNT}, {sJ2}, 1",
             "s_sub_u32 s63, s2, 224", "s_min_u32 s63, s63, 27", f"s_movk_i32 {sPIT}, 896", "s_mov_b32 s59, 0x20000",
             [f"s_cmp_lt_u32 {sJ}, 14", "s_cselect_b64 s[56:57], s[12:13], s[16:17]", "s_cselect_b32 s58, s14, s18",
              f"s_cselect_b32 {sPIT}, {sPIT}, 3584", f"s_cselect_b32 s63, {sNT}, s63"],
             "s_lshl_b32 s63, s63, 7", f"s_mul_i32 s64, {sPIT}, 112", f"s_mul_i32 s64, s64, {sW}", f"s_add_u32 {sSTR}, s63, s64"]
        o += self.strip_voff(vSA, sPIT, c)
        o += [f"s_lshl_b32 {sPIT}, {sPIT}, 5", f"s_mul_i32 {sW14}, {sW}, 14336",
              f"v_lshrrev_b32 v{a}, 3, {vL}", f"v_mul_u32_u24 v{a}, 1792, v{a}", f"v_and_b32 v{b}, 7, {vL}", f"v_lshl_add_u32 {vROW}, v{b}, 4, v{a}",
              f"s_lshl_b32 s62, {sMH}, 1", f"s_lshr_b32 s63, {sW}, 1", "s_add_u32 s62, s62, s63", f"s_mul_i32 {sQ2}, s62, {QS}", f"s_add_u32 {sQ2}, {sQ2}, {sCL}",
              f"s_lshl_b32 s62, {sRB}, 7", f"s_lshl_b32 s64, {sMH}, 6", "s_add_u32 s62, s62, s64", "s_add_u32 s62, s62, s63",
              f"s_and_b32 s64, {sW}, 1", "s_lshl_b32 s64, s64, 5", "s_add_u32 s62, s62, s64", "s_mul_i32 s62, s62, 896",
              f"s_lshl_b32 s64, {sNT}, 7", f"s_add_u32 {sXROW}, s62, s64",
              f"v_lshl_add_u32 {vB2A}, {vL}, 1, s64",
              f"v_lshrrev_b32 v{a}, 4, {vL}", f"v_and_b32 v{b}, 15, {vL}", f"v_lshlrev_b32 v{b}, 4, v{b}", f"v_lshl_add_u32 {vF16}, v{a}, 9, v{b}",
              f"s_lshl_b32 {sU[4]}, {sH}, 11", f"s_add_u32 {sU[4]}, {sU[4]}, {sQ}",
              f"s_lshl_b32 s62, {sRB}, 9", f"s_lshl_b32 s63, {sW}, 7", "s_add_u32 s62, s62, s63", f"s_lshl_b32 s63, {sJ}, 2", "s_add_u32 s62, s62, s63",
              f"s_add_u32 {sU[5]}, s62, {WS_FO}"]
        o += self.strip_voff(vSB, 3584, c)
        o += [f"s_mul_i32 s62, {sW}, 1792", f"s_lshl_b32 s63, {sNT}, 8", "s_add_u32 s62, s62, s63", f"v_lshl_add_u32 {vVG}, {vL}, 2, s62"]
        o += [f"v_lshlrev_b32 v{a}, 3, {vL}", f"v_add_u32 v{a}, {L_WO + 57344}, v{a}", f"ds_write_b64 v{a}, {vr(VP + 2, 2)}"]
        o += [f"v_lshlrev_b32 {vTO}, 7, {vL}", f"s_sub_u32 s63, {sJ}, 11", "s_lshl_b32 s62, s63, 13",
              ["s_cmp_eq_u32 s63, 4", f"s_cselect_b32 s62, {Q_ST}, s62"], f"s_add_u32 s62, s62, {sQ}",
              ["s_cmp_lt_u32 s63, 5", f"s_cselect_b32 {sU[6]}, s62, {WS_SIZE}"]]
        return [Is(*x) if isinstance(x, list) else I(x) for x in o]

    def nonce_use(self):
        p = self.p
        self.stamp("x_setup")
        p.wait(self.nonce)
        p(f"v_readfirstlane_b32 {sN}, {vN}")
        p(f"s_add_u32 {sN}, {sN}, 0x01010101")
        p(f"v_mov_b32 {vN}, {sN}")
        p(f"s_and_b32 {sTAG}, {sN}, 0xbfffbfff")

    def id_store(self):
        p = self.p
        p([f"s_getreg_b32 {sXCC}, hwreg(HW_REG_XCC_ID, 0, 3)", f"s_andn2_b32 s63, {sN}, 7", f"s_or_b32 {sXCC}, {sXCC}, s63", f"v_mov_b32 {vPD}, {sXCC}",
           f"s_lshl_b32 s62, {sRB}, 11", f"s_lshl_b32 s64, {sJ}, 7", "s_add_u32 s62, s62, s64", f"s_add_u32 s62, s62, {WS_XCC}",
           f"s_cmp_eq_u32 {sW}, 0", f"s_cselect_b32 s62, s62, {WS_SIZE}"])
        self.flag(None, "s62", "sc1", vPD)

    def silu(self):
        p = self.p
        p(f"v_cmp_gt_u32 vcc, 56, {vL}")
        p(f"v_lshlrev_b32 v144, 3, {vL}")
        p(f"v_bfe_u32 v144, {vN}, v144, 8")
        p.wait(self.c_ld)
        self.stamp("x_c")
        p("v_lshlrev_b32 v34, 16, v32")
        p("v_and_b32 v35, 0xffff0000, v32")
        for r in (34, 35): p(f"v_mul_f32 v{r + 2}, {fb(-math.log2(math.e))}, v{r}")
        for r in (34, 35): p(f"v_exp_f32 v{r + 2}, v{r + 2}")
        for r in (34, 35): p(f"v_add_f32 v{r + 2}, 1.0, v{r + 2}")
        for r in (34, 35): p(f"v_rcp_f32 v{r + 2}, v{r + 2}")
        for r in (34, 35): p(f"v_mul_f32 v{r}, v{r}, v{r + 2}")
        p("v_cvt_pk_bf16_f32 v34, v34, v35")
        p("v_cndmask_b32 v34, 0, v34, vcc")
        p("ds_write_b32 v143, v34")
        for s in range(4):
            for e in range(2): p(f"ds_read_b64 {vr(120 + 4 * s + 2 * e, 2)}, v141 offset:{s * 64 + e * 16}")

    def mod_job(self, ms, second):
        p = self.p
        p("s_mov_b32 s63, 0xffffff00")
        p.wait(ms)
        if not second: self.stamp("x_strip")
        p("s_barrier")
        off = 0 if second else L_MS - L_MS2
        rd = [p(f"ds_read_b64_tr_b16 {vr(104 + 4 * s + 2 * e, 2)}, v140 offset:{off + s * 4096 + e * 1024}") for s in range(4) for e in range(2)]
        acc = 136 if not second else 156
        for s in range(4):
            p.wait(rd[2 * s + 1])
            p(f"v_mfma_f32_16x16x32_bf16 {vr(acc, 4)}, {vr(120 + 4 * s, 4)}, {vr(104 + 4 * s, 4)}, {'0' if s == 0 else vr(acc, 4)}")
        if second:
            p(f"v_and_or_b32 v{acc}, v{acc}, s63, v144")
            self.stamp("modjob2")
            return Is(f"v_lshlrev_b32 v{acc + 1}, 2, {vL}", "s_mov_b64 exec, 0xffff", f"buffer_store_dword v{acc}, v{acc + 1}, {WS}, {sMO} offen offset:{14 * 256} sc1", "s_mov_b64 exec, -1")
        p("s_mov_b64 exec, 0xffff")
        p(f"v_and_or_b32 v{acc}, v{acc}, s63, v144")
        p(f"buffer_store_dword v{acc}, v142, {WS}, {sMO} offen sc1")
        p("s_mov_b64 exec, -1")
        self.stamp("modjob")

    def red_rows4(self, r, t):
        p = self.p
        p(f"v_add_f32_dpp v{r}, v{r}, v{r} row_ror:4 row_mask:0xf bank_mask:0xf")
        p(f"v_add_f32_dpp v{r}, v{r}, v{r} row_ror:8 row_mask:0xf bank_mask:0xf")
        p(f"v_mov_b32 v{t}, v{r}")
        p(f"v_permlane16_swap_b32 v{r}, v{t}")
        p(f"v_add_f32 v{r}, v{r}, v{t}")
        p(f"v_mov_b32 v{t}, v{r}")
        p(f"v_permlane32_swap_b32 v{r}, v{t}")
        p(f"v_add_f32 v{r}, v{r}, v{t}")

    def h_job(self):
        p = self.p
        Z, RAW, S, M, ONE = 64, 40, 36, 96, 38
        wq = []
        for G in range(5): wq += self.wq_group(G)
        p(f"v_cmp_gt_u32 s[64:65], 56, {vL}")
        p.wait(self.xs_ld)
        self.stamp("x_x")
        rd = [p(f"ds_read_b128 {vr(RAW + 4 * s, 4)}, v160 offset:{s * 224}") for s in range(4)]
        for s in range(4):
            p.wait(rd[s])
            for n in range(4):
                p(f"v_lshlrev_b32 v{Z + 8 * s + 2 * n}, 16, v{RAW + 4 * s + n}")
                p(f"v_and_b32 v{Z + 8 * s + 2 * n + 1}, 0xffff0000, v{RAW + 4 * s + n}")
        p(f"v_pk_add_f32 {vr(S, 2)}, {vr(Z, 2)}, {vr(Z + 2, 2)}")
        for n in range(4, 32, 2):
            p(f"v_pk_add_f32 {vr(S, 2)}, {vr(S, 2)}, {vr(Z + n, 2)}")
        p(f"v_add_f32 v{S}, v{S}, v{S + 1}")
        p(f"v_cndmask_b32 v{S}, 0, v{S}, s[64:65]")
        self.red_rows4(S, S + 1)
        p(f"v_mul_f32 v{S}, {fb(1.0 / 448)}, v{S}")
        for n in range(0, 32, 2):
            p(f"v_pk_add_f32 {vr(Z + n, 2)}, {vr(Z + n, 2)}, {vr(S, 2)} op_sel_hi:[1,0] neg_lo:[0,1] neg_hi:[0,1]")
        p(f"v_pk_mul_f32 {vr(S, 2)}, {vr(Z, 2)}, {vr(Z, 2)}")
        for n in range(2, 32, 2):
            p(f"v_pk_fma_f32 {vr(S, 2)}, {vr(Z + n, 2)}, {vr(Z + n, 2)}, {vr(S, 2)}")
        p(f"v_add_f32 v{S}, v{S}, v{S + 1}")
        p(f"v_cndmask_b32 v{S}, 0, v{S}, s[64:65]")
        self.red_rows4(S, S + 1)
        p(f"v_mov_b32 v{S + 1}, {fb(1e-5)}")
        p(f"v_fmac_f32 v{S + 1}, {fb(1.0 / 448)}, v{S}")
        p(f"v_rsq_f32 v{S}, v{S + 1}")
        for n in range(0, 32, 2):
            p(f"v_pk_mul_f32 {vr(Z + n, 2)}, {vr(Z + n, 2)}, {vr(S, 2)} op_sel_hi:[1,0]")
        p(self.setup_late())
        p(f"s_mov_b32 {sMO}, {WS_SIZE}")
        self.warm_pages("P")
        p(self.gather_pre(0, ONE))
        self.stamp("xstats")
        wfl, wfc = self.wflag(32)
        self.gather896(RAW, ONE, None, True)
        wr = p(f"ds_write_b128 v162, {vr(RAW, 4)}")
        wf = p(wfl)
        p.wait(wr)
        p("s_barrier")
        rd = []
        for s in range(4):
            for e in range(2):
                rd.append(p(f"ds_read_b128 {vr(M + 16 * s + 4 * e, 4)}, v161 offset:{s * 448 + e * 16}"))
                rd.append(p(f"ds_read_b128 {vr(M + 16 * s + 8 + 4 * e, 4)}, v161 offset:{1792 + s * 448 + e * 16}"))
        p("s_mov_b32 exec_hi, 0x00ffffff")
        st = []
        for s in range(4):
            p.wait(rd[4 * s + 3])
            for n in range(0, 8, 2):
                p(f"v_pk_fma_f32 {vr(Z + 8 * s + n, 2)}, {vr(Z + 8 * s + n, 2)}, {vr(M + 16 * s + 8 + n, 2)}, {vr(M + 16 * s + n, 2)}")
            for n in range(4):
                p(f"v_cvt_pk_bf16_f32 v{RAW + 4 * s + n}, v{Z + 8 * s + 2 * n}, v{Z + 8 * s + 2 * n + 1}")
            st.append(p(f"buffer_store_dwordx4 {vr(RAW + 4 * s, 4)}, {vL16}, {WS}, {sHD} offen offset:{s * 896}"))
        p("s_mov_b32 exec_hi, -1")
        p.wait(wf)
        p(self.recheck([wfl], wfc))
        n1 = self.o("wdrain", 5)
        p(wq[:n1]); wq = wq[n1:]
        self.flag(st, sFH)
        self.stamp("hpub")
        p(wq)

    def late_loads(self):
        wo = self.strip_dma(STR, vSA, sSTR, sPIT, sW14, L_WO)
        xt = [Is(f"s_lshr_b32 s67, {sWB}, 1", f"s_add_u32 m0, s67, {L_XT}", f"s_add_u32 s67, {sXROW}, {14336 - 1024}",
                 f"buffer_load_dwordx4 {vROW}, {X}, {sXROW} offen lds"),
              Is(f"buffer_load_dwordx4 {vROW}, {X}, s67 offen offset:1024 lds")]
        tl = [I(f"buffer_load_dword {vDUM}, {vTO}, {WS}, {sU[6]} offen sc1")]
        return wo, xt, tl

    def startup(self):
        p = self.p
        self.head()
        l1, l2, l3, notp, none, join, att = [p.label(x) for x in ("RI", "RC", "RK", "RJ", "RN", "RX", "RA")]
        p("s_cmp_lt_u32 s2, 144")
        p(f"s_cbranch_scc1 {l1}")
        p("s_cmp_lt_u32 s2, 200")
        p(f"s_cbranch_scc0 {l3}")
        sC = p.push()
        self.c_issue(); c_c = self.c_ld
        ms_c = self.job_issue(False)
        p(f"s_branch {l2}")
        p.pop()
        p(l3 + ":")
        sK = p.push()
        p("s_mov_b64 s[8:9], s[74:75]")
        self.pack_issue()
        self.c_issue(); c_k = self.c_ld
        p(f"s_branch {l2}")
        p.pop()
        p(l1 + ":")
        sP = p.push()
        p("s_mov_b64 s[4:5], s[72:73]")
        self.x_issue()
        p.pop()
        p(l2 + ":")
        self.stamp("x_issue")
        p(self.set_ptrs())
        p(self.setup_t16()); p(self.setup_w())
        p("s_cmp_lt_u32 s2, 144")
        p(f"s_cbranch_scc1 {notp}")
        p(self.setup_job())
        p("s_cmp_lt_u32 s2, 200")
        p(f"s_cbranch_scc0 {none}")
        p.push(sC)
        self.nonce_use()
        self.stamp("prolog")
        self.c_ld = c_c
        self.silu()
        self.mod_job(ms_c, False)
        p(f"s_branch {join}")
        p.pop()
        p(none + ":")
        p.push(sK)
        self.pack_store()
        self.stamp("modjob")
        self.c_ld = c_k
        self.silu()
        p(f"s_branch {join}")
        p.pop()
        p(";PAGE")
        p(notp + ":")
        p.push(sP)
        p(self.setup_h())
        p(f"buffer_load_dword {vDUM}, v163, {WS}, {sHD} offen sc1")
        self.nonce_use()
        self.id_store()
        p(self.setup_p1())
        self.stamp("prolog")
        self.h_job()
        p(f"s_branch {att}")
        p.pop()
        p(join + ":")
        p.push()
        ms2 = self.job_issue(True)
        self.id_store()
        p(self.setup_p1())
        p(self.setup_late())
        self.warm_pages("N")
        wfl, wfc = self.wflag(32)
        self.poll([wfl], wfc)
        self.stamp("modpoll")
        for G in range(5): p(self.wq_group(G))
        st2 = self.mod_job(ms2, True)
        p.pop()
        p(att + ":")
        p(";STUB")
        wo, xt, tl = self.late_loads()
        self.phase1([st2] + tl + xt + wo)

    def warm_pages(self, role):
        if 'nowarm' in self.opt: return
        p = self.p
        p("s_mov_b64 exec, 0")
        for w in range(3):
            p(f"s_cmp_eq_u32 {sW}, {w}")
            p(f"s_cbranch_scc1 L_STUB{w}")
        p("s_branch L_STUB3")
        if role == "N":
            p("L_BACK:")
            p(f"s_cmp_lt_u32 {sJ}, 9")
            p("s_cbranch_scc1 L_BACKP")
        else:
            p("L_BACKP:")
        p("s_mov_b64 exec, -1")

    def vec_lds(self):
        lds = []
        for kq in range(4):
            lds += [f"s_mov_b32 s67, {WS_MODP + 896 * 4 + kq * 10752}", f"buffer_load_dword v{VG + kq}, {vVG}, {WS}, s67 offen sc1"]
        return lds

    def vec_loads(self):
        lds = self.vec_lds()
        return [Is(*lds[2 * kq:2 * kq + 2]) for kq in range(4)] + [Is(f"global_load_ushort v{VG + 4}, {vB2A}, s[38:39]")]

    def vec_items(self, last):
        R, T = VG, VG + 6
        lds = self.vec_lds()
        chk = [f"v_bitop3_b32 v{T + 1}, v{R}, v{R + 1}, v{T} bitop3:0x7e", f"v_bitop3_b32 v{T + 2}, v{R + 2}, v{R + 3}, v{T} bitop3:0x7e",
               f"v_or_b32 v{T + 1}, v{T + 1}, v{T + 2}", f"v_and_b32 v{T + 1}, 0xff, v{T + 1}", f"v_cmp_eq_u32 vcc, 0, v{T + 1}"]
        o = Is(f"v_and_b32 v{T}, 3, {vL}", f"v_lshlrev_b32 v{T}, 3, v{T}", f"v_lshrrev_b32 v{T}, v{T}, {vN}")
        o += [W(last)] + self.recheck(lds, chk)
        o += Is(*[f"v_and_b32 v{R + n}, 0xffffff00, v{R + n}" for n in range(4)])
        o += Is(f"v_add_f32 v{R}, v{R}, v{R + 2}", f"v_add_f32 v{R + 1}, v{R + 1}, v{R + 3}", f"v_add_f32 v{R}, v{R}, v{R + 1}",
                f"v_cvt_pk_bf16_f32 v{R}, v{R}, v{R}")
        o.append(Is(f"s_cmp_eq_u32 {sW}, 2", "s_cselect_b32 s62, 1.0, 0"))
        o += Is(f"v_and_b32 v{R}, 0xffff0000, v{R}", f"v_add_f32 v{R}, s62, v{R}", f"v_cvt_pk_bf16_f32 v{R}, v{R}, v{R}",
                f"v_lshlrev_b32 v{T}, 2, {vL}", f"v_add_u32 v{T}, {L_VEC}, v{T}", f"s_lshl_b32 s62, {sW}, 8",
                f"v_and_b32 v{R}, 0xffff0000, v{R}", f"v_add_u32 v{T + 1}, s62, v{T}", f"v_lshlrev_b32 v{R + 4}, 16, v{R + 4}",
                f"ds_write_b32 v{T + 1}, v{R}", f"ds_write_b32 v{T}, v{R + 4} offset:1024")
        return o

    def phase1(self, late):
        p = self.p
        self.stamp("prepoll")
        self.poll_h()
        self.stamp("hpoll")
        hld = [I(f"buffer_load_dwordx4 {ar(4 * s, 4)}, {vH}, {WS}, {sHOFF[s >> 2]} offen offset:{(s & 3) * 128} sc1") for s in range(28)]
        hh = [I(f"buffer_load_dwordx4 {ar(112 + 4 * s, 4)}, {vHH}, {WS}, {sU[s]} offen sc1") for s in range(4)]
        w56 = self.wq_group(5) + self.wq_group(6)
        def wread(s):
            base = vTq[0] if s < 14 else vTq[1]
            return [I(f"ds_read_b64_tr_b16 {vr(WB1 + 12 * (s % 3) + 4 * S + 2 * e, 2)}, v{base} offset:{(s % 14) * 3072 + e * 768 + S * 64}")
                    for S in range(3) for e in range(2)]
        def hread(sg, c0):
            base, off = (vTH, sg * 24576) if sg < 3 else (vTH2, 0)
            return [I(f"ds_read_b64_tr_b16 {vr(HB1 + 4 * c + 2 * e, 2)}, {base} offset:{off + e * 768 + 64 + c * 32}")
                    for c in (c0, c0 + 1) for e in range(2)]
        def hmfma(sg, c):
            w_, h_ = vr(HB1 + 4 * c, 4), ar(112 + 4 * sg, 4)
            a_, b_ = (w_, h_) if c < 2 else (h_, w_)
            return I(f"v_mfma_f32_16x16x32_bf16 {vr(AH + 4 * c, 4)}, {a_}, {b_}, {'0' if sg == 0 else vr(AH + 4 * c, 4)}")

        PRE = self.o("g1pre", 6)
        B1 = self.o("g1b1", 17)
        vr0, vc0 = self.wverify([0, 1, 2, 3, 4], QF)
        vr1, vc1 = self.wverify([5, 6], QF)
        p(hld[:1]); p(vr0); p(hld[1:3]); p(vc0)
        p("s_barrier")
        wrd = {0: wread(0), 1: wread(1)}
        p(wrd[0]); p(hld[3:4]); p(wrd[1]); p(hld[4:PRE])
        hstep = {8: (0, 0), 9: (0, 2), 12: (1, 0), 13: (1, 2), B1 + 1: (2, 0), B1 + 2: (2, 2), B1 + 3: (3, 0), B1 + 4: (3, 2)}
        xq = {1: [hh[0]], 5: [hh[1]], 11: [hh[2]], 12: [hh[3]]}
        for n in range(6): xq[2 * n] = [w56[n]] + xq.get(2 * n, [])
        fill = []
        hw = [I(f"ds_write_b128 {vHW}, {vr(AH + 4 * c, 4)} offset:{L_HP + c * 4096}") for c in range(4)]
        hr = [I(f"ds_read_b128 {vr(AH + 4 * c, 4)}, {vHR} offset:{L_HP + c * 1024}") for c in range(4)]
        hs = hw + [[W(hw), I("s_barrier")]] + hr + [None, None, W(hr)]
        hs += [I(f"v_add_f32 v{AH + n}, v{AH + n}, v{AH + 8 + n}") for n in range(8)]
        hs += [I(f"v_add_f32 v{AH + n}, v{AH + n}, v{AH + 4 + n}") for n in range(4)]
        hs += Is(f"v_cvt_pk_bf16_f32 v{AH + 4}, v{AH}, v{AH + 1}", f"v_cvt_pk_bf16_f32 v{AH + 5}, v{AH + 2}, v{AH + 3}")
        hx = I(f"ds_write_b64 {vHX}, {vr(AH + 4, 2)}")
        hs.append(hx)
        hrd = {}
        for s in range(28):
            if 'g1steps' in self.opt and s % 4 == 0: self.stamp(f"g1s{s}")
            if s == B1 - 1:
                p.wait(w56[-1][-1])
                p(vr1)
            if s == B1:
                p(vc1)
                p("s_barrier")
            rq = []
            if s + 1 in hstep:
                hrd[s + 1] = hread(*hstep[s + 1]); rq += hrd[s + 1]
            if s + 2 < 28:
                wrd[s + 2] = wread(s + 2); rq += wrd[s + 2]
            b = WB1 + 12 * (s % 3)
            h = ar(4 * s, 4)
            mm = Is(f"v_mfma_f32_32x32x16_bf16 {vr(AK, 16)}, {vr(b + 4, 4)}, {h}, {'0' if s == 0 else vr(AK, 16)}",
                    f"v_mfma_f32_32x32x16_bf16 {vr(AQ, 16)}, {vr(b, 4)}, {h}, {'0' if s == 0 else vr(AQ, 16)}",
                    f"v_mfma_f32_32x32x16_bf16 {vr(AV, 16)}, {h}, {vr(b + 8, 4)}, {'0' if s == 0 else vr(AV, 16)}")
            p.wait(wrd[s], hld[s], hrd.get(s), hh[hstep[s][0]] if s in hstep else None)
            vm = [hld[s + PRE]] if s + PRE < 28 else []
            vm += xq.get(s, [])
            if s + PRE >= 28:
                vm += late[:2 - (s & 1)]; late = late[2 - (s & 1):]
            nper = -(-max(0, len(rq) - (2 if s in hstep else 0)) // 3)
            for g in range(3):
                p(mm[g])
                k = min(nper, len(rq))
                p(rq[:k]); rq = rq[k:]
                bud = 5 - k - (1 if g == 2 else 0)
                if g < 2 and vm:
                    bud -= cost(vm[0]); p(vm.pop(0))
                if s >= B1 + 5: bud = take(p, hs, bud, force=(bud >= 2))
                take(p, fill, bud)
                if s in hstep and g > 0:
                    p(hmfma(hstep[s][0], hstep[s][1] + g - 1))
                    p(rq[:1]); rq = rq[1:]
            assert not rq and not vm
        p(hs); p(fill)
        self.stamp("gemm1")
        def dma():
            if late: p(late.pop(0))
        p(f"v_and_b32 v{vt[0]}, 31, {vL}")
        p(f"v_cmp_eq_u32 s[64:65], 28, v{vt[0]}")
        for n in range(8): p(f"v_cvt_pk_bf16_f32 v{KF + n}, v{AK + 2 * n}, v{AK + 2 * n + 1}")
        wr = [p(f"ds_write_b128 {vKA}, {vr(KF + 4 * f, 4)} offset:{L_KX + 4096 + f * 1024}") for f in range(2)]
        for n in (6, 7): p(f"v_cvt_pk_bf16_f32 v{VF + n}, v{AV + 2 * n}, v{AV + 2 * n + 1}")
        wr.append(p(f"ds_write_b64 {vVA}, {vr(VF + 6, 2)} offset:{L_VX + 1024}"))
        for n in range(8): p(f"v_cvt_pk_bf16_f32 v{QF + n}, v{AQ + 2 * n}, v{AQ + 2 * n + 1}")
        for n in (6, 7): p(f"v_and_b32 v{QF + n}, {vMK}, v{QF + n}")
        p.wait(wr)
        p("s_barrier")
        rk = [p(f"ds_read_b128 {vr(KP + 4 * f, 4)}, {vKA} offset:{L_KX + f * 1024}") for f in range(2)]
        rv = p(f"ds_read_b64 {vr(VP, 2)}, {vVA} offset:{L_VX}")
        p(f"v_mfma_f32_32x32x16_bf16 {vr(SC, 16)}, {vr(KF, 4)}, {vr(QF, 4)}, {vr(SC, 16)}")
        dma()
        p(f"v_mfma_f32_32x32x16_bf16 {vr(SC, 16)}, {vr(KF + 4, 4)}, {vr(QF + 4, 4)}, {vr(SC, 16)}")
        for n in range(5): p(f"v_cvt_pk_bf16_f32 v{VF + n}, v{AV + 2 * n}, v{AV + 2 * n + 1}")
        p.wait(rk)
        p(f"v_mfma_f32_32x32x16_bf16 {vr(SP, 16)}, {vr(KP, 4)}, {vr(QF, 4)}, {vr(SP, 16)}")
        dma()
        p(f"v_cvt_pk_bf16_f32 v{VF + 5}, v{AV + 10}, v{AV + 11}")
        p(f"v_mfma_f32_32x32x16_bf16 {vr(SP, 16)}, {vr(KP + 4, 4)}, {vr(QF + 4, 4)}, {vr(SP, 16)}")
        m, t = AH, AH + 1
        cs = 28 ** -0.5 * math.log2(math.e)
        for n in range(4): p(f"v_cndmask_b32 v{VF + n}, v{VF + n}, {vONE}, s[64:65]")
        p(f"v_max3_f32 v{m}, v{SC}, v{SC + 1}, v{SC + 2}")
        for n in range(3, 15, 2): p(f"v_max3_f32 v{m}, v{m}, v{SC + n}, v{SC + n + 1}")
        for n in range(4, 6): p(f"v_cndmask_b32 v{VF + n}, v{VF + n}, {vONE}, s[64:65]")
        p(f"v_max3_f32 v{m}, v{m}, v{SC + 15}, v{SP + 12}")
        p(f"v_max3_f32 v{m}, v{m}, v{SP + 13}, v{SP + 14}")
        p(f"v_max_f32 v{m}, v{m}, v{SP + 15}")
        p(f"v_mov_b32 v{t}, v{m}")
        p(f"s_mov_b32 s62, {fb(cs)}")
        p(f"s_mov_b32 s63, {fb(cs)}")
        p(f"v_permlane32_swap_b32 v{m}, v{t}")
        p(f"v_max_f32 v{m}, v{m}, v{t}")
        p(f"v_mul_f32 v{m}, {fb(-cs)}, v{m}")
        dma()
        rs = [SC + n for n in range(0, 16, 2)] + [SP + 12, SP + 14]
        for r in rs: p(f"v_pk_fma_f32 {vr(r, 2)}, {vr(r, 2)}, s[62:63], {vr(m, 2)} op_sel_hi:[1,1,0]")
        for n, r in enumerate(rs):
            p(f"v_exp_f32 v{r}, v{r}")
            p(f"v_exp_f32 v{r + 1}, v{r + 1}")
            if n > 0: p(f"v_cvt_pk_bf16_f32 v{PF + n - 1}, v{rs[n - 1]}, v{rs[n - 1] + 1}")
            if n in (2, 6): dma()
            if n == 5: p(f"v_mfma_f32_32x32x16_bf16 {vr(AQ, 16)}, {vr(VF, 4)}, {vr(PF, 4)}, 0")
            if n == 7:
                for q in (6, 7): p(f"v_cndmask_b32 v{VF + q}, v{VF + q}, {vONE}, s[64:65]")
        p(f"v_cvt_pk_bf16_f32 v{PF + 9}, v{rs[9]}, v{rs[9] + 1}")
        p(f"v_mfma_f32_32x32x16_bf16 {vr(AQ, 16)}, {vr(VF + 4, 4)}, {vr(PF + 4, 4)}, {vr(AQ, 16)}")
        p.wait(rv)
        for n in range(2): p(f"v_cndmask_b32 v{VP + n}, v{VP + n}, {vONE}, s[64:65]")
        p(f"v_mfma_f32_32x32x16_bf16 {vr(AQ, 16)}, {vr(VP, 4)}, {vr(PP, 4)}, {vr(AQ, 16)}")
        p(late); late = []

    def attn_tail(self):
        p = self.p
        m = AH
        p(f"v_mov_b32 v{m}, v{AQ + 12}")
        p(f"v_permlane32_swap_b32 v{AQ + 12}, v{m}")
        p(f"v_rcp_f32 v{m}, v{m}")
        st = []
        for f in range(2):
            for n in range(0, 8, 2):
                p(f"v_pk_mul_f32 {vr(AQ + 8 * f + n, 2)}, {vr(AQ + 8 * f + n, 2)}, {vr(m, 2)} op_sel_hi:[1,0]")
            for n in range(4):
                p(f"v_cvt_pk_bf16_f32 v{QF + 4 * f + n}, v{AQ + 8 * f + 2 * n}, v{AQ + 8 * f + 2 * n + 1}")
            if f == 1:
                for n in (6, 7): p(f"v_and_b32 v{QF + n}, {vMK}, v{QF + n}")
            st.append(p(f"buffer_store_dwordx4 {vr(QF + 4 * f, 4)}, {vL16}, {WS}, {sU[4]} offen offset:{Q_O + f * 1024}"))
        self.o_st = st
        self.stamp("attn")

    def finish(self):
        p = self.p
        if any(o.startswith("sc_") for o in self.opt):
            self.stamp("end")
            lab = p.label("SPIN")
            if "scx" in self.opt:
                p("s_and_b32 s62, s2, 7")
                p(f"s_cmp_eq_u32 s62, {self.opt['scx']}")
                p("s_cbranch_scc0 L_END")
            p("s_add_u32 s98, s98, 6000")
            p(lab + ":")
            p.wait(p("s_memrealtime s[100:101]"))
            p("s_sub_u32 s100, s100, s98")
            p("s_cmp_lt_i32 s100, 0")
            p(f"s_cbranch_scc1 {lab}")
        if self.stamps:
            p.wait(p(f"s_memrealtime s[{STAMP0}:{STAMP0 + 1}]"))
            p(f"v_writelane_b32 v255, s{STAMP0}, 62")
            p.wait(p(f"s_memtime s[{STAMP0}:{STAMP0 + 1}]"))
            p(f"v_writelane_b32 v255, s{STAMP0}, 63")
            p("s_lshl_b32 s62, s2, 10")
            p(f"s_add_u32 s62, s62, {WS_DBG}")
            p(f"v_lshlrev_b32 v254, 2, {vTID}")
            p(f"buffer_store_dword v255, v254, {WS}, s62 offen")
        p("s_endpgm")

    @staticmethod
    def sizes(lines):
        import subprocess, re, tempfile, os
        src = '.amdgcn_target "amdgcn-amd-amdhsa--gfx950"\n.text\n' + "\n".join(lines) + "\nL_END:\nL_STUB0:\nL_STUB1:\nL_STUB2:\nL_STUB3:\n    s_endpgm\n"
        d = tempfile.mkdtemp()
        open(d + "/a.s", "w").write(src)
        subprocess.run(["clang", "-x", "assembler", "-target", "amdgcn-amd-amdhsa", "-mcpu=gfx950", "-c", d + "/a.s", "-o", d + "/a.o"], check=True)
        out = subprocess.run(["llvm-objdump", "-d", "--mcpu=gfx950", d + "/a.o"], capture_output=True, text=True).stdout
        sz = [4 * len(m.group(1).split()) for m in re.finditer(r"// [0-9A-F]{12}: ((?:[0-9A-F]{8} ?)+)", out)]
        return sz[:-1]

    def place_stubs(self, text):
        lines = text.rstrip("\n").split("\n")
        isins = [l.startswith("    ") and not l.strip().startswith(";") for l in lines]
        sz = self.sizes(lines)
        assert len(sz) == sum(isins)
        out, n, addr, stubs, first = [], 0, None, [], 0
        full = True
        nxt = 4096
        for l, ins in zip(lines, isins):
            if l.strip() == ";PAGE":
                assert first <= 4096 - 768, first
                out.append(".p2align 12"); addr = 0; continue
            if l.strip() == ";NOSTUB": nxt = 1 << 30
            want = l.strip() == ";STUB" or (ins and addr is not None and addr >= nxt)
            if want and 'nowarm' not in self.opt:
                stubs.append(len(out)); out.append(None); addr += 4
                if addr > nxt: nxt += 4096
            if l.strip() in (";STUB", ";NOSTUB"): continue
            out.append(l)
            if ins:
                if addr is None: first += sz[n]
                else: addr += sz[n]
                n += 1
        self.code_bytes = (first, addr, len(stubs))
        for k, pos in enumerate(stubs):
            tgt = f"L_STUB{k + 4}" if k + 4 < len(stubs) else "L_BACK"
            out[pos] = f"L_STUB{k}:\n    s_cbranch_execz {tgt}"
        return "\n".join(out) + "\n"

    def build(self):
        p = self.p
        self.startup()
        self.attn_tail()
        import phases2
        phases2.rest(self)
        body = self.place_stubs(p.text() + "".join(self.ool))
        hdr = open("cdna_kernels/%s.s.ref" % NAME).read().split("; Override launch")[0]
        s = hdr + "; @launch grid=(256,1,1) block=(256,1,1) lds=163840\n"
        s += f'.amdgcn_target "amdgcn-amd-amdhsa--gfx950"\n.text\n.globl {NAME}_kernel\n.p2align 12\n.p2align 8\n.type {NAME}_kernel,@function\n{NAME}_kernel:\n'
        s += body + "L_END:\n    s_endpgm\n"
        s += f""".section .rodata,"a"
.p2align 6
.amdhsa_kernel {NAME}_kernel
  .amdhsa_next_free_vgpr 512
  .amdhsa_next_free_sgpr 102
  .amdhsa_accum_offset 256
  .amdhsa_group_segment_fixed_size 0
  .amdhsa_kernarg_size 104
  .amdhsa_user_sgpr_count 2
  .amdhsa_user_sgpr_kernarg_segment_ptr 1
  .amdhsa_system_sgpr_workgroup_id_x 1
  .amdhsa_float_denorm_mode_32 3
.end_amdhsa_kernel
"""
        return s


if __name__ == "__main__":
    import argparse
    ap = argparse.ArgumentParser()
    ap.add_argument("-o", default="cdna_kernels/%s.s" % NAME)
    ap.add_argument("--stop", type=int, default=99)
    ap.add_argument("--stamps", action="store_true")
    ap.add_argument("--slow", action="store_true")
    ap.add_argument("--opt", default="")
    a = ap.parse_args()
    sys.modules["kern"] = sys.modules["__main__"]
    k = K(a.stop, a.stamps, a.slow, [o for o in a.opt.split(",") if o])
    s = k.build()
    open(a.o, "w").write(s)
    if a.stamps:
        open(a.o + ".stamps", "w").write("\n".join(k.stamp_names))
    print("lines", s.count("\n"), "nops", k.p.nnop, "bytes", k.code_bytes)
```
